```python
import torch

def _softmax(x, axis=-1):
    return torch.softmax(x, dim=axis)
def _gelu(x):
    return torch.nn.functional.gelu(x, approximate="tanh")
def _silu(x):
    return torch.nn.functional.silu(x)
def _sigmoid(x):
    return torch.sigmoid(x)
def _layernorm(x, axis=-1, eps=1e-5):
    m = x.mean(dim=axis, keepdim=True)
    v = x.var(dim=axis, keepdim=True, unbiased=False)
    return (x - m) / torch.sqrt(v + eps)
def _scatter_add(tgt, idx, src, axis=0):
    return tgt.clone().index_add_(axis, idx, src)
def _segment_sum(src, seg, n):
    out = torch.zeros((n,) + src.shape[1:], dtype=src.dtype)
    return out.index_add_(0, seg, src)
def _pad(x, pw):
    flat = tuple(v for pair in reversed(pw) for v in pair)
    return torch.nn.functional.pad(x, flat)

kernel_name = 'standalone__softmax_full_mha__prompt'

def setup_inputs():

    _w = (lambda a: (lambda t: t.to(torch.bfloat16) if t.is_floating_point() else t)(torch.as_tensor(a)))
    B, S, D = 1, 2048, 448
    return {
        "x": _w((lambda *s: torch.randn(*s, dtype=torch.bfloat16) * 0.2)(B, S, D)),
        "wqkv": _w((lambda *s: torch.randn(*s, dtype=torch.bfloat16) * 0.2)(D, 3 * D)),
        "wo": _w((lambda *s: torch.randn(*s, dtype=torch.bfloat16) * 0.05)(D, D)),
    }

def reference(x, wqkv, wo):
    B, S, D = x.shape
    H = 16; Dh = D // H
    qkv = (lambda x, *d: x.permute(*d))((x @ wqkv).reshape(B, S, 3, H, Dh), 2, 0, 3, 1, 4)
    q, k, v = qkv[0], qkv[1], qkv[2]
    scale = Dh ** -0.5
    scores = torch.einsum("bhqd,bhkd->bhqk", q, k) * scale
    p = _softmax(scores, axis=-1)
    o = torch.einsum("bhqk,bhkd->bhqd", p, v)
    return (lambda x, *d: x.permute(*d))(o, 0, 2, 1, 3).reshape(B, S, D) @ wo
```

```python
class Asm:
    def __init__(self):
        self.lines = []
        self.nlabel = 0
    def __call__(self, s):
        for l in s.strip("\n").split("\n"):
            self.lines.append("    " + l.strip() if not l.strip().endswith(":") else l.strip())
    def c(self, s):
        self.lines.append("    ; " + s)
    def label(self, name):
        self.lines.append(name + ":")
    def newlabel(self, base="L"):
        self.nlabel += 1
        return f"{base}_{self.nlabel}"
    def raw(self, s):
        self.lines.append(s)
    def text(self):
        return "\n".join(self.lines) + "\n"

def vr(a, n=1):
    return f"v{a}" if n == 1 else f"v[{a}:{a+n-1}]"
def sr(a, n=1):
    return f"s{a}" if n == 1 else f"s[{a}:{a+n-1}]"

def kernel_desc(name, vgpr, sgpr=96):
    acc = (vgpr + 3) // 4 * 4
    return f""".amdhsa_kernel {name}
  .amdhsa_next_free_vgpr {vgpr}
  .amdhsa_next_free_sgpr {sgpr}
  .amdhsa_accum_offset {acc}
  .amdhsa_group_segment_fixed_size 0
  .amdhsa_kernarg_size 48
  .amdhsa_user_sgpr_count 2
  .amdhsa_user_sgpr_kernarg_segment_ptr 1
  .amdhsa_system_sgpr_workgroup_id_x 1
.end_amdhsa_kernel
"""
```

```python
import sys
from asmlib import *

WS_KV = 0
WS_Q = 0x400000
WS_O = 0x600000
WS_BYTES = 0x900000
XB, WB, WOB, OUTB = 1835008, 1204224, 401408, 1835008
QSCALE = 0x3e8b97f6
import struct, math
QSCALE = struct.unpack("<I", struct.pack("<f", math.log2(math.e) / math.sqrt(28.0)))[0]

S_X, S_W, S_WS, S_WO, S_OUT = 8, 12, 16, 20, 24
S_QB, S_JG, S_JL, S_WV, S_HEAD, S_ROT = 28, 29, 30, 31, 32, 33

def prologue(a, done):
    a(f"""
    s_cmp_ge_u32 s2, 256
    s_cbranch_scc1 {done}
    s_load_dwordx4 s[36:39], s[0:1], 0
    s_load_dwordx4 s[40:43], s[0:1], 16
    s_load_dwordx2 s[44:45], s[0:1], 40
    v_lshrrev_b32 v2, 6, v0
    v_and_b32 v1, 63, v0
    s_and_b32 s34, s2, 3
    s_lshl_b32 s34, s34, 2
    v_readfirstlane_b32 s{S_WV}, v2
    s_lshr_b32 s35, s2, 3
    s_and_b32 s35, s35, 3
    s_add_u32 s{S_QB}, s34, s35
    s_lshr_b32 s{S_JG}, s2, 2
    s_and_b32 s{S_JG}, s{S_JG}, 1
    s_lshr_b32 s{S_JL}, s2, 5
    s_lshl_b32 s{S_HEAD}, s{S_JG}, 3
    s_add_u32 s{S_HEAD}, s{S_HEAD}, s{S_JL}
    s_lshl_b32 s{S_ROT}, s35, 1
    s_add_u32 s{S_ROT}, s{S_ROT}, s{S_JL}
    s_cmp_ge_u32 s{S_ROT}, 7
    s_cselect_b32 s34, 7, 0
    s_sub_u32 s{S_ROT}, s{S_ROT}, s34
    s_mov_b32 s{S_X+2}, {XB}
    s_mov_b32 s{S_X+3}, 0x00020000
    s_mov_b32 s{S_W+2}, {WB}
    s_mov_b32 s{S_W+3}, 0x00020000
    s_mov_b32 s{S_WS+2}, {WS_BYTES}
    s_mov_b32 s{S_WS+3}, 0x00020000
    s_mov_b32 s{S_WO+2}, {WOB}
    s_mov_b32 s{S_WO+3}, 0x00020000
    s_mov_b32 s{S_OUT+2}, {OUTB}
    s_mov_b32 s{S_OUT+3}, 0x00020000
    """)
def prologue_wait(a):
    a(f"""
    s_waitcnt lgkmcnt(0)
    s_mov_b32 s{S_X}, s36
    s_mov_b32 s{S_X+1}, s37
    s_mov_b32 s{S_W}, s38
    s_mov_b32 s{S_W+1}, s39
    s_mov_b32 s{S_WO}, s40
    s_mov_b32 s{S_WO+1}, s41
    s_mov_b32 s{S_OUT}, s42
    s_mov_b32 s{S_OUT+1}, s43
    s_mov_b32 s{S_WS}, s44
    s_mov_b32 s{S_WS+1}, s45
    """)

WBASE = 114688
def phase1(a, store_q):
    vXg, vWg, vQg = 4, 5, 6
    vXa = 8
    vWa, vQa = 16, 17
    vT = 18
    vAcc = 32
    vXf = 48
    vWf = 64
    vD = 80
    vAd = 92
    vQ = 96
    sC, sXo, sWo, sCol, sM = 46, 47, 48, 49, 50
    sXbase, sQo = 51, 52
    a.c("---- phase 1 address setup")
    a(f"""
    v_lshrrev_b32 v{vT}, 3, v1            ; r = lane>>3
    v_and_b32 v{vT+1}, 7, v1              ; pos
    s_lshl_b32 s34, s{S_WV}, 3            ; 8w
    v_add_u32 v{vT+2}, s34, v{vT}         ; 8w+r
    v_lshrrev_b32 v{vT+3}, 1, v{vT+2}
    v_and_b32 v{vT+3}, 7, v{vT+3}         ; swz = ((8w+r)>>1)&7
    v_xor_b32 v{vT+3}, v{vT+3}, v{vT+1}
    v_lshlrev_b32 v{vT+3}, 4, v{vT+3}
    v_mul_u32_u24 v{vXg}, 896, v{vT+2}
    v_add_u32 v{vXg}, v{vXg}, v{vT+3}
    v_lshlrev_b32 v{vT+3}, 1, v{vT}
    v_and_b32 v{vT+3}, 4, v{vT+3}         ; ((r>>1)&1)*4
    v_xor_b32 v{vT+3}, v{vT+3}, v{vT+1}
    v_lshlrev_b32 v{vT+3}, 4, v{vT+3}
    v_mul_u32_u24 v{vWg}, 2688, v{vT+2}
    v_add_u32 v{vWg}, v{vWg}, v{vT+3}
    s_mul_i32 s{sXbase}, s{S_QB}, 114688
    s_min_u32 s34, s{S_JL}, 6
    s_lshl_b32 s34, s34, 7
    s_mul_i32 s{sCol}, s{S_JG}, 896
    s_add_u32 s{sCol}, s{sCol}, 896
    s_add_u32 s{sCol}, s{sCol}, s34
    s_mov_b32 s{sC}, s{S_ROT}
    s_lshl_b32 s{sM}, s{S_WV}, 10
    """)
    prologue_wait(a)
    def issue_chunk(i):
        a(f"""
        s_lshl_b32 s{sXo}, s{sC}, 7
        s_add_u32 s{sXo}, s{sXo}, s{sXbase}
        s_add_u32 m0, s{sM}, {i*16384}
        s_mul_i32 s{sWo}, s{sC}, 172032
        buffer_load_dwordx4 v{vXg}, s[{S_X}:{S_X+3}], s{sXo} offen lds
        s_add_u32 s{sXo}, s{sXo}, 57344
        s_add_u32 m0, s{sM}, {i*16384+8192}
        s_add_u32 s{sWo}, s{sWo}, s{sCol}
        buffer_load_dwordx4 v{vXg}, s[{S_X}:{S_X+3}], s{sXo} offen lds
        s_add_u32 m0, s{sM}, {WBASE+(i%6)*8192}
        s_add_u32 s{sC}, s{sC}, 1
        buffer_load_dwordx4 v{vWg}, s[{S_W}:{S_W+3}], s{sWo} offen lds
        s_cmp_eq_u32 s{sC}, 7
        s_cselect_b32 s{sC}, 0, s{sC}
        """)
    issue_chunk(0)
    issue_chunk(1)
    a.c("---- remaining address setup (overlaps the first loads)")
    a(f"""
    v_and_b32 v{vT}, 31, v1               ; tok
    v_lshrrev_b32 v{vT+1}, 5, v1          ; h
    v_lshrrev_b32 v{vT+2}, 1, v{vT}
    v_and_b32 v{vT+2}, 7, v{vT+2}
    v_xor_b32 v{vT+2}, v{vT+2}, v{vT+1}   ; h ^ swz
    v_lshlrev_b32 v{vT+2}, 4, v{vT+2}
    v_lshlrev_b32 v{vT+3}, 7, v{vT}
    v_add_u32 v{vT+2}, v{vT+2}, v{vT+3}
    s_and_b32 s34, s{S_WV}, 3
    s_lshl_b32 s34, s34, 12
    v_add_u32 v{vXa}, s34, v{vT+2}
    v_xor_b32 v{vXa+1}, 32, v{vXa}
    v_xor_b32 v{vXa+2}, 64, v{vXa}
    v_xor_b32 v{vXa+3}, 0x60, v{vXa}
    v_add_u32 v{vXa+4}, 0x10000, v{vXa}
    v_add_u32 v{vXa+5}, 0x10000, v{vXa+1}
    v_add_u32 v{vXa+6}, 0x10000, v{vXa+2}
    v_add_u32 v{vXa+7}, 0x10000, v{vXa+3}
    v_and_b32 v{vT+2}, 3, v1              ; c'
    v_lshrrev_b32 v{vT+3}, 1, v{vT+2}
    v_lshlrev_b32 v{vT+4}, 1, v{vT+2}
    v_and_b32 v{vT+4}, 2, v{vT+4}
    v_or_b32 v{vT+3}, v{vT+3}, v{vT+4}    ; bitswap2(c')
    v_bfe_u32 v{vT+4}, v1, 4, 1           ; a
    v_bfe_u32 v{vT+5}, v1, 2, 2           ; r'
    v_lshl_add_u32 v{vT+6}, v{vT+1}, 3, v{vT+5}   ; 8h + r'
    ; W address
    s_cmp_eq_u32 s{S_JG}, 0
    s_cselect_b64 vcc, -1, 0
    s_lshr_b32 s34, s{S_WV}, 2            ; Ct
    s_lshl_b32 s34, s34, 3
    v_cndmask_b32 v{vT+7}, v{vT+2}, v{vT+3}, vcc  ; cg
    v_lshl_add_u32 v{vT+7}, v{vT+4}, 2, v{vT+7}   ; 4a + cg
    v_add_u32 v{vT+7}, s34, v{vT+7}
    v_lshlrev_b32 v{vT+8}, 2, v{vT+5}
    v_and_b32 v{vT+8}, 8, v{vT+8}
    v_xor_b32 v{vT+7}, v{vT+7}, v{vT+8}
    v_lshlrev_b32 v{vT+7}, 3, v{vT+7}
    v_lshl_add_u32 v{vWa}, v{vT+6}, 7, v{vT+7}
    v_add_u32 v{vWa}, {WBASE}, v{vWa}
    v_lshl_add_u32 v{vT+7}, v{vT+4}, 2, v{vT+3}   ; sg
    v_add_u32 v{vT+8}, 2, v{vT+7}
    v_lshrrev_b32 v{vT+9}, 3, v{vT+8}             ; sg>=6
    v_and_b32 v{vT+8}, 7, v{vT+8}
    v_xor_b32 v{vT+8}, v{vT+8}, v{vT+9}
    s_bitcmp1_b32 s{S_HEAD}, 0
    s_cselect_b64 vcc, -1, 0
    v_cndmask_b32 v{vT+7}, v{vT+7}, v{vT+8}, vcc
    v_lshlrev_b32 v{vT+7}, 3, v{vT+7}
    v_lshl_add_u32 v{vQa}, v{vT+6}, 6, v{vT+7}
    v_add_u32 v{vQa}, {WBASE}, v{vQa}
    v_lshrrev_b32 v{vT+7}, 2, v1
    s_and_b32 s34, s{S_WV}, 3
    s_lshl_b32 s34, s34, 4
    v_add_u32 v{vT+7}, s34, v{vT+7}
    v_mul_u32_u24 v{vQg}, 2688, v{vT+7}
    v_lshl_add_u32 v{vQg}, v{vT+2}, 4, v{vQg}
    s_mul_i32 s{sQo}, s{S_HEAD}, 56
    s_and_b32 s{sQo}, s{sQo}, 0xfffffff0
    """)
    for r in range(16):
        a(f"v_mov_b32 v{vAcc+r}, 0")
    def issue_q(pair):
        a(f"""
        s_lshr_b32 s34, s{S_WV}, 2
        s_add_u32 s34, s34, s{S_ROT}
        s_add_u32 s34, s34, {2*pair}
        s_cmp_ge_u32 s34, 7
        s_cselect_b32 s35, 7, 0
        s_sub_u32 s34, s34, s35
        s_cmp_ge_u32 s34, 7
        s_cselect_b32 s35, 7, 0
        s_sub_u32 s34, s34, s35
        s_mul_i32 s34, s34, 172032
        s_add_u32 m0, s{sM}, {WBASE+(pair+1)*8192}
        s_add_u32 s34, s34, s{sQo}
        buffer_load_dwordx4 v{vQg}, s[{S_W}:{S_W+3}], s34 offen lds
        """)
    def xread(dst, i, sub):
        base = vXa + sub + (4 if i >= 4 else 0)
        off = (i % 4) * 16384
        a(f"ds_read_b128 {vr(dst,4)}, v{base} offset:{off}")
    def kloop(ktype):
        for i in range(7):
            a(f"s_waitcnt vmcnt({3 if i < 6 else 2})")
            a("s_barrier")
            if i + 2 <= 6:
                issue_chunk(i + 2)
            elif i == 5:
                issue_q(0); issue_q(1)
            else:
                issue_q(2); issue_q(3)
            for sub in range(4):
                xread(vXf + 4 * sub, i, sub)
                for u in range(2):
                    a(f"ds_read_b64_tr_b16 {vr(vWf+4*sub+2*u,2)}, v{vWa} offset:{(i%6)*8192+sub*2048+u*512}")
            for sub in range(4):
                a(f"s_waitcnt lgkmcnt({9-3*sub})")
                A, B = (vWf + 4 * sub, vXf + 4 * sub) if ktype else (vXf + 4 * sub, vWf + 4 * sub)
                a(f"v_mfma_f32_32x32x16_bf16 {vr(vAcc,16)}, {vr(A,4)}, {vr(B,4)}, {vr(vAcc,16)}")
    Lv, Lq = a.newlabel("L_vtype"), a.newlabel("L_qproj")
    a(f"""
    s_lshl_b32 s34, s{S_QB}, 2
    s_and_b32 s35, s{S_WV}, 3
    s_add_u32 s53, s34, s35               ; tile
    s_lshl_b32 s54, s53, 12               ; tile*4096
    s_min_u32 s34, s{S_JL}, 6
    s_lshl_b32 s34, s34, 1
    s_lshr_b32 s35, s{S_WV}, 2
    s_add_u32 s55, s34, s35               ; Ctg
    s_cmp_lg_u32 s{S_JG}, 0
    s_cbranch_scc1 {Lv}
    """)
    a.c("---- K type")
    a(f"""
    v_and_b32 v{vT+2}, 0x13, v{vT}
    v_lshlrev_b32 v{vT+3}, 1, v{vT}
    v_and_b32 v{vT+3}, 8, v{vT+3}
    v_lshrrev_b32 v{vT+4}, 1, v{vT}
    v_and_b32 v{vT+4}, 4, v{vT+4}
    v_or3_b32 v{vT+2}, v{vT+2}, v{vT+3}, v{vT+4}
    v_lshlrev_b32 v{vT+2}, 4, v{vT+2}     ; kp*16
    s_lshl_b32 s34, s55, 2
    """)
    for aa in range(2):
        a(f"""
        v_add_u32 v{vT+3}, s34, v{vT+1}
        v_add_u32 v{vT+3}, {2*aa}, v{vT+3}       ; U
        v_mul_u32_u24 v{vT+4}, 37, v{vT+3}
        v_lshrrev_b32 v{vT+4}, 8, v{vT+4}        ; e
        v_mul_u32_u24 v{vT+5}, 7, v{vT+4}
        v_sub_u32 v{vAd+2+aa}, v{vT+3}, v{vT+5}  ; u7
        v_lshl_add_u32 v{vAd+aa}, v{vT+4}, 19, v{vT+2}
        v_lshrrev_b32 v{vT+5}, 2, v{vAd+2+aa}
        v_lshl_add_u32 v{vAd+aa}, v{vT+5}, 18, v{vAd+aa}
        v_and_b32 v{vT+5}, 3, v{vAd+2+aa}
        v_lshl_add_u32 v{vAd+aa}, v{vT+5}, 9, v{vAd+aa}
        """)
    kloop(True)
    a(f"""
    s_cmp_eq_u32 s{S_JL}, 7
    s_cbranch_scc1 {Lq}
    s_add_u32 s56, s54, 262144
    v_mov_b32 v{vD+10}, 0x3f803f80
    v_mov_b32 v{vD+11}, 0x00003f80
    s_nop 7
    """)
    for t in range(8):
        a(f"v_cvt_pk_bf16_f32 v{vD+t}, v{vAcc+2*t}, v{vAcc+2*t+1}")
    for aa in range(2):
        Ls = a.newlabel("L_ks")
        a(f"""
        v_cmp_eq_u32 vcc, 3, v{vAd+2+aa}
        v_mov_b32 v{vD+8}, v{vD+4*aa+2}
        v_mov_b32 v{vD+9}, v{vD+4*aa+3}
        v_cndmask_b32 v{vD+4*aa+2}, v{vD+4*aa+2}, v{vD+10}, vcc
        v_cndmask_b32 v{vD+4*aa+3}, v{vD+4*aa+3}, v{vD+11}, vcc
        buffer_store_dwordx4 {vr(vD+4*aa,4)}, v{vAd+aa}, s[{S_WS}:{S_WS+3}], s54 offen
        s_and_saveexec_b64 s[58:59], vcc
        s_cbranch_execz {Ls}
        buffer_store_dwordx4 {vr(vD+8,4)}, v{vAd+aa}, s[{S_WS}:{S_WS+3}], s56 offen
        s_nop 1
        {Ls}:
        s_mov_b64 exec, s[58:59]
        """)
    a(f"s_branch {Lq}")
    a.label(Lv)
    a.c("---- V type")
    a(f"""
    s_lshl_b32 s34, s55, 5
    v_add_u32 v{vT+2}, s34, v{vT}            ; C
    v_mul_u32_u24 v{vT+3}, 2341, v{vT+2}
    v_lshrrev_b32 v{vT+3}, 16, v{vT+3}       ; head
    v_mul_u32_u24 v{vT+4}, 28, v{vT+3}
    v_sub_u32 v{vAd+2}, v{vT+2}, v{vT+4}     ; d
    v_lshl_add_u32 v{vT+4}, v{vT+1}, 5, v{vAd+2}
    v_lshlrev_b32 v{vT+4}, 4, v{vT+4}
    v_lshl_add_u32 v{vAd}, v{vT+3}, 18, v{vT+4}
    """)
    kloop(False)
    Ls = a.newlabel("L_vs")
    a(f"""
    s_cmp_eq_u32 s{S_JL}, 7
    s_cbranch_scc1 {Lq}
    v_cmp_eq_u32 vcc, 0, v{vAd+2}
    v_mov_b32 v{vD+12}, 0x3f803f80
    s_nop 1
    v_cndmask_b32 v{vD+8}, 0, v{vD+12}, vcc
    v_cndmask_b32 v{vD+9}, 0, v{vD+12}, vcc
    v_cndmask_b32 v{vD+10}, 0, v{vD+12}, vcc
    v_cndmask_b32 v{vD+11}, 0, v{vD+12}, vcc
    s_nop 3
    """.replace(f"v{vD+12}", f"v{vT+5}"))
    for t in range(8):
        a(f"v_cvt_pk_bf16_f32 v{vD+t}, v{vAcc+2*t}, v{vAcc+2*t+1}")
    a(f"""
    v_cmp_gt_u32 vcc, 4, v{vAd+2}
    buffer_store_dwordx4 {vr(vD,4)}, v{vAd}, s[{S_WS}:{S_WS+3}], s54 offen offset:2048
    buffer_store_dwordx4 {vr(vD+4,4)}, v{vAd}, s[{S_WS}:{S_WS+3}], s54 offen offset:3072
    s_and_saveexec_b64 s[58:59], vcc
    s_cbranch_execz {Ls}
    buffer_store_dwordx4 {vr(vD+8,4)}, v{vAd}, s[{S_WS}:{S_WS+3}], s54 offen offset:{2048+448}
    buffer_store_dwordx4 {vr(vD+8,4)}, v{vAd}, s[{S_WS}:{S_WS+3}], s54 offen offset:{3072+448}
    {Ls}:
    s_mov_b64 exec, s[58:59]
    """)
    a.label(Lq)
    a.c("---- Q projection")
    a("s_waitcnt vmcnt(0)")
    a("s_barrier")
    for i in range(7):
        for sub in range(4):
            xread(vXf + 4 * sub, i, sub)
            for u in range(2):
                a(f"ds_read_b64_tr_b16 {vr(vWf+4*sub+2*u,2)}, v{vQa} offset:{8192+i*4096+sub*1024+u*256}")
        for sub in range(4):
            a(f"s_waitcnt lgkmcnt({9-3*sub})")
            C = "0" if (i == 0 and sub == 0) else vr(vAcc, 16)
            a(f"v_mfma_f32_32x32x16_bf16 {vr(vAcc,16)}, {vr(vWf+4*sub,4)}, {vr(vXf+4*sub,4)}, {C}")
    a(f"s_mov_b32 s34, {QSCALE:#x}")
    a("s_nop 10")
    for r in range(16):
        a(f"v_mul_f32 v{vAcc+r}, s34, v{vAcc+r}")
    for t in range(8):
        a(f"v_cvt_pk_bf16_f32 v{vQ+t}, v{vAcc+2*t}, v{vAcc+2*t+1}")
    a(f"""
    s_mov_b32 exec_lo, 0
    v_mov_b32 v{vQ+6}, 0
    v_mov_b32 v{vQ+7}, 0
    s_mov_b32 exec_lo, -1
    """)
    if store_q:
        Ld = a.newlabel("L_noq")
        a(f"""
        s_cmp_ge_u32 s{S_WV}, 4
        s_cbranch_scc1 {Ld}
        s_lshl_b32 s34, s{S_HEAD}, 17
        s_lshl_b32 s35, s53, 11
        s_add_u32 s34, s34, s35
        s_add_u32 s34, s34, {WS_Q}
        v_lshlrev_b32 v{vT}, 4, v1
        buffer_store_dwordx4 {vr(vQ,4)}, v{vT}, s[{S_WS}:{S_WS+3}], s34 offen
        buffer_store_dwordx4 {vr(vQ+4,4)}, v{vT}, s[{S_WS}:{S_WS+3}], s34 offen offset:1024
        {Ld}:
        """)

def phase2(a, load_q):
    vL16, vL, vIdx = 4, 5, 6
    vT = 8
    vO = 16
    vS = [32, 48]
    vK = [64, 72]
    vV = [104, 112, 120, 128]
    vQ = 96
    vX = 80
    sG, sM0, sCnt, sSlot, sHalf = 46, 47, 48, 49, 50
    a.c("---- phase 2 setup")
    a(f"""
    v_lshlrev_b32 v{vL16}, 4, v1
    s_lshr_b32 s{sHalf}, s{S_WV}, 2
    s_and_b32 s35, s{S_WV}, 3
    s_lshl_b32 s34, s{S_QB}, 2
    s_add_u32 s53, s34, s35               ; q tile
    s_lshl_b32 s34, s{sHalf}, 5
    s_add_u32 s34, s34, s35
    s_lshl_b32 s34, s34, 12
    s_lshl_b32 s{sG}, s{S_HEAD}, 18
    s_add_u32 s{sG}, s{sG}, s34
    s_lshl_b32 s{sM0}, s{S_WV}, 12
    s_lshl_b32 s34, s{sHalf}, 14
    v_add_u32 v{vL}, s34, v{vL16}
    v_mov_b32 v{vIdx}, 0xdddddddd
    """)
    if load_q:
        prologue_wait(a)
    def dma(slot_off_expr):
        a(f"s_add_u32 m0, s{sM0}, {slot_off_expr}")
        a("s_nop 0")
        for f in range(4):
            a(f"buffer_load_dwordx4 v{vL16}, s[{S_WS}:{S_WS+3}], s{sG} offen offset:{f*1024} lds")
        a(f"s_add_u32 s{sG}, s{sG}, 16384")
    if load_q:
        a(f"""
        s_lshl_b32 s34, s{S_HEAD}, 17
        s_lshl_b32 s35, s53, 11
        s_add_u32 s34, s34, s35
        s_add_u32 s34, s34, {WS_Q}
        buffer_load_dwordx4 {vr(vQ,4)}, v{vL16}, s[{S_WS}:{S_WS+3}], s34 offen
        buffer_load_dwordx4 {vr(vQ+4,4)}, v{vL16}, s[{S_WS}:{S_WS+3}], s34 offen offset:1024
        """)
    dma(0)
    dma(32768)
    for r in range(16):
        a(f"v_mov_b32 v{vO+r}, 0")
    def rdK(u):
        for f in range(2):
            a(f"ds_read_b128 {vr(vK[u%2]+4*f,4)}, v{vL} offset:{(u%4)*4096+f*1024}")
    def rdV(u):
        for f in range(2):
            a(f"ds_read_b128 {vr(vV[u%4]+4*f,4)}, v{vL} offset:{(u%4)*4096+2048+f*1024}")
    def QK(u, i):
        C = "0" if i == 0 else vr(vS[u%2], 16)
        a(f"v_mfma_f32_32x32x16_bf16 {vr(vS[u%2],16)}, {vr(vK[u%2]+4*i,4)}, {vr(vQ+4*i,4)}, {C}")
    def PV(u, i):
        a(f"v_smfmac_f32_32x32x32_bf16 {vr(vO,16)}, {vr(vV[u%4]+4*i,4)}, {vr(vS[u%2]+8*i,8)}, v{vIdx}")
    def E(u, r0, r1):
        for r in range(r0, r1):
            a(f"v_exp_f32 v{vS[u%2]+r}, v{vS[u%2]+r}")
    def step(t, pv1=True, qk=True, rd=True):
        E(t, 0, 2)
        if pv1: PV(t - 1, 1)
        E(t, 2, 6)
        a("s_waitcnt lgkmcnt(0)")
        if qk: QK(t + 1, 0)
        E(t, 6, 9)
        if qk: QK(t + 1, 1)
        if rd:
            rdK(t + 2); rdV(t + 2)
        else:
            a("s_nop 3")
        E(t, 9, 13)
        PV(t, 0)
        E(t, 13, 16)
    a.c("---- iteration 0 (prologue)")
    a("s_waitcnt vmcnt(4)")
    a("s_barrier")
    dma(65536)
    a(f"""
    ds_read_b128 {vr(vK[1],4)}, v{vL16}
    ds_read_b128 {vr(vK[1]+4,4)}, v{vL16} offset:1024
    """)
    rdK(0); rdV(0)
    a("s_waitcnt lgkmcnt(4)")
    QK(1, 0); QK(1, 1)
    a("s_nop 11")
    S = vS[1]
    a(f"v_max3_f32 v{vT}, v{S}, v{S+1}, v{S+2}")
    a(f"v_max3_f32 v{vT+1}, v{S+3}, v{S+4}, v{S+5}")
    for r in (6, 10):
        a(f"v_max3_f32 v{vT}, v{vT}, v{S+r}, v{S+r+1}")
        a(f"v_max3_f32 v{vT+1}, v{vT+1}, v{S+r+2}, v{S+r+3}")
    a(f"v_max3_f32 v{vT}, v{vT}, v{S+14}, v{S+15}")
    a(f"""
    v_max_f32 v{vT}, v{vT}, v{vT+1}
    v_mov_b32 v{vT+1}, v{vT}
    s_nop 1
    v_permlane32_swap_b32 v{vT}, v{vT+1}
    s_nop 1
    v_max_f32 v{vT}, v{vT}, v{vT+1}
    s_mov_b32 exec_lo, 0
    v_cvt_pk_bf16_f32 v{vQ+6}, -v{vT}, 0
    s_mov_b32 exec_lo, -1
    """)
    rdK(1); rdV(1)
    a("s_waitcnt lgkmcnt(4)")
    QK(0, 0); QK(0, 1)
    a("s_nop 11")
    step(0, pv1=False)
    step(1)
    a(f"""
    s_mov_b32 s{sCnt}, 1
    s_mov_b32 s{sSlot}, 0
    s_mov_b32 s51, 32768
    v_add_u32 v{vL}, 32768, v{vL}
    """)
    Lloop, Lnod = a.newlabel("L_att"), a.newlabel("L_nodma")
    a.raw(".p2align 3")
    a.label(Lloop)
    Lw0, Lw1 = a.newlabel("L_w"), a.newlabel("L_w")
    a(f"""
    s_cmp_eq_u32 s{sCnt}, 7
    s_cbranch_scc1 {Lw0}
    s_waitcnt vmcnt(4) lgkmcnt(0)
    s_branch {Lw1}
    {Lw0}:
    s_waitcnt vmcnt(0) lgkmcnt(0)
    {Lw1}:
    s_barrier
    s_cmp_ge_u32 s{sCnt}, 6
    s_cbranch_scc1 {Lnod}
    """)
    dma(f"s{sSlot}")
    a.label(Lnod)
    for t in (2, 3, 4, 5):
        step(t)
    a(f"""
    s_add_u32 s{sSlot}, s{sSlot}, 32768
    s_cmp_eq_u32 s{sSlot}, 98304
    s_cselect_b32 s{sSlot}, 0, s{sSlot}
    s_cmp_eq_u32 s{sSlot}, 65536
    s_cselect_b32 s34, 0xffff0000, s51
    s_add_u32 s{sCnt}, s{sCnt}, 1
    v_add_u32 v{vL}, s34, v{vL}
    s_cmp_lt_u32 s{sCnt}, 8
    s_cbranch_scc1 {Lloop}
    """)
    a.c("---- tail")
    step(2, rd=False)
    step(3, qk=False, rd=False)
    a("s_nop 1")
    PV(3, 1)
    a.c("---- combine the two kv halves; slot 0 is free")
    LB, LJ, Lslow, Lst = a.newlabel("L_halfB"), a.newlabel("L_join"), a.newlabel("L_slow"), a.newlabel("L_store")
    a(f"""
    s_mul_i32 s34, s{S_WV}, 2304
    s_xor_b32 s35, s{S_WV}, 4
    s_mul_i32 s35, s35, 2304
    v_add_u32 v{vT}, s34, v{vL16}
    v_add_u32 v{vT+1}, s35, v{vL16}
    v_lshl_add_u32 v{vT+2}, v1, 2, s34
    v_or_b32 v{vT+3}, 32, v1
    v_lshl_add_u32 v{vT+4}, v{vT+3}, 2, s35
    v_lshl_add_u32 v{vT+3}, v{vT+3}, 2, s34
    s_lshl_b32 s34, s53, 15
    s_lshl_b32 s35, s{S_HEAD}, 11
    s_add_u32 s54, s34, s35
    s_lshl_b32 s34, s{sHalf}, 10
    s_add_u32 s54, s54, s34
    s_add_u32 s54, s54, {WS_O}
    s_cmp_lg_u32 s{sHalf}, 0
    s_cbranch_scc1 {LB}
    ds_write_b128 v{vT}, {vr(vO+8,4)}
    ds_write_b128 v{vT}, {vr(vO+12,4)} offset:1024
    ds_write_b32 v{vT+2}, v{vO+12} offset:2048
    s_branch {LJ}
    {LB}:
    ds_write_b128 v{vT}, {vr(vO,4)}
    ds_write_b128 v{vT}, {vr(vO+4,4)} offset:1024
    ds_write_b32 v{vT+2}, v{vO+12} offset:2048
    s_nop 1
    """)
    for r in range(8):
        a(f"v_mov_b32 v{vO+r}, v{vO+8+r}")
    a(f"""
    {LJ}:
    s_waitcnt lgkmcnt(0)
    s_barrier
    ds_read_b32 v{vX+8}, v{vT+3} offset:2048
    ds_read_b32 v{vX+9}, v{vT+4} offset:2048
    ds_read_b128 {vr(vX,4)}, v{vT+1}
    ds_read_b128 {vr(vX+4,4)}, v{vT+1} offset:1024
    s_waitcnt lgkmcnt(2)
    v_add_f32 v{vX+8}, v{vX+8}, v{vX+9}
    v_rcp_f32 v{vX+9}, v{vX+8}
    v_mov_b32 v{vX+10}, 0
    s_mov_b32 s34, 0x2b800000
    s_mov_b32 s35, 0x53800000
    s_waitcnt lgkmcnt(0)
    """)
    for r in range(8):
        a(f"v_add_f32 v{vO+r}, v{vO+r}, v{vX+r}")
    for r in range(8):
        a(f"v_fmac_f32 v{vX+10}, 0, v{vO+r}")
    a(f"""
    v_add_f32 v{vX+10}, v{vX+10}, v{vX+8}        ; l, or NaN when any O is inf/NaN
    v_med3_f32 v{vX+11}, v{vX+10}, s34, s34
    v_cmp_nle_f32 vcc, s34, v{vX+10}
    v_cmp_nge_f32 s[58:59], s35, v{vX+10}
    s_nop 0
    s_or_b64 vcc, vcc, s[58:59]
    s_cbranch_scc1 {Lslow}
    {Lst}:
    """.replace(f"v_med3_f32 v{vX+11}, v{vX+10}, s34, s34\n", ""))
    for r in range(8):
        a(f"v_mul_f32 v{vO+r}, v{vO+r}, v{vX+9}")
    for t in range(4):
        a(f"v_cvt_pk_bf16_f32 v{vX+t}, v{vO+2*t}, v{vO+2*t+1}")
    Lnz = a.newlabel("L_nz")
    a(f"""
    s_cmp_eq_u32 s{sHalf}, 0
    s_cbranch_scc1 {Lnz}
    s_mov_b32 exec_lo, 0
    v_mov_b32 v{vX+2}, 0
    v_mov_b32 v{vX+3}, 0
    s_mov_b32 exec_lo, -1
    {Lnz}:
    buffer_store_dwordx4 {vr(vX,4)}, v{vL16}, s[{S_WS}:{S_WS+3}], s54 offen
    """)
    def slow():
        a.label(Lslow)
        L1, L2, Lh = a.newlabel("L_s1"), a.newlabel("L_s2"), a.newlabel("L_sh")
        a(f"""
        s_mov_b32 exec_lo, 0
        v_mov_b32 v{vQ+6}, 0
        v_mov_b32 v{vQ+7}, 0
        s_mov_b32 exec_lo, -1
        v_mov_b32 v{vT}, 0xff800000
        s_lshl_b32 s{sG}, s{S_HEAD}, 18
        s_mov_b32 s{sCnt}, 0
        {L1}:
        buffer_load_dwordx4 {vr(vK[0],4)}, v{vL16}, s[{S_WS}:{S_WS+3}], s{sG} offen
        buffer_load_dwordx4 {vr(vK[0]+4,4)}, v{vL16}, s[{S_WS}:{S_WS+3}], s{sG} offen offset:1024
        s_waitcnt vmcnt(0)
        """)
        QK(0, 0); QK(0, 1)
        a("s_nop 15")
        for r in range(0, 16, 2):
            a(f"v_max3_f32 v{vT}, v{vT}, v{vS[0]+r}, v{vS[0]+r+1}")
        a(f"""
        s_add_u32 s{sG}, s{sG}, 4096
        s_add_u32 s{sCnt}, s{sCnt}, 1
        s_cmp_lt_u32 s{sCnt}, 64
        s_cbranch_scc1 {L1}
        v_mov_b32 v{vT+1}, v{vT}
        s_nop 1
        v_permlane32_swap_b32 v{vT}, v{vT+1}
        s_nop 1
        v_max_f32 v{vT}, v{vT}, v{vT+1}
        v_and_b32 v{vT+1}, 0xffff0000, v{vT}       ; hi
        v_sub_f32 v{vT+2}, v{vT}, v{vT+1}
        v_and_b32 v{vT+3}, 0xffff0000, v{vT+2}     ; mid
        v_sub_f32 v{vT+2}, v{vT+2}, v{vT+3}        ; lo
        s_mov_b32 exec_lo, 0
        v_cvt_pk_bf16_f32 v{vQ+6}, -v{vT+1}, -v{vT+3}
        v_cvt_pk_bf16_f32 v{vQ+7}, -v{vT+2}, 0
        s_mov_b32 exec_lo, -1
        """)
        for r in range(16):
            a(f"v_mov_b32 v{vO+r}, 0")
        a(f"""
        s_lshl_b32 s{sG}, s{S_HEAD}, 18
        s_mov_b32 s{sCnt}, 0
        {L2}:
        buffer_load_dwordx4 {vr(vK[0],4)}, v{vL16}, s[{S_WS}:{S_WS+3}], s{sG} offen
        buffer_load_dwordx4 {vr(vK[0]+4,4)}, v{vL16}, s[{S_WS}:{S_WS+3}], s{sG} offen offset:1024
        buffer_load_dwordx4 {vr(vV[0],4)}, v{vL16}, s[{S_WS}:{S_WS+3}], s{sG} offen offset:2048
        buffer_load_dwordx4 {vr(vV[0]+4,4)}, v{vL16}, s[{S_WS}:{S_WS+3}], s{sG} offen offset:3072
        s_waitcnt vmcnt(0)
        """)
        QK(0, 0); QK(0, 1)
        a("s_nop 15")
        E(0, 0, 16)
        a("s_nop 1")
        PV(0, 0); PV(0, 1)
        a(f"""
        s_nop 7
        s_add_u32 s{sG}, s{sG}, 4096
        s_add_u32 s{sCnt}, s{sCnt}, 1
        s_cmp_lt_u32 s{sCnt}, 64
        s_cbranch_scc1 {L2}
        s_nop 15
        v_mov_b32 v{vX+8}, v{vO+12}
        v_mov_b32 v{vX+9}, v{vO+12}
        s_nop 1
        v_permlane32_swap_b32 v{vX+8}, v{vX+9}
        s_nop 1
        v_rcp_f32 v{vX+9}, v{vX+9}
        s_cmp_eq_u32 s{sHalf}, 0
        s_cbranch_scc1 {Lh}
        """)
        for r in range(8):
            a(f"v_mov_b32 v{vO+r}, v{vO+8+r}")
        a(f"""
        {Lh}:
        s_nop 1
        s_branch {Lst}
        """)
    return slow

def phase3(a, done):
    vG, vOg = 4, 5
    vA = 8
    vT = 12
    vAcc = 20
    vX = 36
    vOf = 44
    vWf = 76
    sM, sCol = 46, 47
    a.c("---- phase 3")
    a(f"""
    s_cmp_ge_u32 s{S_HEAD}, 14
    s_cbranch_scc1 {done}
    v_lshrrev_b32 v{vT}, 3, v1            ; r
    v_and_b32 v{vT+1}, 7, v1              ; pos
    v_and_b32 v{vT+2}, 6, v{vT}           ; ((row>>1)&3)*2
    v_xor_b32 v{vT+2}, v{vT+2}, v{vT+1}
    v_lshlrev_b32 v{vT+2}, 4, v{vT+2}
    s_lshl_b32 s34, s{S_WV}, 3
    v_add_u32 v{vT}, s34, v{vT}
    v_mul_u32_u24 v{vG}, 896, v{vT}
    v_add_u32 v{vG}, v{vG}, v{vT+2}
    s_lshr_b32 s{sCol}, s{S_HEAD}, 1
    s_lshl_b32 s{sCol}, s{sCol}, 7
    s_lshl_b32 s{sM}, s{S_WV}, 10
    v_lshrrev_b32 v{vT}, 4, v1
    v_and_b32 v{vT+1}, 15, v1
    v_lshlrev_b32 v{vOg}, 9, v{vT}
    v_lshl_add_u32 v{vOg}, v{vT+1}, 4, v{vOg}
    s_and_b32 s34, s{S_WV}, 1
    s_lshl_b32 s48, s34, 8
    s_lshl_b32 s34, s{S_QB}, 2
    s_and_b32 s35, s{S_HEAD}, 1
    s_lshl_b32 s35, s35, 1
    s_add_u32 s34, s34, s35
    s_bfe_u32 s35, s{S_WV}, 0x10001
    s_add_u32 s34, s34, s35               ; qtile
    s_lshl_b32 s34, s34, 15
    s_add_u32 s48, s48, s34
    s_lshr_b32 s49, s{S_WV}, 2            ; kh
    s_lshl_b32 s34, s49, 14
    s_add_u32 s48, s48, s34
    s_add_u32 s48, s48, {WS_O}
    """)
    prologue_wait(a)
    for it in range(8):
        Lsk = None
        if it == 7:
            Lsk = a.newlabel("L_wskip")
            a(f"s_cmp_lg_u32 s{S_WV}, 0")
            a(f"s_cbranch_scc1 {Lsk}")
        a(f"""
        s_add_u32 m0, s{sM}, {it*8192}
        s_add_u32 s34, s{sCol}, {it*64*896}
        buffer_load_dwordx4 v{vG}, s[{S_WO}:{S_WO+3}], s34 offen lds
        """)
        if Lsk: a.label(Lsk)
    for hh in range(8):
        a(f"s_add_u32 s34, s48, {hh*2048}")
        a(f"buffer_load_dwordx4 {vr(vOf+4*hh,4)}, v{vOg}, s[{S_WS}:{S_WS+3}], s34 offen")
    a(f"""
    v_bfe_u32 v{vT+2}, v1, 2, 2           ; r'
    v_bfe_u32 v{vT+3}, v1, 4, 1           ; g&1
    v_lshrrev_b32 v{vT+4}, 5, v1          ; g>>1
    v_lshl_add_u32 v{vT+5}, v{vT+3}, 2, v{vT+2}
    v_lshl_add_u32 v{vT+5}, v{vT+4}, 4, v{vT+5}   ; row
    v_lshrrev_b32 v{vT+6}, 1, v{vT+2}
    v_lshl_add_u32 v{vT+6}, v{vT+3}, 1, v{vT+6}   ; s0
    v_lshlrev_b32 v{vT+6}, 5, v{vT+6}
    v_lshl_add_u32 v{vT+5}, v{vT+5}, 7, v{vT+6}
    v_and_b32 v{vT+6}, 3, v1
    v_lshl_add_u32 v{vT+5}, v{vT+6}, 3, v{vT+5}
    s_mul_i32 s34, s49, {8*28*128}
    v_add_u32 v{vA}, s34, v{vT+5}
    v_xor_b32 v{vA+1}, 32, v{vA}
    v_xor_b32 v{vA+2}, 64, v{vA}
    v_xor_b32 v{vA+3}, 0x60, v{vA}
    s_waitcnt vmcnt(8)
    s_barrier
    """)
    def wr(hh, c0, c1):
        for ct in range(c0, c1):
            for u in range(2):
                a(f"ds_read_b64_tr_b16 {vr(vWf+16*hh+4*ct+2*u,2)}, v{vA+(ct^(2*(hh&1)))} offset:{(28*hh+8*u)*128}")
    wr(0, 0, 4)
    for hh in range(8):
        if hh < 7:
            wr(hh + 1, 0, 2)
            a(f"s_waitcnt vmcnt({7-hh}) lgkmcnt(4)")
        else:
            a("s_waitcnt vmcnt(0) lgkmcnt(0)")
        for ct in range(4):
            C = "0" if hh == 0 else vr(vAcc + 4 * ct, 4)
            a(f"v_mfma_f32_16x16x32_bf16 {vr(vAcc+4*ct,4)}, {vr(vWf+16*hh+4*ct,4)}, {vr(vOf+4*hh,4)}, {C}")
        if hh < 7:
            wr(hh + 1, 2, 4)
    XB3 = 59392
    LB, LJ = a.newlabel("L_p3B"), a.newlabel("L_p3J")
    a(f"""
    s_lshl_b32 s34, s{S_WV}, 11
    s_xor_b32 s35, s34, 8192
    v_lshlrev_b32 v{vT+2}, 4, v1
    v_add_u32 v{vT+3}, s35, v{vT+2}
    v_add_u32 v{vT+2}, s34, v{vT+2}
    s_lshl_b32 s34, s{S_QB}, 7
    s_and_b32 s35, s{S_HEAD}, 1
    s_lshl_b32 s35, s35, 6
    s_add_u32 s34, s34, s35
    s_and_b32 s35, s{S_WV}, 3
    s_lshl_b32 s35, s35, 4
    s_add_u32 s34, s34, s35
    s_mul_i32 s34, s34, 896
    s_add_u32 s34, s34, s{sCol}
    s_lshl_b32 s35, s49, 6
    s_add_u32 s50, s34, s35
    v_mul_u32_u24 v{vT+4}, 896, v{vT+1}
    v_lshl_add_u32 v{vT+4}, v{vT}, 3, v{vT+4}
    s_cmp_lg_u32 s49, 0
    s_cbranch_scc1 {LB}
    ds_write_b128 v{vT+2}, {vr(vAcc+8,4)} offset:{XB3}
    ds_write_b128 v{vT+2}, {vr(vAcc+12,4)} offset:{XB3+1024}
    s_branch {LJ}
    {LB}:
    ds_write_b128 v{vT+2}, {vr(vAcc,4)} offset:{XB3}
    ds_write_b128 v{vT+2}, {vr(vAcc+4,4)} offset:{XB3+1024}
    s_nop 1
    """)
    for r in range(8):
        a(f"v_mov_b32 v{vAcc+r}, v{vAcc+8+r}")
    a(f"""
    {LJ}:
    s_waitcnt lgkmcnt(0)
    s_barrier
    ds_read_b128 {vr(vX,4)}, v{vT+3} offset:{XB3}
    ds_read_b128 {vr(vX+4,4)}, v{vT+3} offset:{XB3+1024}
    s_waitcnt lgkmcnt(0)
    """)
    for r in range(8):
        a(f"v_add_f32 v{vAcc+r}, v{vAcc+r}, v{vX+r}")
    for t in range(4):
        a(f"v_cvt_pk_bf16_f32 v{vX+t}, v{vAcc+2*t}, v{vAcc+2*t+1}")
    a(f"""
    buffer_store_dwordx2 {vr(vX,2)}, v{vT+4}, s[{S_OUT}:{S_OUT+3}], s50 offen
    buffer_store_dwordx2 {vr(vX+2,2)}, v{vT+4}, s[{S_OUT}:{S_OUT+3}], s50 offen offset:32
    """)

def kernel_begin(a, name):
    a.raw(f".globl {name}\n.p2align 8\n.type {name},@function\n{name}:")

HEADER = open("standalone__softmax_full_mha__prompt.s.ref").read().split("; Override launch")[0]

def main(out):
    a = Asm()
    a.raw(HEADER.rstrip("\n"))
    a.raw("; @launch kernel=qkv_kernel grid=(256,1,1) block=(512,1,1) lds=163840")
    a.raw("; @launch kernel=att_kernel grid=(256,1,1) block=(512,1,1) lds=98304")
    a.raw("; @launch kernel=proj_kernel grid=(256,1,1) block=(512,1,1) lds=75776")
    a.raw('.amdgcn_target "amdgcn-amd-amdhsa--gfx950"\n.text')
    kernel_begin(a, "qkv_kernel")
    prologue(a, "L_done1")
    phase1(a, True)
    a.label("L_done1"); a("s_endpgm")
    kernel_begin(a, "att_kernel")
    prologue(a, "L_done2")
    slow = phase2(a, True)
    a.label("L_done2"); a("s_endpgm")
    slow()
    kernel_begin(a, "proj_kernel")
    prologue(a, "L_done3")
    phase3(a, "L_done3")
    a.label("L_done3"); a("s_endpgm")
    a.raw('.section .rodata,"a"')
    for n, v in (("qkv_kernel", 104), ("att_kernel", 136), ("proj_kernel", 204)):
        a.raw(".p2align 6")
        a.raw(kernel_desc(n, v).rstrip("\n"))
    open(out, "w").write(a.text())

if __name__ == "__main__":
    main(sys.argv[1] if len(sys.argv) > 1 else "standalone__softmax_full_mha__prompt.s")
```

```python
import sys, struct, math
from asmlib import *

WS_KV = 0
WS_Q = 0x400000
WS_O = 0x800000
WS_F1 = 0xa00000
WS_F2 = 0xa01000
WS_ST = 0xc00000
WS_BYTES = 0xd00000
XB, WB, WOB, OUTB = 1835008, 1204224, 401408, 1835008
QSCALE = struct.unpack("<I", struct.pack("<f", math.log2(math.e) / math.sqrt(28.0)))[0]
SPIN_MAX = 1 << 18

S_X, S_W, S_WS, S_WO, S_OUT, S_DBG = 8, 12, 16, 20, 24, 4
S_QB, S_JG, S_JL, S_WV, S_HEAD, S_ROT = 28, 29, 30, 31, 32, 33
S_TILE, S_HALF, S_T = 53, 60, 61
SC = "sc1"
OPT = set()
STAMPS = False
NAME = "standalone__softmax_full_mha__prompt_kernel"

def stamp(a, i):
    if STAMPS:
        a(f"s_memtime s[{64+2*i}:{65+2*i}]")

def build():
    a = Asm()
    HEADER = open("standalone__softmax_full_mha__prompt.s.ref").read().split("; Override launch")[0]
    a.raw(HEADER.rstrip("\n"))
    a.raw("; @launch grid=(256,1,1) block=(512,1,1) lds=163840")
    a.raw('.amdgcn_target "amdgcn-amd-amdhsa--gfx950"\n.text')
    a.raw(f".globl {NAME}\n.p2align 8\n.type {NAME},@function\n{NAME}:")
    if STAMPS:
        a("s_memrealtime s[98:99]")
        a("s_memtime s[100:101]")
    done = "L_done"
    SCKV = '' if 'plainkv' in OPT else ('sc0 sc1' if 'sc01kv' in OPT else ('nt' if 'ntkv' in OPT else SC))
    SLEEP = [int(o[5:]) for o in OPT if o.startswith('sleep')]
    SLP = f's_sleep {SLEEP[0]}' if SLEEP else 's_nop 0'
    vXg, vWg = 2, 3
    vWa = 4
    vZ = 7
    vXa = 8
    vT = 16
    vAcc = 32
    vD = 64
    vAd = 76
    vN = 80
    vWf = 128
    vXf = 144
    sC, sXo, sWo, sCol, sM, sXbase = 46, 47, 48, 49, 50, 51
    S_TH, S_C = 52, 55
    Lpoll = a.newlabel("L_sync1")
    a(f"""
    s_cmp_ge_u32 s2, 256
    s_cbranch_scc1 {done}
    s_load_dwordx4 s[36:39], s[0:1], 0
    s_load_dwordx4 s[40:43], s[0:1], 16
    s_load_dwordx4 s[{S_DBG}:{S_DBG+3}], s[0:1], 32
    s_memrealtime s[62:63]
    v_lshrrev_b32 v{vT}, 6, v0
    v_and_b32 v1, 63, v0
    s_and_b32 s34, s2, 3                  ; tg
    s_bfe_u32 s35, s2, 0x30003            ; r5 & 7
    v_readfirstlane_b32 s{S_WV}, v{vT}
    s_lshl_b32 s{S_TH}, s34, 3
    s_add_u32 s{S_TH}, s{S_TH}, s35
    s_lshr_b32 s{S_C}, s2, 6              ; cl
    s_lshl_b32 s{S_ROT}, s{S_C}, 1
    s_add_u32 s{S_ROT}, s{S_ROT}, s35
    s_cmp_ge_u32 s{S_ROT}, 7
    s_cselect_b32 s35, 7, 0
    s_sub_u32 s{sC}, s{S_ROT}, s35
    s_and_b32 s35, s2, 4
    s_add_u32 s{S_C}, s{S_C}, s35
    s_mov_b32 s{S_X+2}, {XB}
    s_mov_b32 s{S_X+3}, 0x00020000
    s_mov_b32 s{S_W+2}, {WB}
    s_mov_b32 s{S_W+3}, 0x00020000
    v_lshrrev_b32 v{vT+2}, 3, v0          ; 8w + r
    v_and_b32 v{vT+1}, 7, v1              ; pos
    v_bfe_u32 v{vT+3}, v0, 4, 3           ; swz = ((8w+r)>>1)&7
    v_xor_b32 v{vT+3}, v{vT+3}, v{vT+1}
    v_mul_u32_u24 v{vXg}, 896, v{vT+2}
    v_lshl_add_u32 v{vXg}, v{vT+3}, 4, v{vXg}
    v_lshrrev_b32 v{vT+3}, 2, v1
    v_and_b32 v{vT+3}, 4, v{vT+3}         ; ((r>>1)&1)*4
    v_xor_b32 v{vT+3}, v{vT+3}, v{vT+1}
    v_mul_u32_u24 v{vWg}, 2688, v{vT+2}
    v_lshl_add_u32 v{vWg}, v{vT+3}, 4, v{vWg}
    s_mul_i32 s{sXbase}, s{S_TH}, 57344
    s_lshl_b32 s{sCol}, s{S_C}, 7
    s_lshl_b32 s{sM}, s{S_WV}, 10
    s_waitcnt lgkmcnt(0)
    s_mov_b32 s{S_X}, s36
    s_mov_b32 s{S_X+1}, s37
    s_mov_b32 s{S_W}, s38
    s_mov_b32 s{S_W+1}, s39
    """)
    NSLOT = 4
    def issue_chunk(i):
        sl = (i % NSLOT) * 32768
        a(f"""
        s_lshl_b32 s{sXo}, s{sC}, 7
        s_add_u32 s{sXo}, s{sXo}, s{sXbase}
        s_add_u32 m0, s{sM}, {sl}
        s_mul_i32 s{sWo}, s{sC}, 172032
        buffer_load_dwordx4 v{vXg}, s[{S_X}:{S_X+3}], s{sXo} offen lds
        s_add_u32 m0, s{sM}, {sl+8192}
        s_add_u32 s{sWo}, s{sWo}, s{sCol}
        buffer_load_dwordx4 v{vWg}, s[{S_W}:{S_W+3}], s{sWo} offen lds
        s_add_u32 m0, s{sM}, {sl+16384-896}
        s_add_u32 s{sC}, s{sC}, 1
        buffer_load_dwordx4 v{vWg}, s[{S_W}:{S_W+3}], s{sWo} offen offset:896 lds
        s_add_u32 m0, s{sM}, {sl+24576-1792}
        s_cmp_eq_u32 s{sC}, 7
        buffer_load_dwordx4 v{vWg}, s[{S_W}:{S_W+3}], s{sWo} offen offset:1792 lds
        s_cselect_b32 s{sC}, 0, s{sC}
        """)
    Lsp1, Lsp2, Lnn = a.newlabel("L_sp"), a.newlabel("L_sp"), a.newlabel("L_nonon")
    stamp(a, 0)
    a(f"""
    s_cmp_eq_u32 s{S_C}, 7
    s_cbranch_scc1 {Lsp1}
    """)
    issue_chunk(0)
    a(f"""
    {Lsp1}:
    s_mov_b32 s{S_WS}, s{S_DBG+2}
    s_mov_b32 s{S_WS+1}, s{S_DBG+3}
    s_mov_b32 s{S_WS+2}, {WS_BYTES}
    s_mov_b32 s{S_WS+3}, 0x00020000
    s_mov_b32 s{S_DBG+2}, 256
    s_mov_b32 s{S_DBG+3}, 0x00020000
    v_mov_b32 v{vZ}, 0
    v_mov_b32 v{vN}, 0
    s_or_b32 s34, s2, s{S_WV}
    s_cmp_lg_u32 s34, 0
    s_cbranch_scc1 {Lnn}
    s_or_b32 s62, s62, 1
    v_mov_b32 v{vN}, s62
    v_mov_b32 v{vN+1}, s63
    s_mov_b64 exec, 1
    buffer_store_dwordx2 {vr(vN,2)}, v{vZ}, s[{S_DBG}:{S_DBG+3}], 0 offen {SC}
    s_mov_b64 exec, -1
    {Lnn}:
    s_cmp_eq_u32 s{S_C}, 7
    s_cbranch_scc1 {Lsp2}
    """)
    issue_chunk(1)
    a(f"""
    {Lsp2}:
    s_mov_b32 s{S_WO}, s40
    s_mov_b32 s{S_WO+1}, s41
    s_mov_b32 s{S_OUT}, s42
    s_mov_b32 s{S_OUT+1}, s43
    s_mov_b32 s{S_WO+2}, {WOB}
    s_mov_b32 s{S_WO+3}, 0x00020000
    s_mov_b32 s{S_OUT+2}, {OUTB}
    s_mov_b32 s{S_OUT+3}, 0x00020000
    s_and_b32 s34, s2, 3
    s_lshl_b32 s34, s34, 2
    s_bfe_u32 s35, s2, 0x20003
    s_add_u32 s{S_QB}, s34, s35
    s_and_b32 s34, s2, 4
    s_lshl_b32 s34, s34, 1
    s_lshr_b32 s35, s2, 5
    s_add_u32 s{S_HEAD}, s34, s35
    s_and_b32 s{S_T}, s{S_WV}, 3
    s_lshr_b32 s{S_HALF}, s{S_WV}, 2
    s_lshl_b32 s34, s{S_QB}, 2
    s_add_u32 s{S_TILE}, s34, s{S_T}
    s_cmp_eq_u32 s{S_C}, 7
    s_cbranch_scc1 {Lpoll}
    v_and_b32 v{vT}, 31, v1               ; tok
    v_lshrrev_b32 v{vT+1}, 5, v1          ; h
    v_bfe_u32 v{vT+2}, v1, 1, 3
    v_xor_b32 v{vT+2}, v{vT+2}, v{vT+1}   ; h ^ swz
    v_lshlrev_b32 v{vT+3}, 7, v{vT}       ; tok*128
    v_lshl_add_u32 v{vT+2}, v{vT+2}, 4, v{vT+3}
    s_and_b32 s34, s{S_WV}, s{S_HALF}
    s_lshl_b32 s34, s34, 12
    v_add_u32 v{vXa}, s34, v{vT+2}
    v_xor_b32 v{vXa+1}, 32, v{vXa}
    v_xor_b32 v{vXa+2}, 64, v{vXa}
    v_xor_b32 v{vXa+3}, 0x60, v{vXa}
    v_add_u32 v{vXa+4}, 0x10000, v{vXa}
    v_add_u32 v{vXa+5}, 0x10000, v{vXa+1}
    v_add_u32 v{vXa+6}, 0x10000, v{vXa+2}
    v_add_u32 v{vXa+7}, 0x10000, v{vXa+3}
    v_and_b32 v{vT+2}, 3, v1              ; c'
    v_lshrrev_b32 v{vT+3}, 1, v{vT+2}
    v_lshlrev_b32 v{vT+4}, 1, v{vT+2}
    v_and_b32 v{vT+4}, 2, v{vT+4}
    v_or_b32 v{vT+3}, v{vT+3}, v{vT+4}    ; bitswap2(c')
    v_bfe_u32 v{vT+4}, v1, 4, 1           ; a
    v_bfe_u32 v{vT+5}, v1, 2, 2           ; r'
    v_lshl_add_u32 v{vT+6}, v{vT+1}, 3, v{vT+5}   ; 8h + r'
    s_lshr_b32 s34, s{S_WV}, s{S_HALF}
    s_and_b32 s56, s34, 1
    s_lshr_b32 s35, s{S_WV}, 1
    s_min_u32 s35, s35, 2                 ; type 0=Q 1=K 2=V
    s_cmp_eq_u32 s{S_HALF}, 0
    s_cselect_b64 vcc, -1, 0
    s_lshl_b32 s34, s56, 3
    v_cndmask_b32 v{vT+7}, v{vT+2}, v{vT+3}, vcc  ; cg
    v_lshl_add_u32 v{vT+7}, v{vT+4}, 2, v{vT+7}
    v_add_u32 v{vT+7}, s34, v{vT+7}
    v_lshlrev_b32 v{vT+8}, 2, v{vT+5}
    v_and_b32 v{vT+8}, 8, v{vT+8}
    v_xor_b32 v{vT+7}, v{vT+7}, v{vT+8}
    v_lshlrev_b32 v{vT+7}, 3, v{vT+7}
    v_lshl_add_u32 v{vWa}, v{vT+6}, 7, v{vT+7}
    s_lshl_b32 s35, s35, 13
    s_add_u32 s35, s35, 8192
    v_add_u32 v{vWa}, s35, v{vWa}
    v_add_u32 v{vWa+1}, 0x10000, v{vWa}
    s_lshl_b32 s34, s{S_C}, 1
    s_add_u32 s56, s56, s34               ; Ctg (0..13)
    s_lshl_b32 s54, s{S_TH}, 13
    s_lshl_b32 s34, s{S_C}, 5
    s_add_u32 s34, s34, s{S_TH}
    s_lshl_b32 s34, s34, 3
    s_add_u32 s57, s34, {WS_F1}
    """)
    def kloop(qk):
        for i in range(7):
            a(f"s_waitcnt vmcnt({4 if i < 6 else 1})")
            a("s_barrier")
            stamp(a, 1 + i) if i in (0, 6) else None
            if i + 2 <= 6:
                issue_chunk(i + 2)
            elif i == 5:
                a(f"buffer_load_dwordx2 {vr(vN,2)}, v{vZ}, s[{S_DBG}:{S_DBG+3}], 0 offen {SC}")
            sl = i % NSLOT
            hi = sl >= 2
            so = (sl % 2) * 32768
            nt = 2 if qk else 1
            per = 2 + nt
            def rds(sub):
                for u in range(2):
                    a(f"ds_read_b64_tr_b16 {vr(vWf+4*sub+2*u,2)}, v{vWa+hi} offset:{so+sub*2048+u*512}")
                for tt in range(nt):
                    a(f"ds_read_b128 {vr(vXf+16*tt+4*sub,4)}, v{vXa+sub+4*hi} offset:{so+tt*4096}")
            for sub in range(3): rds(sub)
            for sub in range(4):
                if sub == 0:
                    a(f"s_waitcnt lgkmcnt({2*per})")
                else:
                    a(f"s_waitcnt lgkmcnt({per*(3-sub)})")
                for tt in range(nt):
                    X, W = vXf + 16 * tt + 4 * sub, vWf + 4 * sub
                    A, B = (W, X) if qk else (X, W)
                    C = "0" if (i == 0 and sub == 0) else vr(vAcc + 16 * tt, 16)
                    a(f"v_mfma_f32_32x32x16_bf16 {vr(vAcc+16*tt,16)}, {vr(A,4)}, {vr(B,4)}, {C}")
                if sub == 0: rds(3)
    Lv, Lq = a.newlabel("L_vtype"), a.newlabel("L_pub")
    a(f"""
    s_cmp_lg_u32 s{S_HALF}, 0
    s_cbranch_scc1 {Lv}
    """)
    a.c("---- Q / K waves")
    a(f"""
    v_and_b32 v{vT+2}, 0x13, v{vT}
    v_lshlrev_b32 v{vT+3}, 1, v{vT}
    v_and_b32 v{vT+3}, 8, v{vT+3}
    v_lshrrev_b32 v{vT+4}, 1, v{vT}
    v_and_b32 v{vT+4}, 4, v{vT+4}
    v_or3_b32 v{vT+2}, v{vT+2}, v{vT+3}, v{vT+4}  ; swap23(tok)
    s_cmp_lt_u32 s{S_WV}, 2
    s_cselect_b64 vcc, -1, 0
    s_cselect_b32 s58, {WS_Q}, 0
    s_cselect_b32 s59, {QSCALE:#x}, 1.0
    s_cselect_b32 s34, 0, 0x3f803f80
    s_cselect_b32 s35, 0, 0x3f80
    v_cndmask_b32 v{vT+2}, v{vT+2}, v{vT}, vcc
    v_lshlrev_b32 v{vT+2}, 4, v{vT+2}
    v_mov_b32 v{vD+10}, s34
    v_mov_b32 v{vD+11}, s35
    s_add_u32 s54, s54, s58
    s_mov_b32 s{S_ROT}, s59
    s_lshl_b32 s34, s56, 2
    """)
    for aa in range(2):
        a(f"""
        v_add_u32 v{vT+3}, s34, v{vT+1}
        v_add_u32 v{vT+3}, {2*aa}, v{vT+3}       ; U
        v_mul_u32_u24 v{vT+4}, 37, v{vT+3}
        v_lshrrev_b32 v{vT+4}, 8, v{vT+4}        ; e
        v_mul_u32_u24 v{vT+5}, 7, v{vT+4}
        v_sub_u32 v{vAd+2+aa}, v{vT+3}, v{vT+5}  ; u7
        v_lshl_add_u32 v{vAd+aa}, v{vT+4}, 19, v{vT+2}
        v_lshrrev_b32 v{vT+5}, 2, v{vAd+2+aa}
        v_lshl_add_u32 v{vAd+aa}, v{vT+5}, 18, v{vAd+aa}
        v_and_b32 v{vT+5}, 3, v{vAd+2+aa}
        v_lshl_add_u32 v{vAd+aa}, v{vT+5}, 9, v{vAd+aa}
        """)
    kloop(True)
    a("s_nop 9")
    for tt in range(2):
        a(f"s_add_u32 s56, s54, 262144")
        for r in range(16):
            a(f"v_mul_f32 v{vAcc+16*tt+r}, s{S_ROT}, v{vAcc+16*tt+r}")
        for t in range(8):
            a(f"v_cvt_pk_bf16_f32 v{vD+t}, v{vAcc+16*tt+2*t}, v{vAcc+16*tt+2*t+1}")
        for aa in range(2):
            Ls = a.newlabel("L_ks")
            a(f"""
            v_cmp_eq_u32 vcc, 3, v{vAd+2+aa}
            v_mov_b32 v{vD+8}, v{vD+4*aa+2}
            v_mov_b32 v{vD+9}, v{vD+4*aa+3}
            v_cndmask_b32 v{vD+4*aa+2}, v{vD+4*aa+2}, v{vD+10}, vcc
            v_cndmask_b32 v{vD+4*aa+3}, v{vD+4*aa+3}, v{vD+11}, vcc
            buffer_store_dwordx4 {vr(vD+4*aa,4)}, v{vAd+aa}, s[{S_WS}:{S_WS+3}], s54 offen {SCKV}
            s_and_saveexec_b64 s[58:59], vcc
            s_cbranch_execz {Ls}
            buffer_store_dwordx4 {vr(vD+8,4)}, v{vAd+aa}, s[{S_WS}:{S_WS+3}], s56 offen {SCKV}
            s_nop 1
            {Ls}:
            s_mov_b64 exec, s[58:59]
            """)
        if tt == 0:
            a(f"s_add_u32 s54, s54, 4096")
    a(f"s_branch {Lq}")
    a.label(Lv)
    a.c("---- V waves")
    a(f"""
    s_lshl_b32 s34, s56, 5
    v_add_u32 v{vT+2}, s34, v{vT}            ; C
    v_mul_u32_u24 v{vT+3}, 2341, v{vT+2}
    v_lshrrev_b32 v{vT+3}, 16, v{vT+3}       ; head
    v_mul_u32_u24 v{vT+4}, 28, v{vT+3}
    v_sub_u32 v{vAd+2}, v{vT+2}, v{vT+4}     ; d
    v_lshl_add_u32 v{vT+4}, v{vT+1}, 5, v{vAd+2}
    v_lshlrev_b32 v{vT+4}, 4, v{vT+4}
    v_lshl_add_u32 v{vAd}, v{vT+3}, 18, v{vT+4}
    v_cmp_eq_u32 vcc, 0, v{vAd+2}
    v_mov_b32 v{vT+5}, 0x3f803f80
    s_and_b32 s34, s{S_WV}, 1
    s_lshl_b32 s34, s34, 12
    s_add_u32 s54, s54, s34
    v_cndmask_b32 v{vD+8}, 0, v{vT+5}, vcc
    v_cndmask_b32 v{vD+9}, 0, v{vT+5}, vcc
    v_cndmask_b32 v{vD+10}, 0, v{vT+5}, vcc
    v_cndmask_b32 v{vD+11}, 0, v{vT+5}, vcc
    """)
    kloop(False)
    Ls = a.newlabel("L_vs")
    a(f"""
    v_cmp_gt_u32 vcc, 4, v{vAd+2}
    s_nop 10
    """)
    for t in range(8):
        a(f"v_cvt_pk_bf16_f32 v{vD+t}, v{vAcc+2*t}, v{vAcc+2*t+1}")
    a(f"""
    buffer_store_dwordx4 {vr(vD,4)}, v{vAd}, s[{S_WS}:{S_WS+3}], s54 offen offset:2048 {SCKV}
    buffer_store_dwordx4 {vr(vD+4,4)}, v{vAd}, s[{S_WS}:{S_WS+3}], s54 offen offset:3072 {SCKV}
    s_and_saveexec_b64 s[58:59], vcc
    s_cbranch_execz {Ls}
    buffer_store_dwordx4 {vr(vD+8,4)}, v{vAd}, s[{S_WS}:{S_WS+3}], s54 offen offset:{2048+448} {SCKV}
    buffer_store_dwordx4 {vr(vD+8,4)}, v{vAd}, s[{S_WS}:{S_WS+3}], s54 offen offset:{3072+448} {SCKV}
    {Ls}:
    s_mov_b64 exec, s[58:59]
    """)
    a.label(Lq)
    stamp(a, 2)
    a.label(Lpoll)
    vL16, vL, vL2, vIdx = 2, 3, 4, 5
    vO = 82
    vS = [32, 48, 64]
    vK = [128, 136]
    vV = [144, 152, 160, 168]
    vQ = 98
    vX = 106
    vG3 = 122
    sG, sM0 = 46, 47
    Lng, Lnw, Lnf = a.newlabel("L_ngot"), a.newlabel("L_nwait"), a.newlabel("L_nof1")
    Lp, Lpd = a.newlabel("L_poll1"), a.newlabel("L_poll1d")
    a(f"""
    v_lshlrev_b32 v{vL16}, 4, v1
    s_lshl_b32 s34, s{S_HALF}, 14
    v_add_u32 v{vL}, s34, v{vL16}
    v_add_u32 v{vL2}, 0x10000, v{vL}
    v_mov_b32 v{vIdx}, 0xdddddddd
    s_lshl_b32 s34, s{S_HALF}, 5
    s_add_u32 s34, s34, s{S_T}
    s_lshl_b32 s34, s34, 12
    s_lshl_b32 s{sG}, s{S_HEAD}, 18
    s_lshl_b32 s48, s{S_TILE}, 12
    s_add_u32 s48, s48, s{sG}
    s_add_u32 s48, s48, {WS_Q}            ; Q frags
    s_add_u32 s{sG}, s{sG}, s34
    s_lshl_b32 s{sM0}, s{S_WV}, 12
    s_mul_i32 s34, s{S_HEAD}, 28
    s_add_u32 s35, s34, 27
    s_lshr_b32 s34, s34, 6
    s_lshr_b32 s35, s35, 6
    v_mov_b32 v{vT}, s34
    s_mov_b32 exec_lo, 0
    v_mov_b32 v{vT}, s35
    s_mov_b32 exec_lo, -1
    v_and_b32 v{vT+1}, 31, v1
    v_lshl_add_u32 v{vT}, v{vT}, 5, v{vT+1}
    v_lshlrev_b32 v{vT}, 3, v{vT}
    s_mov_b32 s56, {WS_F1}
    s_waitcnt vmcnt(0)
    v_readfirstlane_b32 s34, v{vN}
    s_mov_b32 s35, 0
    s_cmp_lg_u32 s34, 0
    s_cbranch_scc1 {Lng}
    {Lnw}:
    s_sleep 4
    buffer_load_dwordx2 {vr(vN,2)}, v{vZ}, s[{S_DBG}:{S_DBG+3}], 0 offen {SC}
    s_waitcnt vmcnt(0)
    v_readfirstlane_b32 s34, v{vN}
    s_add_u32 s35, s35, 1
    s_cmp_ge_u32 s35, {SPIN_MAX}
    s_cbranch_scc1 {Lng}
    s_cmp_eq_u32 s34, 0
    s_cbranch_scc1 {Lnw}
    {Lng}:
    s_barrier
    """)
    stamp(a, 3)
    a(f"""
    s_cmp_lg_u32 s{S_WV}, 7
    s_cbranch_scc1 {Lnf}
    s_cmp_eq_u32 s{S_C}, 7
    s_cbranch_scc1 {Lnf}
    s_mov_b64 exec, 1
    buffer_store_dwordx2 {vr(vN,2)}, v{vZ}, s[{S_WS}:{S_WS+3}], s57 offen {SC}
    s_mov_b64 exec, -1
    {Lnf}:
    s_mov_b32 s35, 0
    s_cmp_lg_u32 s{S_WV}, 0
    s_cbranch_scc1 {Lpd}
    {Lp}:
    {SLP}
    buffer_load_dwordx2 {vr(vT+2,2)}, v{vT}, s[{S_WS}:{S_WS+3}], s56 offen {SC}
    s_add_u32 s35, s35, 1
    s_waitcnt vmcnt(0)
    v_cmp_ne_u64 vcc, {vr(vT+2,2)}, {vr(vN,2)}
    s_cmp_ge_u32 s35, {SPIN_MAX}
    s_cbranch_scc1 {Lpd}
    s_cmp_lg_u64 vcc, 0
    s_cbranch_scc1 {Lp}
    {Lpd}:
    s_barrier
    """)
    stamp(a, 5)
    a(f"""
    s_mov_b32 m0, s{sM0}
    buffer_load_dwordx4 {vr(vQ,4)}, v{vL16}, s[{S_WS}:{S_WS+3}], s48 offen {SC}
    buffer_load_dwordx4 {vr(vQ+4,4)}, v{vL16}, s[{S_WS}:{S_WS+3}], s48 offen offset:1024 {SC}
    """)
    for st in range(3):
        if st:
            a(f"s_add_u32 m0, s{sM0}, {st*32768}")
            a(f"s_add_u32 s{sG}, s{sG}, 16384")
        for f in range(4):
            a(f"buffer_load_dwordx4 v{vL16}, s[{S_WS}:{S_WS+3}], s{sG} offen offset:{f*1024} {SC} lds")
    a("s_waitcnt vmcnt(8)")
    stamp(a, 6)
    a("s_barrier")
    stamp(a, 8)
    def ldsaddr(u, off):
        slot = (u // 4) % 3
        o = slot * 32768 + (u % 4) * 4096 + off
        return (vL, o) if o < 65536 - 16384 else (vL2, o - 65536)
    def rd(dst, u, off):
        r, o = ldsaddr(u, off)
        a(f"ds_read_b128 {vr(dst,4)}, v{r} offset:{o}")
    def rdK(u, f): rd(vK[u % 2] + 4 * f, u, f * 1024)
    def rdV(u, f): rd(vV[u % 4] + 4 * f, u, 2048 + f * 1024)
    def QK(u, i, K=None):
        C = "0" if i == 0 else vr(vS[u % 3], 16)
        K = vK[u % 2] if K is None else K
        a(f"v_mfma_f32_32x32x16_bf16 {vr(vS[u%3],16)}, {vr(K+4*i,4)}, {vr(vQ+4*i,4)}, {C}")
    def PV(u, i):
        a(f"v_smfmac_f32_32x32x32_bf16 {vr(vO,16)}, {vr(vV[u%4]+4*i,4)}, {vr(vS[u%3]+8*i,8)}, v{vIdx}")
    def E(u, r0, r1):
        for r in range(r0, r1):
            a(f"v_exp_f32 v{vS[u%3]+r}, v{vS[u%3]+r}")
    a(f"""
    ds_read_b128 {vr(vV[2],4)}, v{vL16}
    ds_read_b128 {vr(vV[2]+4,4)}, v{vL16} offset:1024
    """)
    rdK(0, 0); rdK(0, 1); rdK(1, 0); rdK(1, 1); rdV(0, 0); rdV(0, 1); rdV(1, 0); rdV(1, 1)
    a("s_waitcnt lgkmcnt(8)")
    QK(2, 0, vV[2]); QK(2, 1, vV[2])
    for r in range(16):
        a(f"v_mov_b32 v{vO+r}, 0")
    S = vS[2]
    a(f"v_max3_f32 v{vT}, v{S}, v{S+1}, v{S+2}")
    a(f"v_max3_f32 v{vT+1}, v{S+3}, v{S+4}, v{S+5}")
    for r in (6, 10):
        a(f"v_max3_f32 v{vT}, v{vT}, v{S+r}, v{S+r+1}")
        a(f"v_max3_f32 v{vT+1}, v{vT+1}, v{S+r+2}, v{S+r+3}")
    a(f"v_max3_f32 v{vT}, v{vT}, v{S+14}, v{S+15}")
    a(f"""
    v_max_f32 v{vT}, v{vT}, v{vT+1}
    v_mov_b32 v{vT+1}, v{vT}
    s_nop 1
    v_permlane32_swap_b32 v{vT}, v{vT+1}
    v_max_f32 v{vT}, v{vT}, v{vT+1}
    s_mov_b32 exec_lo, 0
    v_cvt_pk_bf16_f32 v{vQ+6}, -v{vT}, 0
    s_mov_b32 exec_lo, -1
    s_waitcnt lgkmcnt(4)
    """)
    QK(0, 0); QK(0, 1)
    rdK(2, 0); rdK(2, 1)
    a.c("wo DMA addresses (phase 3 prefetch)")
    a(f"""
    v_lshrrev_b32 v{vT}, 3, v0            ; 8w + r
    v_lshrrev_b32 v{vT+1}, 3, v1
    v_and_b32 v{vT+1}, 6, v{vT+1}
    v_and_b32 v{vT+2}, 7, v1
    v_xor_b32 v{vT+1}, v{vT+1}, v{vT+2}
    v_mul_u32_u24 v{vG3}, 896, v{vT}
    v_lshl_add_u32 v{vG3}, v{vT+1}, 4, v{vG3}
    s_lshr_b32 s49, s{S_HEAD}, 1
    s_min_u32 s49, s49, 6
    s_lshl_b32 s49, s49, 7
    s_lshl_b32 s50, s{S_WV}, 10
    """)
    stamp(a, 9)
    for t in range(32):
        if t + 1 < 32: QK(t + 1, 0)
        if 1 <= t <= 20 and (t - 1) % 4 == 0:
            st = (t - 1) // 4 + 3
            a(f"s_add_u32 s{sG}, s{sG}, 16384")
        elif 21 <= t <= 28:
            a(f"s_add_u32 s34, s49, {(t-21)*57344}")
        if t + 2 < 32: rdV(t + 2, 0)
        E(t, 0, 4)
        if t + 1 < 32: QK(t + 1, 1)
        if 1 <= t <= 20 and (t - 1) % 4 == 0:
            st = (t - 1) // 4 + 3
            a(f"s_add_u32 m0, s{sM0}, {(st % 3) * 32768}")
        elif 21 <= t <= 28:
            a(f"s_add_u32 m0, s50, {98304 + (t-21)*8192}")
        if t + 2 < 32: rdV(t + 2, 1)
        E(t, 4, 8)
        if t >= 1: PV(t - 1, 1)
        if t % 4 == 1 and t <= 25:
            a("s_waitcnt vmcnt(4) lgkmcnt(0)")
            a("s_barrier")
        if "noprio" not in OPT:
            a(f"s_setprio {3 - ((t - 1) % 4) if t <= 28 else 0}")
        if t + 3 < 32: rdK(t + 3, 0)
        if 1 <= t <= 20:
            a(f"buffer_load_dwordx4 v{vL16}, s[{S_WS}:{S_WS+3}], s{sG} offen offset:{((t-1)%4)*1024} {SC} lds")
        elif 21 <= t <= 28:
            a(f"buffer_load_dwordx4 v{vG3}, s[{S_WO}:{S_WO+3}], s34 offen lds")
        E(t, 8, 12)
        if t == 0:
            a("s_waitcnt lgkmcnt(5)")
        PV(t, 0)
        if t + 3 < 32:
            a("s_waitcnt lgkmcnt(3)")
            rdK(t + 3, 1)
        else:
            a("s_waitcnt lgkmcnt(0)")
        E(t, 12, 16)
    a("s_nop 1")
    PV(31, 1)
    stamp(a, 10)
    a.c("---- combine the two kv halves in slot 0 (stage 6 data is dead)")
    LB, LJ, Lslow, Lst = a.newlabel("L_halfB"), a.newlabel("L_join"), a.newlabel("L_slow"), a.newlabel("L_store")
    a(f"""
    s_mul_i32 s34, s{S_WV}, 2304
    s_xor_b32 s35, s{S_WV}, 4
    s_mul_i32 s35, s35, 2304
    v_add_u32 v{vT}, s34, v{vL16}
    v_add_u32 v{vT+1}, s35, v{vL16}
    v_lshl_add_u32 v{vT+2}, v1, 2, s34
    v_or_b32 v{vT+3}, 32, v1
    v_lshl_add_u32 v{vT+4}, v{vT+3}, 2, s35
    v_lshl_add_u32 v{vT+3}, v{vT+3}, 2, s34
    s_lshl_b32 s34, s{S_TILE}, 15
    s_lshl_b32 s35, s{S_HEAD}, 11
    s_add_u32 s54, s34, s35
    s_lshl_b32 s34, s{S_HALF}, 10
    s_add_u32 s54, s54, s34
    s_add_u32 s54, s54, {WS_O}
    s_lshl_b32 s56, s{S_QB}, 7
    s_add_u32 s56, s56, {WS_F2}
    s_lshl_b32 s57, s{S_HEAD}, 3
    s_add_u32 s57, s57, s56
    s_cmp_lg_u32 s{S_HALF}, 0
    s_cbranch_scc1 {LB}
    ds_write_b128 v{vT}, {vr(vO+8,4)}
    ds_write_b128 v{vT}, {vr(vO+12,4)} offset:1024
    ds_write_b32 v{vT+2}, v{vO+12} offset:2048
    s_branch {LJ}
    {LB}:
    ds_write_b128 v{vT}, {vr(vO,4)}
    ds_write_b128 v{vT}, {vr(vO+4,4)} offset:1024
    ds_write_b32 v{vT+2}, v{vO+12} offset:2048
    s_nop 1
    """)
    for r in range(8):
        a(f"v_mov_b32 v{vO+r}, v{vO+8+r}")
    a(f"""
    {LJ}:
    s_waitcnt vmcnt(0) lgkmcnt(0)
    s_barrier
    ds_read_b32 v{vX+8}, v{vT+3} offset:2048
    ds_read_b32 v{vX+9}, v{vT+4} offset:2048
    ds_read_b128 {vr(vX,4)}, v{vT+1}
    ds_read_b128 {vr(vX+4,4)}, v{vT+1} offset:1024
    s_waitcnt lgkmcnt(2)
    v_add_f32 v{vX+8}, v{vX+8}, v{vX+9}
    v_rcp_f32 v{vX+9}, v{vX+8}
    s_mov_b32 s34, 0x2b800000
    s_mov_b32 s35, 0x53800000
    s_waitcnt lgkmcnt(0)
    """)
    for r in range(8):
        a(f"v_add_f32 v{vO+r}, v{vO+r}, v{vX+r}")
    for r in range(8):
        a(f"v_fmac_f32 v{vX+8}, 0, v{vO+r}")
    a(f"""
    v_cmp_nle_f32 vcc, s34, v{vX+8}
    v_cmp_nge_f32 s[58:59], s35, v{vX+8}
    s_nop 0
    s_or_b64 vcc, vcc, s[58:59]
    s_cbranch_scc1 {Lslow}
    {Lst}:
    """)
    for r in range(8):
        a(f"v_mul_f32 v{vO+r}, v{vO+r}, v{vX+9}")
    for t in range(4):
        a(f"v_cvt_pk_bf16_f32 v{vX+t}, v{vO+2*t}, v{vO+2*t+1}")
    Lnz = a.newlabel("L_nz")
    a(f"""
    s_cmp_eq_u32 s{S_HALF}, 0
    s_cbranch_scc1 {Lnz}
    s_mov_b32 exec_lo, 0
    v_mov_b32 v{vX+2}, 0
    v_mov_b32 v{vX+3}, 0
    s_mov_b32 exec_lo, -1
    {Lnz}:
    buffer_store_dwordx4 {vr(vX,4)}, v{vL16}, s[{S_WS}:{S_WS+3}], s54 offen {SC}
    """)
    stamp(a, 11)
    vOg, vPa = 3, 4
    vA = 8
    vAc3 = 32
    vOf = 48
    vWo = 128
    WOB_L = 98304
    Lnf2 = a.newlabel('L_nof2')
    a(f"""
    v_lshrrev_b32 v{vT}, 4, v1            ; g
    v_and_b32 v{vT+1}, 15, v1             ; tok16
    v_bfe_u32 v{vT+2}, v1, 2, 2           ; r'
    v_bfe_u32 v{vT+3}, v1, 4, 1           ; g&1
    v_lshrrev_b32 v{vT+4}, 5, v1          ; g>>1
    v_lshl_add_u32 v{vT+5}, v{vT+3}, 2, v{vT+2}
    v_lshl_add_u32 v{vT+5}, v{vT+4}, 4, v{vT+5}   ; row
    v_lshrrev_b32 v{vT+6}, 1, v{vT+2}
    v_lshl_add_u32 v{vT+6}, v{vT+3}, 1, v{vT+6}   ; s0
    v_lshlrev_b32 v{vT+6}, 5, v{vT+6}
    v_lshl_add_u32 v{vT+5}, v{vT+5}, 7, v{vT+6}
    v_and_b32 v{vT+6}, 3, v1
    v_lshl_add_u32 v{vT+5}, v{vT+6}, 3, v{vT+5}
    s_mul_i32 s34, s{S_HALF}, {8*28*128}
    s_add_u32 s34, s34, {WOB_L}
    v_add_u32 v{vA}, s34, v{vT+5}
    v_xor_b32 v{vA+1}, 32, v{vA}
    v_xor_b32 v{vA+2}, 64, v{vA}
    v_xor_b32 v{vA+3}, 0x60, v{vA}
    """)
    def wr(hh):
        for ct in range(4):
            for u in range(2):
                a(f"ds_read_b64_tr_b16 {vr(vWo+16*hh+4*ct+2*u,2)}, v{vA+(ct^(2*(hh&1)))} offset:{(28*hh+8*u)*128}")
    for hh in range(4):
        wr(hh)
        a("s_waitcnt lgkmcnt(4)")
    a(f"""
    v_lshlrev_b32 v{vOg}, 9, v{vT}
    v_lshl_add_u32 v{vOg}, v{vT+1}, 4, v{vOg}
    v_lshlrev_b32 v{vPa}, 3, v{vT+1}
    s_lshl_b32 s34, s{S_QB}, 2
    s_and_b32 s35, s{S_HEAD}, 1
    s_lshl_b32 s35, s35, 1
    s_add_u32 s34, s34, s35
    s_lshr_b32 s35, s{S_T}, 1
    s_add_u32 s34, s34, s35
    s_lshl_b32 s34, s34, 15
    s_lshl_b32 s35, s{S_HALF}, 14
    s_add_u32 s48, s34, s35
    s_and_b32 s34, s{S_T}, 1
    s_lshl_b32 s34, s34, 8
    s_add_u32 s48, s48, s34
    s_add_u32 s48, s48, {WS_O}
    s_waitcnt vmcnt(0)
    s_barrier
    s_cmp_lg_u32 s{S_WV}, 7
    s_cbranch_scc1 {Lnf2}
    s_mov_b64 exec, 1
    buffer_store_dwordx2 {vr(vN,2)}, v{vZ}, s[{S_WS}:{S_WS+3}], s57 offen {SC}
    s_mov_b64 exec, -1
    {Lnf2}:
    s_cmp_ge_u32 s{S_HEAD}, 14
    s_cbranch_scc1 {"L_fin" if STAMPS else done}
    """)
    stamp(a, 12)
    for hh in range(4, 8):
        wr(hh)
        a("s_waitcnt lgkmcnt(4)")
    Lp, Lpd = a.newlabel("L_poll2"), a.newlabel("L_poll2d")
    a(f"""
    s_mov_b32 s35, 0
    s_cmp_lg_u32 s{S_WV}, 0
    s_cbranch_scc1 {Lpd}
    {Lp}:
    {SLP}
    buffer_load_dwordx2 {vr(vT+2,2)}, v{vPa}, s[{S_WS}:{S_WS+3}], s56 offen {SC}
    s_add_u32 s35, s35, 1
    s_waitcnt vmcnt(0)
    v_cmp_ne_u64 vcc, {vr(vT+2,2)}, {vr(vN,2)}
    s_cmp_ge_u32 s35, {SPIN_MAX}
    s_cbranch_scc1 {Lpd}
    s_cmp_lg_u64 vcc, 0
    s_cbranch_scc1 {Lp}
    {Lpd}:
    s_barrier
    """)
    stamp(a, 13)
    for hh in range(8):
        a(f"s_add_u32 s34, s48, {hh*2048}")
        a(f"buffer_load_dwordx4 {vr(vOf+4*hh,4)}, v{vOg}, s[{S_WS}:{S_WS+3}], s34 offen {SC}")
    XB3 = 32768
    a(f"""
    s_lshl_b32 s34, s{S_WV}, 11
    s_xor_b32 s35, s34, 8192
    v_add_u32 v{vT+3}, s35, v{vL16}
    v_add_u32 v{vT+2}, s34, v{vL16}
    s_lshl_b32 s34, s{S_QB}, 7
    s_and_b32 s35, s{S_HEAD}, 1
    s_lshl_b32 s35, s35, 6
    s_add_u32 s34, s34, s35
    s_lshl_b32 s35, s{S_T}, 4
    s_add_u32 s34, s34, s35
    s_mul_i32 s34, s34, 896
    s_add_u32 s34, s34, s49
    s_lshl_b32 s35, s{S_HALF}, 6
    s_add_u32 s50, s34, s35
    v_mul_u32_u24 v{vT+4}, 896, v{vT+1}
    v_lshl_add_u32 v{vT+4}, v{vT}, 3, v{vT+4}
    """)
    for hh in range(8):
        a(f"s_waitcnt vmcnt({7-hh}) lgkmcnt(0)")
        if hh == 0 and "p3" in OPT: stamp(a, 8)
        for ct in range(4):
            C = "0" if hh == 0 else vr(vAc3 + 4 * ct, 4)
            a(f"v_mfma_f32_16x16x32_bf16 {vr(vAc3+4*ct,4)}, {vr(vWo+16*hh+4*ct,4)}, {vr(vOf+4*hh,4)}, {C}")
    stamp(a, 9) if "p3" in OPT else None
    LB3, LJ3 = a.newlabel("L_p3B"), a.newlabel("L_p3J")
    a(f"""
    s_nop 5
    s_cmp_lg_u32 s{S_HALF}, 0
    s_cbranch_scc1 {LB3}
    ds_write_b128 v{vT+2}, {vr(vAc3+8,4)} offset:{XB3}
    ds_write_b128 v{vT+2}, {vr(vAc3+12,4)} offset:{XB3+1024}
    s_branch {LJ3}
    {LB3}:
    ds_write_b128 v{vT+2}, {vr(vAc3,4)} offset:{XB3}
    ds_write_b128 v{vT+2}, {vr(vAc3+4,4)} offset:{XB3+1024}
    s_nop 1
    """)
    for r in range(8):
        a(f"v_mov_b32 v{vAc3+r}, v{vAc3+8+r}")
    a(f"""
    {LJ3}:
    s_waitcnt lgkmcnt(0)
    s_barrier
    ds_read_b128 {vr(vX,4)}, v{vT+3} offset:{XB3}
    ds_read_b128 {vr(vX+4,4)}, v{vT+3} offset:{XB3+1024}
    s_waitcnt lgkmcnt(0)
    """)
    for r in range(8):
        a(f"v_add_f32 v{vAc3+r}, v{vAc3+r}, v{vX+r}")
    for t in range(4):
        a(f"v_cvt_pk_bf16_f32 v{vX+t}, v{vAc3+2*t}, v{vAc3+2*t+1}")
    a(f"""
    buffer_store_dwordx2 {vr(vX,2)}, v{vT+4}, s[{S_OUT}:{S_OUT+3}], s50 offen
    buffer_store_dwordx2 {vr(vX+2,2)}, v{vT+4}, s[{S_OUT}:{S_OUT+3}], s50 offen offset:32
    """)
    if STAMPS:
        stamp(a, 10) if "p3" in OPT else None
        a("s_waitcnt vmcnt(0)")
        stamp(a, 14)
        a.label("L_fin")
        a("s_memrealtime s[96:97]")
        a("s_waitcnt lgkmcnt(0)")
        for i in range(15):
            a(f"s_sub_u32 s{64+2*i}, s{64+2*i}, s100")
            a(f"v_mov_b32 v{8+i}, s{64+2*i}")
        a("v_mov_b32 v23, 0")
        a("v_mov_b32 v24, s98")
        a("v_mov_b32 v25, s96")
        a("v_mov_b32 v26, 0")
        a("v_mov_b32 v27, 0")
        a(f"""
        s_lshl_b32 s34, s2, 3
        s_add_u32 s34, s34, s{S_WV}
        s_lshl_b32 s34, s34, 7
        s_add_u32 s34, s34, {WS_ST}
        s_mov_b64 exec, 1
        buffer_store_dwordx4 v[8:11], v{vZ}, s[{S_WS}:{S_WS+3}], s34 offen
        buffer_store_dwordx4 v[12:15], v{vZ}, s[{S_WS}:{S_WS+3}], s34 offen offset:16
        buffer_store_dwordx4 v[16:19], v{vZ}, s[{S_WS}:{S_WS+3}], s34 offen offset:32
        buffer_store_dwordx4 v[20:23], v{vZ}, s[{S_WS}:{S_WS+3}], s34 offen offset:48
        buffer_store_dwordx4 v[24:27], v{vZ}, s[{S_WS}:{S_WS+3}], s34 offen offset:64
        """)
    a.label(done)
    a("s_endpgm")
    a.label(Lslow)
    L1, L2, Lh = a.newlabel("L_s1"), a.newlabel("L_s2"), a.newlabel("L_sh")
    sCnt = 48
    a(f"""
    s_mov_b32 exec_lo, 0
    v_mov_b32 v{vQ+6}, 0
    v_mov_b32 v{vQ+7}, 0
    s_mov_b32 exec_lo, -1
    v_mov_b32 v{vT}, 0xff800000
    s_lshl_b32 s{sG}, s{S_HEAD}, 18
    s_mov_b32 s{sCnt}, 0
    {L1}:
    buffer_load_dwordx4 {vr(vK[0],4)}, v{vL16}, s[{S_WS}:{S_WS+3}], s{sG} offen {SC}
    buffer_load_dwordx4 {vr(vK[0]+4,4)}, v{vL16}, s[{S_WS}:{S_WS+3}], s{sG} offen offset:1024 {SC}
    s_waitcnt vmcnt(0)
    """)
    QK(0, 0); QK(0, 1)
    a("s_nop 15")
    for r in range(0, 16, 2):
        a(f"v_max3_f32 v{vT}, v{vT}, v{vS[0]+r}, v{vS[0]+r+1}")
    a(f"""
    s_add_u32 s{sG}, s{sG}, 4096
    s_add_u32 s{sCnt}, s{sCnt}, 1
    s_cmp_lt_u32 s{sCnt}, 64
    s_cbranch_scc1 {L1}
    v_mov_b32 v{vT+1}, v{vT}
    s_nop 1
    v_permlane32_swap_b32 v{vT}, v{vT+1}
    s_nop 1
    v_max_f32 v{vT}, v{vT}, v{vT+1}
    v_and_b32 v{vT+1}, 0xffff0000, v{vT}       ; hi
    v_sub_f32 v{vT+2}, v{vT}, v{vT+1}
    v_and_b32 v{vT+3}, 0xffff0000, v{vT+2}     ; mid
    v_sub_f32 v{vT+2}, v{vT+2}, v{vT+3}        ; lo
    s_mov_b32 exec_lo, 0
    v_cvt_pk_bf16_f32 v{vQ+6}, -v{vT+1}, -v{vT+3}
    v_cvt_pk_bf16_f32 v{vQ+7}, -v{vT+2}, 0
    s_mov_b32 exec_lo, -1
    """)
    for r in range(16):
        a(f"v_mov_b32 v{vO+r}, 0")
    a(f"""
    s_lshl_b32 s{sG}, s{S_HEAD}, 18
    s_mov_b32 s{sCnt}, 0
    {L2}:
    buffer_load_dwordx4 {vr(vK[0],4)}, v{vL16}, s[{S_WS}:{S_WS+3}], s{sG} offen {SC}
    buffer_load_dwordx4 {vr(vK[0]+4,4)}, v{vL16}, s[{S_WS}:{S_WS+3}], s{sG} offen offset:1024 {SC}
    buffer_load_dwordx4 {vr(vV[0],4)}, v{vL16}, s[{S_WS}:{S_WS+3}], s{sG} offen offset:2048 {SC}
    buffer_load_dwordx4 {vr(vV[0]+4,4)}, v{vL16}, s[{S_WS}:{S_WS+3}], s{sG} offen offset:3072 {SC}
    s_waitcnt vmcnt(0)
    """)
    QK(0, 0); QK(0, 1)
    a("s_nop 15")
    E(0, 0, 16)
    a("s_nop 1")
    PV(0, 0); PV(0, 1)
    a(f"""
    s_nop 7
    s_add_u32 s{sG}, s{sG}, 4096
    s_add_u32 s{sCnt}, s{sCnt}, 1
    s_cmp_lt_u32 s{sCnt}, 64
    s_cbranch_scc1 {L2}
    s_nop 15
    v_mov_b32 v{vX+8}, v{vO+12}
    v_mov_b32 v{vX+9}, v{vO+12}
    s_nop 1
    v_permlane32_swap_b32 v{vX+8}, v{vX+9}
    s_nop 1
    v_rcp_f32 v{vX+9}, v{vX+9}
    s_cmp_eq_u32 s{S_HALF}, 0
    s_cbranch_scc1 {Lh}
    """)
    for r in range(8):
        a(f"v_mov_b32 v{vO+r}, v{vO+8+r}")
    a(f"""
    {Lh}:
    s_nop 1
    s_branch {Lst}
    """)
    a.raw('.section .rodata,"a"')
    a.raw(".p2align 6")
    a.raw(kernel_desc(NAME, 256, 102).rstrip("\n"))
    return a.text()

if __name__ == "__main__":
    out = sys.argv[1] if len(sys.argv) > 1 else "standalone__softmax_full_mha__prompt.s"
    OPT.update(sys.argv[2:])
    STAMPS = "stamps" in OPT
    open(out, "w").write(build())
```

```python
import sys, struct, math
from asmlib import *

WS_KV = 0
WS_Q = 0x400000
WS_O = 0x800000
WS_F0 = 0xa00000
WS_F1 = 0xa10000
WS_ST = 0xc00000
WS_BYTES = 0xd00000
OOB = 0x40000000
XB, WB, WOB, OUTB = 1835008, 1204224, 401408, 1835008
QSCALE = struct.unpack("<I", struct.pack("<f", math.log2(math.e) / math.sqrt(28.0)))[0]
SPIN_MAX = 1 << 18

S_X, S_W, S_WS, S_WO, S_OUT, S_DBG = 8, 12, 16, 20, 24, 4
S_QB, S_WV, S_HEAD, S_SCL = 28, 31, 32, 33
S_TH, S_TILE, S_C, S_HALF, S_T = 52, 53, 55, 60, 61
S_M0, S_M1 = 36, 38
S_OA, S_F0A, S_CLR = 40, 41, 42
SC = "sc1"
OPT = set()
STAMPS = False
NAME = "standalone__softmax_full_mha__prompt_kernel"
WS = f"s[{S_WS}:{S_WS+3}]"

def stamp(a, i):
    if STAMPS:
        a(f"s_memtime s[{64+2*i}:{65+2*i}]")

def optint(name, default):
    for o in OPT:
        if o.startswith(name + "="):
            return int(o.split("=")[1])
    return default

def build():
    a = Asm()
    HEADER = open("standalone__softmax_full_mha__prompt.s.ref").read().split("; Override launch")[0]
    a.raw(HEADER.rstrip("\n"))
    a.raw("; @launch grid=(256,1,1) block=(512,1,1) lds=163840")
    a.raw('.amdgcn_target "amdgcn-amd-amdhsa--gfx950"\n.text')
    a.raw(f".globl {NAME}\n.p2align 8\n.type {NAME},@function\n{NAME}:")
    if STAMPS:
        a("s_memrealtime s[98:99]")
        a("s_memtime s[100:101]")
    done = "L_done"
    F0AT = optint("f0at", 5)
    PSC = "sc0 sc1" if "p01" in OPT else ("sc0 sc1 nt" if "p01nt" in OPT else ("sc1 nt" if "p1nt" in OPT else SC))
    FSC = "sc0 sc1" if "f01" in OPT else SC
    vXg, vWg = 2, 3
    vWa = 4
    vF = 6
    vZ = 7
    vXa = 8
    vT = 16
    vAcc = 32
    vD = 64
    vAd = 76
    vN = 80
    vL16 = 123
    vSen = 124
    vP0 = 122
    vWf = 128
    vXf = 144
    sC, sXo, sWo, sCol, sM, sXbase = 46, 47, 48, 49, 50, 51
    Lspare, Lsync = a.newlabel("L_spare"), a.newlabel("L_sync1")
    a(f"""
    s_cmp_ge_u32 s2, 256
    s_cbranch_scc1 {done}
    s_load_dwordx4 s[36:39], s[0:1], 0
    s_load_dwordx4 s[40:43], s[0:1], 16
    s_load_dwordx4 s[{S_DBG}:{S_DBG+3}], s[0:1], 32
    s_memrealtime s[62:63]
    v_lshrrev_b32 v{vT}, 6, v0
    v_and_b32 v1, 63, v0
    s_and_b32 s34, s2, 3                  ; tg
    s_bfe_u32 s35, s2, 0x30003            ; r5 & 7
    v_readfirstlane_b32 s{S_WV}, v{vT}
    s_lshl_b32 s{S_TH}, s34, 3
    s_add_u32 s{S_TH}, s{S_TH}, s35
    s_lshr_b32 s{S_C}, s2, 6              ; cl
    s_lshl_b32 s{sC}, s{S_C}, 1
    s_add_u32 s{sC}, s{sC}, s35
    s_cmp_ge_u32 s{sC}, 7
    s_cselect_b32 s35, 7, 0
    s_sub_u32 s{sC}, s{sC}, s35
    s_and_b32 s35, s2, 4
    s_add_u32 s{S_C}, s{S_C}, s35
    s_mov_b32 s{S_X+2}, {XB}
    s_mov_b32 s{S_X+3}, 0x00020000
    s_mov_b32 s{S_W+2}, {WB}
    s_mov_b32 s{S_W+3}, 0x00020000
    v_lshrrev_b32 v{vT+2}, 3, v0          ; 8w + r
    v_and_b32 v{vT+1}, 7, v1              ; pos
    v_bfe_u32 v{vT+3}, v0, 4, 3           ; swz = ((8w+r)>>1)&7
    v_xor_b32 v{vT+3}, v{vT+3}, v{vT+1}
    v_mul_u32_u24 v{vXg}, 896, v{vT+2}
    v_lshl_add_u32 v{vXg}, v{vT+3}, 4, v{vXg}
    v_lshrrev_b32 v{vT+3}, 2, v1
    v_and_b32 v{vT+3}, 4, v{vT+3}         ; ((r>>1)&1)*4
    v_xor_b32 v{vT+3}, v{vT+3}, v{vT+1}
    v_mul_u32_u24 v{vWg}, 2688, v{vT+2}
    v_lshl_add_u32 v{vWg}, v{vT+3}, 4, v{vWg}
    s_mul_i32 s{sXbase}, s{S_TH}, 57344
    s_lshl_b32 s{sCol}, s{S_C}, 7
    s_lshl_b32 s{sM}, s{S_WV}, 10
    s_waitcnt lgkmcnt(0)
    s_mov_b32 s{S_X}, s36
    s_mov_b32 s{S_X+1}, s37
    s_mov_b32 s{S_W}, s38
    s_mov_b32 s{S_W+1}, s39
    """)
    NSLOT = 4
    def issue_chunk(i):
        sl = (i % NSLOT) * 32768
        a(f"""
        s_lshl_b32 s{sXo}, s{sC}, 7
        s_add_u32 s{sXo}, s{sXo}, s{sXbase}
        s_add_u32 m0, s{sM}, {sl}
        s_mul_i32 s{sWo}, s{sC}, 172032
        buffer_load_dwordx4 v{vXg}, s[{S_X}:{S_X+3}], s{sXo} offen lds
        s_add_u32 m0, s{sM}, {sl+8192}
        s_add_u32 s{sWo}, s{sWo}, s{sCol}
        buffer_load_dwordx4 v{vWg}, s[{S_W}:{S_W+3}], s{sWo} offen lds
        s_add_u32 m0, s{sM}, {sl+16384-896}
        s_add_u32 s{sC}, s{sC}, 1
        buffer_load_dwordx4 v{vWg}, s[{S_W}:{S_W+3}], s{sWo} offen offset:896 lds
        s_add_u32 m0, s{sM}, {sl+24576-1792}
        s_cmp_eq_u32 s{sC}, 7
        buffer_load_dwordx4 v{vWg}, s[{S_W}:{S_W+3}], s{sWo} offen offset:1792 lds
        s_cselect_b32 s{sC}, 0, s{sC}
        """)
    Lsp1, Lsp2, Lnn = a.newlabel("L_sp"), a.newlabel("L_sp"), a.newlabel("L_nonon")
    stamp(a, 0)
    a(f"""
    s_mov_b32 s{S_WS}, s{S_DBG+2}
    s_mov_b32 s{S_WS+1}, s{S_DBG+3}
    s_mov_b32 s{S_DBG+2}, 256
    s_mov_b32 s{S_DBG+3}, 0x00020000
    v_mov_b32 v{vZ}, 0
    s_or_b32 s34, s2, s{S_WV}
    s_cmp_lg_u32 s34, 0
    s_cbranch_scc1 {Lnn}
    s_or_b32 s62, s62, 1
    v_mov_b32 v{vN}, s62
    v_mov_b32 v{vN+1}, s63
    s_mov_b64 exec, 1
    buffer_store_dwordx2 {vr(vN,2)}, v{vZ}, s[{S_DBG}:{S_DBG+3}], 0 offen {SC}
    s_mov_b64 exec, -1
    {Lnn}:
    s_cmp_eq_u32 s{S_C}, 7
    s_cbranch_scc1 {Lsp1}
    """)
    issue_chunk(0)
    issue_chunk(1)
    a(f"""
    {Lsp1}:
    s_mov_b32 s{S_WS+2}, {WS_BYTES}
    s_mov_b32 s{S_WS+3}, 0x00020000
    s_mov_b32 s{S_WO}, s40
    s_mov_b32 s{S_WO+1}, s41
    s_mov_b32 s{S_OUT}, s42
    s_mov_b32 s{S_OUT+1}, s43
    s_mov_b32 s{S_WO+2}, {WOB}
    s_mov_b32 s{S_WO+3}, 0x00020000
    s_mov_b32 s{S_OUT+2}, {OUTB}
    s_mov_b32 s{S_OUT+3}, 0x00020000
    s_bfe_u32 s{S_QB}, s2, 0x40003
    s_and_b32 s34, s2, 7
    s_lshl_b32 s34, s34, 1
    s_lshr_b32 s35, s2, 7
    s_add_u32 s{S_HEAD}, s34, s35         ;          head = 2*(b&7) + (b>>7)
    s_and_b32 s{S_T}, s{S_WV}, 3
    s_lshr_b32 s{S_HALF}, s{S_WV}, 2
    s_lshl_b32 s34, s{S_QB}, 2
    s_add_u32 s{S_TILE}, s34, s{S_T}
    s_lshl_b32 s34, s{S_TILE}, 15
    s_lshl_b32 s35, s{S_HEAD}, 11
    s_add_u32 s{S_OA}, s34, s35
    s_lshl_b32 s34, s{S_HALF}, 10
    s_add_u32 s{S_OA}, s{S_OA}, s34
    s_add_u32 s{S_OA}, s{S_OA}, {WS_O}
    v_lshlrev_b32 v{vL16}, 4, v1
    v_mov_b32 v{vT}, {OOB}
    v_cmp_eq_u32 vcc, 0x1c0, v0
    v_and_b32 v{vT+1}, 7, v1
    v_lshl_add_u32 v{vT+1}, s{S_T}, 3, v{vT+1}
    v_lshlrev_b32 v{vP0}, 7, v{vT+1}
    v_cndmask_b32 v{vF}, v{vT}, v{vZ}, vcc
    s_mov_b32 s{S_F0A}, {WS_F0}
    s_cmp_eq_u32 s{S_C}, 7
    s_cbranch_scc1 {Lspare}
    v_and_b32 v{vT}, 31, v1               ; tok
    v_lshrrev_b32 v{vT+1}, 5, v1          ; h
    s_lshr_b32 s34, s{S_WV}, s{S_HALF}
    s_and_b32 s56, s34, 1
    s_lshl_b32 s34, s{S_C}, 1
    s_add_u32 s58, s56, s34               ; Ctg (0..13)
    s_lshl_b32 s54, s{S_TH}, 13
    s_lshl_b32 s34, s{S_C}, 5
    s_add_u32 s34, s34, s{S_TH}
    s_lshl_b32 s34, s34, 7
    s_add_u32 s57, s34, {WS_F1}
    """)
    NEARLY = 3
    def lds_addr_setup():
        a(f"""
        v_bfe_u32 v{vT+2}, v1, 1, 3
        v_xor_b32 v{vT+2}, v{vT+2}, v{vT+1}   ; h ^ swz
        v_lshlrev_b32 v{vT+3}, 7, v{vT}       ; tok*128
        v_lshl_add_u32 v{vT+2}, v{vT+2}, 4, v{vT+3}
        s_and_b32 s34, s{S_WV}, s{S_HALF}
        s_lshl_b32 s34, s34, 12
        v_add_u32 v{vXa}, s34, v{vT+2}
        v_xor_b32 v{vXa+1}, 32, v{vXa}
        v_xor_b32 v{vXa+2}, 64, v{vXa}
        v_xor_b32 v{vXa+3}, 0x60, v{vXa}
        v_add_u32 v{vXa+4}, 0x10000, v{vXa}
        v_add_u32 v{vXa+5}, 0x10000, v{vXa+1}
        v_add_u32 v{vXa+6}, 0x10000, v{vXa+2}
        v_add_u32 v{vXa+7}, 0x10000, v{vXa+3}
        v_and_b32 v{vT+2}, 3, v1              ; c'
        v_lshrrev_b32 v{vT+3}, 1, v{vT+2}
        v_lshlrev_b32 v{vT+4}, 1, v{vT+2}
        v_and_b32 v{vT+4}, 2, v{vT+4}
        v_or_b32 v{vT+3}, v{vT+3}, v{vT+4}    ; bitswap2(c')
        v_bfe_u32 v{vT+4}, v1, 4, 1           ; a
        v_bfe_u32 v{vT+5}, v1, 2, 2           ; r'
        v_lshl_add_u32 v{vT+6}, v{vT+1}, 3, v{vT+5}   ; 8h + r'
        s_lshr_b32 s35, s{S_WV}, 1
        s_min_u32 s35, s35, 2                 ; type 0=Q 1=K 2=V
        s_cmp_eq_u32 s{S_HALF}, 0
        s_cselect_b64 vcc, -1, 0
        s_lshl_b32 s34, s56, 3
        v_cndmask_b32 v{vT+7}, v{vT+2}, v{vT+3}, vcc  ; cg
        v_lshl_add_u32 v{vT+7}, v{vT+4}, 2, v{vT+7}
        v_add_u32 v{vT+7}, s34, v{vT+7}
        v_lshlrev_b32 v{vT+8}, 2, v{vT+5}
        v_and_b32 v{vT+8}, 8, v{vT+8}
        v_xor_b32 v{vT+7}, v{vT+7}, v{vT+8}
        v_lshlrev_b32 v{vT+7}, 3, v{vT+7}
        v_lshl_add_u32 v{vWa}, v{vT+6}, 7, v{vT+7}
        s_lshl_b32 s35, s35, 13
        s_add_u32 s35, s35, 8192
        v_add_u32 v{vWa}, s35, v{vWa}
        v_add_u32 v{vWa+1}, 0x10000, v{vWa}
        """)
    def nonce_wait():
        Lng, Lnw = a.newlabel("L_ngot"), a.newlabel("L_nwait")
        a(f"""
        v_readfirstlane_b32 s34, v{vN}
        s_mov_b32 s35, 0
        s_cmp_lg_u32 s34, 0
        s_cbranch_scc1 {Lng}
        {Lnw}:
        s_sleep 4
        buffer_load_dwordx2 {vr(vN,2)}, v{vZ}, s[{S_DBG}:{S_DBG+3}], 0 offen {SC}
        s_waitcnt vmcnt(0)
        v_readfirstlane_b32 s34, v{vN}
        s_add_u32 s35, s35, 1
        s_cmp_ge_u32 s35, {SPIN_MAX}
        s_cbranch_scc1 {Lng}
        s_cmp_eq_u32 s34, 0
        s_cbranch_scc1 {Lnw}
        {Lng}:
        """)
    PAT = optint("pat", 4)
    def f0check():
        Lok, Lw = a.newlabel("L_f0ok"), a.newlabel("L_f0w")
        a(f"""
        v_cmp_ne_u64 vcc, {vr(vSen,2)}, {vr(vN,2)}
        v_cmp_eq_u32 s[58:59], 0, v{vN}
        s_mov_b32 s35, 0
        s_or_b64 vcc, vcc, s[58:59]
        s_cbranch_scc0 {Lok}
        {Lw}:
        s_sleep 2
        buffer_load_dwordx2 {vr(vN,2)}, v{vZ}, s[{S_DBG}:{S_DBG+3}], 0 offen {SC}
        buffer_load_dwordx2 {vr(vSen,2)}, v{vP0}, {WS}, s{S_F0A} offen {SC}
        s_add_u32 s35, s35, 1
        s_waitcnt vmcnt(0)
        v_cmp_ne_u64 vcc, {vr(vSen,2)}, {vr(vN,2)}
        v_cmp_eq_u32 s[58:59], 0, v{vN}
        s_cmp_ge_u32 s35, {SPIN_MAX}
        s_cbranch_scc1 {Lok}
        s_or_b64 vcc, vcc, s[58:59]
        s_cbranch_scc1 {Lw}
        {Lok}:
        """)
    def kloop(qk):
        for i in range(7):
            n = 4 if i < 6 else 0
            if i == PAT + 1 and i < 6 and not qk: n += 2
            a(f"s_waitcnt vmcnt({n})")
            if i == 6 and not qk: f0check()
            a("s_barrier")
            stamp(a, 1 + i) if i in (0, 6) else None
            if i == 6 and qk:
                a(f"buffer_load_dwordx2 {vr(vN,2)}, v{vZ}, s[{S_DBG}:{S_DBG+3}], 0 offen {SC}")
            if i == PAT and not qk:
                a(f"buffer_load_dwordx2 {vr(vN,2)}, v{vZ}, s[{S_DBG}:{S_DBG+3}], 0 offen {SC}")
                a(f"buffer_load_dwordx2 {vr(vSen,2)}, v{vP0}, {WS}, s{S_F0A} offen {SC}")
            if i + 2 <= 6:
                issue_chunk(i + 2)
            sl = i % NSLOT
            hi = sl >= 2
            so = (sl % 2) * 32768
            nt = 2 if qk else 1
            per = 2 + nt
            def rds(sub):
                for u in range(2):
                    a(f"ds_read_b64_tr_b16 {vr(vWf+4*sub+2*u,2)}, v{vWa+hi} offset:{so+sub*2048+u*512}")
                for tt in range(nt):
                    a(f"ds_read_b128 {vr(vXf+16*tt+4*sub,4)}, v{vXa+sub+4*hi} offset:{so+tt*4096}")
            for sub in range(3): rds(sub)
            for sub in range(4):
                a(f"s_waitcnt lgkmcnt({2*per if sub == 0 else per*(3-sub)})")
                for tt in range(nt):
                    X, W = vXf + 16 * tt + 4 * sub, vWf + 4 * sub
                    A, B = (W, X) if qk else (X, W)
                    C = "0" if (i == 0 and sub == 0) else vr(vAcc + 16 * tt, 16)
                    a(f"v_mfma_f32_32x32x16_bf16 {vr(vAcc+16*tt,16)}, {vr(A,4)}, {vr(B,4)}, {C}")
                if sub == 0: rds(3)
    Lv = a.newlabel("L_vtype")
    a(f"""
    s_cmp_lg_u32 s{S_HALF}, 0
    s_cbranch_scc1 {Lv}
    """)
    a.c("---- Q / K waves")
    a(f"""
    v_and_b32 v{vT+2}, 0x13, v{vT}
    v_lshlrev_b32 v{vT+3}, 1, v{vT}
    v_and_b32 v{vT+3}, 8, v{vT+3}
    v_lshrrev_b32 v{vT+4}, 1, v{vT}
    v_and_b32 v{vT+4}, 4, v{vT+4}
    v_or3_b32 v{vT+2}, v{vT+2}, v{vT+3}, v{vT+4}  ; swap23(tok)
    s_cmp_lt_u32 s{S_WV}, 2
    s_cselect_b64 vcc, -1, 0
    s_cselect_b32 s{S_CLR}, {WS_Q}, 0
    s_cselect_b32 s{S_SCL}, {QSCALE:#x}, 1.0
    s_cselect_b32 s34, 0, 0x3f803f80
    s_cselect_b32 s35, 0, 0x3f80
    v_cndmask_b32 v{vT+2}, v{vT+2}, v{vT}, vcc
    v_lshlrev_b32 v{vT+2}, 4, v{vT+2}
    v_mov_b32 v{vD+10}, s34
    v_mov_b32 v{vD+11}, s35
    s_add_u32 s54, s54, s{S_CLR}
    s_lshl_b32 s34, s58, 2
    v_mov_b32 v{vT+7}, {OOB}
    """)
    for aa in range(2):
        a(f"""
        v_add_u32 v{vT+3}, s34, v{vT+1}
        v_add_u32 v{vT+3}, {2*aa}, v{vT+3}       ; U
        v_mul_u32_u24 v{vT+4}, 37, v{vT+3}
        v_lshrrev_b32 v{vT+4}, 8, v{vT+4}        ; e
        v_mul_u32_u24 v{vT+5}, 7, v{vT+4}
        v_sub_u32 v{vT+6}, v{vT+3}, v{vT+5}      ; u7
        v_cmp_eq_u32 s[{S_M0+2*aa}:{S_M0+2*aa+1}], 3, v{vT+6}
        v_lshl_add_u32 v{vAd+aa}, v{vT+4}, 19, v{vT+2}
        v_lshrrev_b32 v{vT+5}, 2, v{vT+6}
        v_lshl_add_u32 v{vAd+aa}, v{vT+5}, 18, v{vAd+aa}
        v_and_b32 v{vT+5}, 3, v{vT+6}
        v_lshl_add_u32 v{vAd+aa}, v{vT+5}, 9, v{vAd+aa}
        v_add_u32 v{vT+5}, 0x40000, v{vAd+aa}
        v_cndmask_b32 v{vAd+2+aa}, v{vT+7}, v{vT+5}, s[{S_M0+2*aa}:{S_M0+2*aa+1}]
        """)
    lds_addr_setup()
    kloop(True)
    a("s_mov_b32 s35, 0xfffffffe")
    a("s_nop 8")
    for tt in range(2):
        if tt: a(f"s_add_u32 s54, s54, 4096")
        else: a("s_nop 0")
        for r in range(16):
            a(f"v_mul_f32 v{vAcc+16*tt+r}, s{S_SCL}, v{vAcc+16*tt+r}")
        D = vD if tt == 0 else vWf
        if tt:
            a(f"v_mov_b32 v{D+10}, v{vD+10}")
            a(f"v_mov_b32 v{D+11}, v{vD+11}")
            a(f"v_mov_b32 v{D+14}, v{vD+10}")
            a(f"v_mov_b32 v{D+15}, v{vD+11}")
        for t in range(8):
            a(f"v_cvt_pk_bf16_f32 v{D+t}, v{vAcc+16*tt+2*t}, v{vAcc+16*tt+2*t+1}")
        for t in range(8):
            a(f"v_min_u32 v{D+t}, s35, v{D+t}")
        for aa in range(2):
            X2 = D + 8 if (tt == 0 or aa == 0) else D + 12
            a(f"""
            v_mov_b32 v{X2}, v{D+4*aa+2}
            v_mov_b32 v{X2+1}, v{D+4*aa+3}
            v_cndmask_b32 v{D+4*aa+2}, v{D+4*aa+2}, v{vD+10}, s[{S_M0+2*aa}:{S_M0+2*aa+1}]
            v_cndmask_b32 v{D+4*aa+3}, v{D+4*aa+3}, v{vD+11}, s[{S_M0+2*aa}:{S_M0+2*aa+1}]
            buffer_store_dwordx4 {vr(D+4*aa,4)}, v{vAd+aa}, {WS}, s54 offen {SC}
            buffer_store_dwordx4 {vr(X2,4)}, v{vAd+2+aa}, {WS}, s54 offen {SC}
            """)
            if tt == 0 and aa == 0: a("s_nop 1")
    a(f"s_branch {Lsync}")
    a.label(Lv)
    a.c("---- V waves")
    a(f"""
    s_lshl_b32 s34, s58, 5
    v_add_u32 v{vT+2}, s34, v{vT}            ; C
    v_mul_u32_u24 v{vT+3}, 2341, v{vT+2}
    v_lshrrev_b32 v{vT+3}, 16, v{vT+3}       ; head
    v_mul_u32_u24 v{vT+4}, 28, v{vT+3}
    v_sub_u32 v{vT+6}, v{vT+2}, v{vT+4}      ; d
    v_lshl_add_u32 v{vT+4}, v{vT+1}, 5, v{vT+6}
    v_lshlrev_b32 v{vT+4}, 4, v{vT+4}
    v_lshl_add_u32 v{vAd}, v{vT+3}, 18, v{vT+4}
    v_cmp_eq_u32 vcc, 0, v{vT+6}
    v_mov_b32 v{vT+5}, 0x3f803f80
    s_and_b32 s34, s{S_WV}, 1
    s_lshl_b32 s34, s34, 12
    s_add_u32 s54, s54, s34
    v_cndmask_b32 v{vD+8}, 0, v{vT+5}, vcc
    v_cndmask_b32 v{vD+9}, 0, v{vT+5}, vcc
    v_cndmask_b32 v{vD+10}, 0, v{vT+5}, vcc
    v_cndmask_b32 v{vD+11}, 0, v{vT+5}, vcc
    v_cmp_gt_u32 vcc, 4, v{vT+6}
    v_mov_b32 v{vT+7}, {OOB}
    s_nop 0
    v_cndmask_b32 v{vAd+1}, v{vT+7}, v{vAd}, vcc
    """)
    lds_addr_setup()
    kloop(False)
    a(f"buffer_store_dwordx4 {vr(vD+8,4)}, v{vAd+1}, {WS}, s54 offen offset:{2048+448} {SC}")
    a(f"buffer_store_dwordx4 {vr(vD+8,4)}, v{vAd+1}, {WS}, s54 offen offset:{3072+448} {SC}")
    a("s_mov_b32 s35, 0xfffffffe")
    a("s_nop 8")
    for t in range(8):
        a(f"v_cvt_pk_bf16_f32 v{vD+t}, v{vAcc+2*t}, v{vAcc+2*t+1}")
    for t in range(8):
        a(f"v_min_u32 v{vD+t}, s35, v{vD+t}")
    a(f"""
    buffer_store_dwordx4 {vr(vD,4)}, v{vAd}, {WS}, s54 offen offset:2048 {SC}
    buffer_store_dwordx4 {vr(vD+4,4)}, v{vAd}, {WS}, s54 offen offset:3072 {SC}
    """)
    a.label(Lsync)
    stamp(a, 2)
    vL, vL2, vIdx, vWr = 3, 4, 5, 2
    vO = 82
    vS = [32, 48, 64]
    vK = [128, 136]
    vV = [144, 152, 160, 168]
    vQ = 98
    vX = 106
    vG3 = 228
    vSt = [176, 192, 208]
    vP1 = 224
    sG, sM0 = 46, 47
    a(f"""
    s_lshl_b32 s34, s{S_HALF}, 14
    v_add_u32 v{vL}, s34, v{vL16}
    v_add_u32 v{vL2}, 0x10000, v{vL}
    v_mov_b32 v{vIdx}, 0xdddddddd
    s_lshl_b32 s34, s{S_HALF}, 5
    s_add_u32 s34, s34, s{S_T}
    s_lshl_b32 s34, s34, 12
    s_lshl_b32 s{sG}, s{S_HEAD}, 18
    s_lshl_b32 s48, s{S_TILE}, 12
    s_add_u32 s48, s48, s{sG}
    s_add_u32 s48, s48, {WS_Q}            ; Q frags
    s_add_u32 s{sG}, s{sG}, s34
    s_lshl_b32 s{sM0}, s{S_WV}, 12
    v_add_u32 v{vWr}, s{sM0}, v{vL16}
    s_add_u32 s50, s{sG}, 16384
    s_add_u32 s51, s{sG}, 32768
    s_mul_i32 s34, s{S_HEAD}, 28
    s_add_u32 s35, s34, 27
    s_lshr_b32 s34, s34, 6
    s_lshr_b32 s35, s35, 6
    v_mov_b32 v{vP1}, s34
    s_mov_b32 exec_lo, 0
    v_mov_b32 v{vP1}, s35
    s_mov_b32 exec_lo, -1
    v_and_b32 v{vT+1}, 7, v1
    v_add_u32 v{vT+1}, {NEARLY}, v{vT+1}
    v_min_u32 v{vT+1}, 7, v{vT+1}
    s_lshl_b32 s34, s{S_HALF}, 4
    s_lshr_b32 s35, s{S_T}, 1
    s_add_u32 s34, s34, s35
    v_lshl_add_u32 v{vT+1}, v{vT+1}, 1, s34
    v_lshl_add_u32 v{vP1}, v{vP1}, 5, v{vT+1}
    v_lshlrev_b32 v{vP1}, 7, v{vP1}
    s_mov_b32 s56, {WS_F1}
    s_waitcnt vmcnt(0)
    s_barrier
    """)
    stamp(a, 3)
    def load_tile(dst, soff):
        for f in range(4):
            a(f"buffer_load_dwordx4 {vr(dst+4*f,4)}, v{vL16}, {WS}, {soff} offen offset:{f*1024} {SC}")
    def load_q():
        a(f"buffer_load_dwordx4 {vr(vQ,4)}, v{vL16}, {WS}, s48 offen {SC}")
        a(f"buffer_load_dwordx4 {vr(vQ+4,4)}, v{vL16}, {WS}, s48 offen offset:1024 {SC}")
    def maxchain(regs, t):
        regs = list(regs)
        a(f"v_max3_u32 v{t}, v{regs[0]}, v{regs[1]}, v{regs[2]}")
        rest = regs[3:]
        while len(rest) >= 2:
            a(f"v_max3_u32 v{t}, v{t}, v{rest[0]}, v{rest[1]}")
            rest = rest[2:]
        if rest:
            a(f"v_max_u32 v{t}, v{t}, v{rest[0]}")
    slowpaths = []
    def validate(regs, reload, t):
        Lr, Lb = a.newlabel("L_retry"), a.newlabel("L_back")
        maxchain(regs, t)
        a(f"v_cmp_eq_u32 vcc, -1, v{t}")
        a("s_nop 0")
        a("s_cmp_lg_u64 vcc, 0")
        a(f"s_cbranch_scc1 {Lr}")
        a.label(Lb)
        def emit():
            Ll = a.newlabel("L_rl")
            a.label(Lr)
            a("s_mov_b32 s35, 0")
            a.label(Ll)
            a(f"s_sleep {optint('slr', 2)}")
            reload()
            a("s_add_u32 s35, s35, 1")
            a("s_waitcnt vmcnt(0)")
            maxchain(regs, t)
            a(f"v_cmp_eq_u32 vcc, -1, v{t}")
            a(f"s_cmp_ge_u32 s35, {SPIN_MAX}")
            a(f"s_cbranch_scc1 {Lb}")
            a("s_cmp_lg_u64 vcc, 0")
            a(f"s_cbranch_scc1 {Ll}")
            a(f"s_branch {Lb}")
        slowpaths.append(emit)
    def write_tile(src, slot):
        for f in range(4):
            if slot < 2:
                a(f"ds_write_b128 v{vWr}, {vr(src+4*f,4)} offset:{slot*32768+f*1024}")
            else:
                a(f"ds_write_b128 v{vT+2}, {vr(src+4*f,4)} offset:{f*1024}")
    a(f"buffer_store_dwordx2 {vr(vN,2)}, v{vF}, {WS}, s57 offen {SC}")
    load_q(); load_tile(vSt[0], f"s{sG}")
    a("s_barrier")
    load_tile(vSt[1], "s50")
    a("s_barrier")
    load_tile(vSt[2], "s51")
    for r in range(16):
        a(f"v_mov_b32 v{vO+r}, 0")
    a("s_waitcnt vmcnt(8)")
    stamp(a, 5)
    validate(list(range(vQ, vQ + 8)) + list(range(vSt[0], vSt[0] + 16)), lambda: (load_q(), load_tile(vSt[0], f"s{sG}")), vT)
    write_tile(vSt[0], 0)
    a("s_waitcnt lgkmcnt(0)")
    stamp(a, 6)
    a("s_barrier")
    stamp(a, 8)
    def ldsaddr(u, off):
        slot = (u // 4) % 3
        o = slot * 32768 + (u % 4) * 4096 + off
        return (vL, o) if o < 65536 else (vL2, o - 65536)
    def rd(dst, u, off):
        r, o = ldsaddr(u, off)
        a(f"ds_read_b128 {vr(dst,4)}, v{r} offset:{o}")
    def rdK(u, f): rd(vK[u % 2] + 4 * f, u, f * 1024)
    def rdV(u, f): rd(vV[u % 4] + 4 * f, u, 2048 + f * 1024)
    def QK(u, i, K=None):
        C = "0" if i == 0 else vr(vS[u % 3], 16)
        K = vK[u % 2] if K is None else K
        a(f"v_mfma_f32_32x32x16_bf16 {vr(vS[u%3],16)}, {vr(K+4*i,4)}, {vr(vQ+4*i,4)}, {C}")
    def PV(u, i):
        a(f"v_smfmac_f32_32x32x32_bf16 {vr(vO,16)}, {vr(vV[u%4]+4*i,4)}, {vr(vS[u%3]+8*i,8)}, v{vIdx}")
    def E(u, r0, r1):
        for r in range(r0, r1):
            a(f"v_exp_f32 v{vS[u%3]+r}, v{vS[u%3]+r}")
    a(f"""
    ds_read_b128 {vr(vV[2],4)}, v{vL16}
    ds_read_b128 {vr(vV[2]+4,4)}, v{vL16} offset:1024
    """)
    rdK(0, 0); rdK(0, 1); rdK(1, 0); rdK(1, 1); rdV(0, 0); rdV(0, 1); rdV(1, 0); rdV(1, 1)
    a("s_waitcnt lgkmcnt(8)")
    QK(2, 0, vV[2]); QK(2, 1, vV[2])
    a.c("wo DMA addresses (phase 3 prefetch)")
    a(f"""
    v_lshrrev_b32 v{vT}, 3, v0            ; 8w + r
    v_lshrrev_b32 v{vT+1}, 3, v1
    v_and_b32 v{vT+1}, 6, v{vT+1}
    v_and_b32 v{vT+2}, 7, v1
    v_xor_b32 v{vT+1}, v{vT+1}, v{vT+2}
    v_mul_u32_u24 v{vG3}, 896, v{vT}
    v_lshl_add_u32 v{vG3}, v{vT+1}, 4, v{vG3}
    s_lshr_b32 s49, s2, 5
    s_min_u32 s49, s49, 6
    s_lshl_b32 s49, s49, 7
    s_lshl_b32 s54, s{S_WV}, 10
    v_add_u32 v{vT+2}, 0x10000, v{vWr}
    v_mov_b32 v{vP1+1}, {OOB}
    """)
    S = vS[2]
    a(f"v_max3_f32 v{vT}, v{S}, v{S+1}, v{S+2}")
    a(f"v_max3_f32 v{vT+1}, v{S+3}, v{S+4}, v{S+5}")
    for r in (6, 10):
        a(f"v_max3_f32 v{vT}, v{vT}, v{S+r}, v{S+r+1}")
        a(f"v_max3_f32 v{vT+1}, v{vT+1}, v{S+r+2}, v{S+r+3}")
    a(f"v_max3_f32 v{vT}, v{vT}, v{S+14}, v{S+15}")
    a(f"""
    v_max_f32 v{vT}, v{vT}, v{vT+1}
    v_mov_b32 v{vT+1}, v{vT}
    s_nop 1
    v_permlane32_swap_b32 v{vT}, v{vT+1}
    v_max_f32 v{vT}, v{vT}, v{vT+1}
    s_mov_b32 exec_lo, 0
    v_cvt_pk_bf16_f32 v{vQ+6}, -v{vT}, 0
    s_mov_b32 exec_lo, -1
    s_waitcnt lgkmcnt(4)
    """)
    QK(0, 0); QK(0, 1)
    rdK(2, 0); rdK(2, 1)
    a("s_waitcnt vmcnt(4)")
    validate(range(vSt[1], vSt[1] + 16), lambda: load_tile(vSt[1], "s50"), vT)
    write_tile(vSt[1], 1)
    a(f"buffer_load_dwordx2 {vr(vP1+2,2)}, v{vP1}, {WS}, s56 offen {SC}")
    a(f"s_add_u32 s{sG}, s{sG}, 32768")
    a(f"s_add_u32 s{S_F0A}, s{S_F0A}, 4096")
    stamp(a, 9)
    Lf1r, Lf1b = a.newlabel("L_f1r"), a.newlabel("L_f1b")
    def kvdma(piece):
        a(f"buffer_load_dwordx4 v{vL16}, {WS}, s{sG} offen offset:{piece*1024} {SC} lds")
    for t in range(32):
        newst = (t == 3) or (5 <= t <= 20 and (t - 1) % 4 == 0)
        st = 3 if t == 3 else (t - 1) // 4 + 3
        if t + 1 < 32: QK(t + 1, 0)
        if newst:
            a(f"s_add_u32 s{sG}, s{sG}, 16384")
        elif 21 <= t <= 27:
            a(f"s_add_u32 s34, s49, {(t-21)*57344}")
        if t + 2 < 32: rdV(t + 2, 0)
        E(t, 0, 4)
        if t + 1 < 32: QK(t + 1, 1)
        if newst:
            a(f"s_add_u32 m0, s{sM0}, {(st % 3) * 32768}")
        elif 21 <= t <= 28:
            a(f"s_add_u32 m0, s54, {98304 + (t-21)*8192}")
        if t + 2 < 32: rdV(t + 2, 1)
        E(t, 4, 8)
        if t >= 1: PV(t - 1, 1)
        if t % 4 == 1 and t <= 25:
            a("s_waitcnt lgkmcnt(0)" if t <= 5 else "s_waitcnt vmcnt(4) lgkmcnt(0)")
            a("s_barrier")
        a(f"s_setprio {3 - ((t - 1) % 4) if t <= 28 else 0}")
        if t + 3 < 32: rdK(t + 3, 0)
        if t == 2:
            a("s_waitcnt vmcnt(1)")
            validate(range(vSt[2], vSt[2] + 16), lambda: load_tile(vSt[2], "s51"), vT)
            write_tile(vSt[2], 2)
        elif t == 3:
            a("s_waitcnt vmcnt(0)")
            a(f"v_cmp_ne_u64 vcc, {vr(vP1+2,2)}, {vr(vN,2)}")
            a("s_nop 0")
            a("s_cmp_lg_u64 vcc, 0")
            a(f"s_cbranch_scc1 {Lf1r}")
            a.label(Lf1b)
            kvdma(0); kvdma(1)
        elif t == 4:
            kvdma(2); kvdma(3)
        elif 5 <= t <= 20:
            kvdma((t - 1) % 4)
        elif 21 <= t <= 27:
            a(f"buffer_load_dwordx4 v{vG3}, s[{S_WO}:{S_WO+3}], s34 offen lds")
        elif t == 28:
            a(f"buffer_load_dwordx4 v{vP1+1}, s[{S_WO}:{S_WO+3}], 0 offen lds")
        elif t == 29:
            a(f"buffer_load_dwordx2 {vr(vSen,2)}, v{vP0}, {WS}, s{S_F0A} offen {SC}")
        E(t, 8, 12)
        if t == 0:
            a("s_waitcnt lgkmcnt(3)")
        PV(t, 0)
        if t + 3 < 32:
            a("s_waitcnt lgkmcnt(3)" if t != 2 else "s_waitcnt lgkmcnt(7)")
            rdK(t + 3, 1)
        else:
            a("s_waitcnt lgkmcnt(0)")
        E(t, 12, 16)
    def f1retry():
        Ll = a.newlabel("L_f1l")
        a(f"""
        {Lf1r}:
        s_mov_b32 s35, 0
        {Ll}:
        buffer_load_dwordx2 {vr(vP1+2,2)}, v{vP1}, {WS}, s56 offen {SC}
        s_add_u32 s35, s35, 1
        s_waitcnt vmcnt(0)
        v_cmp_ne_u64 vcc, {vr(vP1+2,2)}, {vr(vN,2)}
        s_cmp_ge_u32 s35, {SPIN_MAX}
        s_cbranch_scc1 {Lf1b}
        s_cmp_lg_u64 vcc, 0
        s_cbranch_scc1 {Ll}
        s_branch {Lf1b}
        """)
    slowpaths.append(f1retry)
    a("s_nop 1")
    PV(31, 1)
    stamp(a, 10)
    a.c("---- combine the two kv halves in slot 0 (stage 6 data is dead)")
    LB, LJ, Lslow, Lst = a.newlabel("L_halfB"), a.newlabel("L_join"), a.newlabel("L_slow"), a.newlabel("L_store")
    a(f"""
    s_mul_i32 s34, s{S_WV}, 2304
    s_xor_b32 s35, s{S_WV}, 4
    s_mul_i32 s35, s35, 2304
    v_add_u32 v{vT}, s34, v{vL16}
    v_add_u32 v{vT+1}, s35, v{vL16}
    v_lshl_add_u32 v{vT+2}, v1, 2, s34
    v_or_b32 v{vT+3}, 32, v1
    v_lshl_add_u32 v{vT+4}, v{vT+3}, 2, s35
    v_lshl_add_u32 v{vT+3}, v{vT+3}, 2, s34
    s_nop 0
    s_cmp_lg_u32 s{S_HALF}, 0
    s_cbranch_scc1 {LB}
    ds_write_b128 v{vT}, {vr(vO+8,4)}
    ds_write_b128 v{vT}, {vr(vO+12,4)} offset:1024
    ds_write_b32 v{vT+2}, v{vO+12} offset:2048
    s_branch {LJ}
    {LB}:
    ds_write_b128 v{vT}, {vr(vO,4)}
    ds_write_b128 v{vT}, {vr(vO+4,4)} offset:1024
    ds_write_b32 v{vT+2}, v{vO+12} offset:2048
    s_nop 1
    """)
    for r in range(8):
        a(f"v_mov_b32 v{vO+r}, v{vO+8+r}")
    a(f"""
    {LJ}:
    s_waitcnt vmcnt(0)
    """)
    f0check()
    a(f"""
    s_waitcnt lgkmcnt(0)
    s_barrier
    ds_read_b32 v{vX+8}, v{vT+3} offset:2048
    ds_read_b32 v{vX+9}, v{vT+4} offset:2048
    ds_read_b128 {vr(vX,4)}, v{vT+1}
    ds_read_b128 {vr(vX+4,4)}, v{vT+1} offset:1024
    s_waitcnt lgkmcnt(2)
    v_add_f32 v{vX+8}, v{vX+8}, v{vX+9}
    v_rcp_f32 v{vX+9}, v{vX+8}
    s_mov_b32 s34, 0x2b800000
    s_mov_b32 s35, 0x53800000
    s_waitcnt lgkmcnt(0)
    """)
    for r in range(8):
        a(f"v_add_f32 v{vO+r}, v{vO+r}, v{vX+r}")
    for r in range(8):
        a(f"v_fmac_f32 v{vX+8}, 0, v{vO+r}")
    a(f"""
    v_cmp_nle_f32 vcc, s34, v{vX+8}
    v_cmp_nge_f32 s[58:59], s35, v{vX+8}
    s_nop 0
    s_or_b64 vcc, vcc, s[58:59]
    s_cbranch_scc1 {Lslow}
    {Lst}:
    s_mov_b32 s35, 0xfffffffe
    """)
    for r in range(8):
        a(f"v_mul_f32 v{vO+r}, v{vO+r}, v{vX+9}")
    for t in range(4):
        a(f"v_cvt_pk_bf16_f32 v{vX+t}, v{vO+2*t}, v{vO+2*t+1}")
    for t in range(4):
        a(f"v_min_u32 v{vX+t}, s35, v{vX+t}")
    Lnz = a.newlabel("L_nz")
    a(f"""
    s_cmp_eq_u32 s{S_HALF}, 0
    s_cbranch_scc1 {Lnz}
    s_mov_b32 exec_lo, 0
    v_mov_b32 v{vX+2}, 0
    v_mov_b32 v{vX+3}, 0
    s_mov_b32 exec_lo, -1
    {Lnz}:
    buffer_store_dwordx4 {vr(vX,4)}, v{vL16}, {WS}, s{S_OA} offen {SC}
    s_cmp_ge_u32 s2, 224
    s_cbranch_scc1 {"L_fin" if STAMPS else done}
    """)
    stamp(a, 11) if 'k1' not in OPT else None
    vOg = 3
    vA = 8
    vAc3 = 32
    vOf = 48
    vWo = 128
    WOB_L = 98304
    a(f"""
    v_lshrrev_b32 v{vT}, 4, v1            ; g
    v_and_b32 v{vT+1}, 15, v1             ; tok16
    v_bfe_u32 v{vT+2}, v1, 2, 2           ; r'
    v_bfe_u32 v{vT+3}, v1, 4, 1           ; g&1
    v_lshrrev_b32 v{vT+4}, 5, v1          ; g>>1
    v_lshl_add_u32 v{vT+5}, v{vT+3}, 2, v{vT+2}
    v_lshl_add_u32 v{vT+5}, v{vT+4}, 4, v{vT+5}   ; row
    v_lshrrev_b32 v{vT+6}, 1, v{vT+2}
    v_lshl_add_u32 v{vT+6}, v{vT+3}, 1, v{vT+6}   ; s0
    v_lshlrev_b32 v{vT+6}, 5, v{vT+6}
    v_lshl_add_u32 v{vT+5}, v{vT+5}, 7, v{vT+6}
    v_and_b32 v{vT+6}, 3, v1
    v_lshl_add_u32 v{vT+5}, v{vT+6}, 3, v{vT+5}
    s_mul_i32 s34, s{S_HALF}, {8*28*128}
    s_add_u32 s34, s34, {WOB_L}
    v_add_u32 v{vA}, s34, v{vT+5}
    v_xor_b32 v{vA+1}, 32, v{vA}
    v_xor_b32 v{vA+2}, 64, v{vA}
    v_xor_b32 v{vA+3}, 0x60, v{vA}
    """)
    def wr(hh):
        for ct in range(4):
            for u in range(2):
                a(f"ds_read_b64_tr_b16 {vr(vWo+16*hh+4*ct+2*u,2)}, v{vA+(ct^(2*(hh&1)))} offset:{(28*hh+8*u)*128}")
    NW1 = optint("nw1", 4)
    for hh in range(NW1):
        wr(hh)
        a("s_waitcnt lgkmcnt(4)")
    XB3 = 32768
    a(f"""
    v_lshlrev_b32 v{vOg}, 9, v{vT}
    v_lshl_add_u32 v{vOg}, v{vT+1}, 4, v{vOg}
    s_and_b32 s34, s2, 7
    s_lshl_b32 s34, s34, 2
    s_bfe_u32 s35, s2, 0x20003
    s_add_u32 s{S_TH}, s34, s35
    s_lshl_b32 s34, s{S_TH}, 1
    s_lshr_b32 s35, s{S_T}, 1
    s_add_u32 s34, s34, s35
    s_lshl_b32 s34, s34, 15
    s_lshl_b32 s35, s{S_HALF}, 14
    s_add_u32 s48, s34, s35
    s_and_b32 s34, s{S_T}, 1
    s_lshl_b32 s34, s34, 8
    s_add_u32 s48, s48, s34
    s_add_u32 s48, s48, {WS_O}
    s_add_u32 s46, s48, 4096
    s_add_u32 s47, s48, 8192
    s_add_u32 s51, s48, 12288
    s_lshl_b32 s34, s{S_WV}, 11
    s_xor_b32 s35, s34, 8192
    v_add_u32 v{vT+3}, s35, v{vL16}
    v_add_u32 v{vT+2}, s34, v{vL16}
    s_lshl_b32 s34, s{S_TH}, 6
    s_lshl_b32 s35, s{S_T}, 4
    s_add_u32 s34, s34, s35
    s_mul_i32 s34, s34, 896
    s_add_u32 s34, s34, s49
    s_lshl_b32 s35, s{S_HALF}, 6
    s_add_u32 s50, s34, s35
    v_mul_u32_u24 v{vT+4}, 896, v{vT+1}
    v_lshl_add_u32 v{vT+4}, v{vT}, 3, v{vT+4}
    s_mov_b32 s35, 0
    s_waitcnt vmcnt(0)
    """)
    stamp(a, 12) if 'k1' not in OPT else None
    def oloads():
        for hh in range(8):
            so = ["s48", "s46", "s47", "s51"][hh // 2]
            a(f"buffer_load_dwordx4 {vr(vOf+4*hh,4)}, v{vOg}, {WS}, {so} offen offset:{(hh%2)*2048} {SC}")
    oloads()
    for hh in range(NW1, 8):
        wr(hh)
        a("s_waitcnt lgkmcnt(4)")
    Lo, Lo2, Lod = a.newlabel("L_o"), a.newlabel("L_o2"), a.newlabel("L_od")
    a(f"s_branch {Lo2}")
    a.label(Lo)
    oloads()
    a.label(Lo2)
    for hh in range(8):
        a(f"s_waitcnt vmcnt({7-hh}) lgkmcnt(0)")
        for ct in range(4):
            C = "0" if hh == 0 else vr(vAc3 + 4 * ct, 4)
            a(f"v_mfma_f32_16x16x32_bf16 {vr(vAc3+4*ct,4)}, {vr(vWo+16*hh+4*ct,4)}, {vr(vOf+4*hh,4)}, {C}")
        o4 = vOf + 4 * hh
        if hh == 0:
            a(f"v_max3_u32 v{vT+5}, v{o4}, v{o4+1}, v{o4+2}")
            a(f"v_max_u32 v{vT+5}, v{vT+5}, v{o4+3}")
        else:
            a(f"v_max3_u32 v{vT+5}, v{vT+5}, v{o4}, v{o4+1}")
            a(f"v_max3_u32 v{vT+5}, v{vT+5}, v{o4+2}, v{o4+3}")
    LB3, LJ3 = a.newlabel("L_p3B"), a.newlabel("L_p3J")
    a(f"""
    v_cmp_eq_u32 vcc, -1, v{vT+5}
    s_add_u32 s35, s35, 1
    s_cmp_ge_u32 s35, {SPIN_MAX}
    s_cbranch_scc1 {Lod}
    s_cmp_lg_u64 vcc, 0
    s_cbranch_scc1 {Lo}
    {Lod}:
    """)
    stamp(a, 13) if 'k1' not in OPT else None
    if STAMPS: a("s_mov_b32 s94, s35")
    a(f"""
    s_cmp_lg_u32 s{S_HALF}, 0
    s_cbranch_scc1 {LB3}
    ds_write_b128 v{vT+2}, {vr(vAc3+8,4)} offset:{XB3}
    ds_write_b128 v{vT+2}, {vr(vAc3+12,4)} offset:{XB3+1024}
    s_branch {LJ3}
    {LB3}:
    ds_write_b128 v{vT+2}, {vr(vAc3,4)} offset:{XB3}
    ds_write_b128 v{vT+2}, {vr(vAc3+4,4)} offset:{XB3+1024}
    s_nop 1
    """)
    for r in range(8):
        a(f"v_mov_b32 v{vAc3+r}, v{vAc3+8+r}")
    a(f"""
    {LJ3}:
    s_waitcnt lgkmcnt(0)
    s_barrier
    ds_read_b128 {vr(vX,4)}, v{vT+3} offset:{XB3}
    ds_read_b128 {vr(vX+4,4)}, v{vT+3} offset:{XB3+1024}
    s_waitcnt lgkmcnt(0)
    """)
    for r in range(8):
        a(f"v_add_f32 v{vAc3+r}, v{vAc3+r}, v{vX+r}")
    for t in range(4):
        a(f"v_cvt_pk_bf16_f32 v{vX+t}, v{vAc3+2*t}, v{vAc3+2*t+1}")
    a(f"""
    buffer_store_dwordx2 {vr(vX,2)}, v{vT+4}, s[{S_OUT}:{S_OUT+3}], s50 offen
    buffer_store_dwordx2 {vr(vX+2,2)}, v{vT+4}, s[{S_OUT}:{S_OUT+3}], s50 offen offset:32
    """)
    if STAMPS:
        stamp(a, 4)
        a("s_waitcnt vmcnt(0)")
        stamp(a, 14)
        a.label("L_fin")
        a("s_memrealtime s[96:97]")
        a("s_waitcnt lgkmcnt(0)")
        for i in range(15):
            a(f"s_sub_u32 s{64+2*i}, s{64+2*i}, s100")
            a(f"v_mov_b32 v{8+i}, s{64+2*i}")
        a("v_mov_b32 v23, s94")
        a("v_mov_b32 v24, s98")
        a("v_mov_b32 v25, s96")
        a("v_mov_b32 v26, 0")
        a("v_mov_b32 v27, 0")
        a(f"""
        s_lshl_b32 s34, s2, 3
        s_add_u32 s34, s34, s{S_WV}
        s_lshl_b32 s34, s34, 7
        s_add_u32 s34, s34, {WS_ST}
        s_mov_b64 exec, 1
        buffer_store_dwordx4 v[8:11], v{vZ}, {WS}, s34 offen
        buffer_store_dwordx4 v[12:15], v{vZ}, {WS}, s34 offen offset:16
        buffer_store_dwordx4 v[16:19], v{vZ}, {WS}, s34 offen offset:32
        buffer_store_dwordx4 v[20:23], v{vZ}, {WS}, s34 offen offset:48
        buffer_store_dwordx4 v[24:27], v{vZ}, {WS}, s34 offen offset:64
        """)
    a.label(done)
    a("s_endpgm")
    a.label(Lspare)
    a(f"""
    v_mov_b32 v{vT}, -1
    v_mov_b32 v{vT+1}, -1
    v_mov_b32 v{vT+2}, -1
    v_mov_b32 v{vT+3}, -1
    s_lshl_b32 s54, s{S_TH}, 17
    s_lshl_b32 s34, s{S_WV}, 14
    s_add_u32 s34, s34, s54
    s_add_u32 s34, s34, {WS_Q}
    """)
    for k in range(4):
        for f in range(2):
            a(f"buffer_store_dwordx4 {vr(vT,4)}, v{vL16}, {WS}, s34 offen offset:{f*1024} {SC}")
        if k < 3: a("s_add_u32 s34, s34, 4096")
    a(f"""
    s_mul_i32 s34, s{S_WV}, {NEARLY*2048}
    s_add_u32 s34, s34, s54
    """)
    for k in range(NEARLY):
        for f in range(2):
            a(f"buffer_store_dwordx4 {vr(vT,4)}, v{vL16}, {WS}, s34 offen offset:{f*1024} {SC}")
        if k < NEARLY - 1: a("s_add_u32 s34, s34, 2048")
    a(f"""
    buffer_load_dwordx2 {vr(vN,2)}, v{vZ}, s[{S_DBG}:{S_DBG+3}], 0 offen {SC}
    s_lshl_b32 s57, s{S_TH}, 7
    s_add_u32 s57, s57, {WS_F0}
    s_waitcnt vmcnt(0)
    """)
    nonce_wait()
    a(f"""
    s_barrier
    buffer_store_dwordx2 {vr(vN,2)}, v{vF}, {WS}, s57 offen {SC}
    s_lshl_b32 s34, s{S_TH}, 16
    s_lshl_b32 s35, s{S_WV}, 13
    s_add_u32 s34, s34, s35
    s_add_u32 s34, s34, {WS_O}
    """)
    for k in range(2):
        for f in range(4):
            a(f"buffer_store_dwordx4 {vr(vT,4)}, v{vL16}, {WS}, s34 offen offset:{f*1024} {SC}")
        if k < 1: a("s_add_u32 s34, s34, 4096")
    a(f"""
    buffer_load_dwordx2 {vr(vSen,2)}, v{vP0}, {WS}, s{S_F0A} offen {SC}
    s_add_u32 s57, s57, 4096
    s_waitcnt vmcnt(0)
    """)
    f0check()
    a(f"s_branch {Lsync}")
    for e in slowpaths: e()
    a.label(Lslow)
    L1, L2, Lh = a.newlabel("L_s1"), a.newlabel("L_s2"), a.newlabel("L_sh")
    sCnt = 48
    a(f"""
    s_mov_b32 exec_lo, 0
    v_mov_b32 v{vQ+6}, 0
    v_mov_b32 v{vQ+7}, 0
    s_mov_b32 exec_lo, -1
    v_mov_b32 v{vT}, 0xff800000
    s_lshl_b32 s{sG}, s{S_HEAD}, 18
    s_mov_b32 s{sCnt}, 0
    {L1}:
    buffer_load_dwordx4 {vr(vK[0],4)}, v{vL16}, {WS}, s{sG} offen {SC}
    buffer_load_dwordx4 {vr(vK[0]+4,4)}, v{vL16}, {WS}, s{sG} offen offset:1024 {SC}
    s_waitcnt vmcnt(0)
    """)
    QK(0, 0); QK(0, 1)
    a("s_nop 15")
    for r in range(0, 16, 2):
        a(f"v_max3_f32 v{vT}, v{vT}, v{vS[0]+r}, v{vS[0]+r+1}")
    a(f"""
    s_add_u32 s{sG}, s{sG}, 4096
    s_add_u32 s{sCnt}, s{sCnt}, 1
    s_cmp_lt_u32 s{sCnt}, 64
    s_cbranch_scc1 {L1}
    v_mov_b32 v{vT+1}, v{vT}
    s_nop 1
    v_permlane32_swap_b32 v{vT}, v{vT+1}
    s_nop 1
    v_max_f32 v{vT}, v{vT}, v{vT+1}
    v_and_b32 v{vT+1}, 0xffff0000, v{vT}       ; hi
    v_sub_f32 v{vT+2}, v{vT}, v{vT+1}
    v_and_b32 v{vT+3}, 0xffff0000, v{vT+2}     ; mid
    v_sub_f32 v{vT+2}, v{vT+2}, v{vT+3}        ; lo
    s_mov_b32 exec_lo, 0
    v_cvt_pk_bf16_f32 v{vQ+6}, -v{vT+1}, -v{vT+3}
    v_cvt_pk_bf16_f32 v{vQ+7}, -v{vT+2}, 0
    s_mov_b32 exec_lo, -1
    """)
    for r in range(16):
        a(f"v_mov_b32 v{vO+r}, 0")
    a(f"""
    s_lshl_b32 s{sG}, s{S_HEAD}, 18
    s_mov_b32 s{sCnt}, 0
    {L2}:
    buffer_load_dwordx4 {vr(vK[0],4)}, v{vL16}, {WS}, s{sG} offen {SC}
    buffer_load_dwordx4 {vr(vK[0]+4,4)}, v{vL16}, {WS}, s{sG} offen offset:1024 {SC}
    buffer_load_dwordx4 {vr(vV[0],4)}, v{vL16}, {WS}, s{sG} offen offset:2048 {SC}
    buffer_load_dwordx4 {vr(vV[0]+4,4)}, v{vL16}, {WS}, s{sG} offen offset:3072 {SC}
    s_waitcnt vmcnt(0)
    """)
    QK(0, 0); QK(0, 1)
    a("s_nop 15")
    E(0, 0, 16)
    a("s_nop 1")
    PV(0, 0); PV(0, 1)
    a(f"""
    s_nop 7
    s_add_u32 s{sG}, s{sG}, 4096
    s_add_u32 s{sCnt}, s{sCnt}, 1
    s_cmp_lt_u32 s{sCnt}, 64
    s_cbranch_scc1 {L2}
    s_nop 15
    v_mov_b32 v{vX+8}, v{vO+12}
    v_mov_b32 v{vX+9}, v{vO+12}
    s_nop 1
    v_permlane32_swap_b32 v{vX+8}, v{vX+9}
    s_nop 1
    v_rcp_f32 v{vX+9}, v{vX+9}
    s_cmp_eq_u32 s{S_HALF}, 0
    s_cbranch_scc1 {Lh}
    """)
    for r in range(8):
        a(f"v_mov_b32 v{vO+r}, v{vO+8+r}")
    a(f"""
    {Lh}:
    s_nop 1
    s_branch {Lst}
    """)
    a.raw('.section .rodata,"a"')
    a.raw(".p2align 6")
    a.raw(kernel_desc(NAME, 256, 102).rstrip("\n"))
    return a.text()

if __name__ == "__main__":
    out = sys.argv[1] if len(sys.argv) > 1 else "standalone__softmax_full_mha__prompt.s"
    OPT.update(sys.argv[2:])
    STAMPS = "stamps" in OPT
    open(out, "w").write(build())
```

```python
import sys, struct, math
from asmlib import *

WS_KV = 0
WS_Q = 0x400000
WS_O = 0x800000
WS_F1 = 0xa00000
WS_F2 = 0xa10000
WS_ST = 0xc00000
WS_BYTES = 0xd00000
XB, WB, WOB, OUTB = 1835008, 1204224, 401408, 1835008
QSCALE = struct.unpack("<I", struct.pack("<f", math.log2(math.e) / math.sqrt(28.0)))[0]
SPIN_MAX = 1 << 18

S_X, S_W, S_WS, S_WO, S_OUT, S_DBG = 8, 12, 16, 20, 24, 4
S_QB, S_JG, S_JL, S_WV, S_HEAD, S_ROT = 28, 29, 30, 31, 32, 33
S_TILE, S_HALF, S_T = 53, 60, 61
SC = "sc1"
OPT = set()
STAMPS = False
NAME = "standalone__softmax_full_mha__prompt_kernel"

def stamp(a, i):
    if STAMPS:
        a(f"s_memtime s[{64+2*i}:{65+2*i}]")

def build():
    a = Asm()
    HEADER = open("standalone__softmax_full_mha__prompt.s.ref").read().split("; Override launch")[0]
    a.raw(HEADER.rstrip("\n"))
    a.raw("; @launch grid=(256,1,1) block=(512,1,1) lds=163840")
    a.raw('.amdgcn_target "amdgcn-amd-amdhsa--gfx950"\n.text')
    a.raw(f".globl {NAME}\n.p2align 8\n.type {NAME},@function\n{NAME}:")
    if STAMPS:
        a("s_memrealtime s[98:99]")
        a("s_memtime s[100:101]")
    done = "L_done"
    SCKV = '' if 'plainkv' in OPT else ('sc0 sc1' if 'sc01kv' in OPT else ('nt' if 'ntkv' in OPT else SC))
    SLEEP = [int(o[5:]) for o in OPT if o.startswith('sleep')]
    SLP = f's_sleep {SLEEP[0]}' if SLEEP else 's_nop 0'
    vXg, vWg = 2, 3
    vWa = 4
    vZ = 7
    vXa = 8
    vT = 16
    vAcc = 32
    vD = 64
    vAd = 76
    vN = 80
    vWf = 128
    vXf = 144
    sC, sXo, sWo, sCol, sM, sXbase = 46, 47, 48, 49, 50, 51
    S_TH, S_C = 52, 55
    Lpoll = a.newlabel("L_sync1")
    ROTX = "s_nop 0"
    if "rot0" in OPT: ROTX = f"s_mov_b32 s{sC}, 0"
    if "rot2" in OPT: ROTX = f"s_and_b32 s{sC}, s{S_ROT}, 1\n    s_lshl_b32 s{sC}, s{sC}, 1"
    if "rot2b" in OPT: ROTX = f"s_and_b32 s{sC}, s{S_ROT}, 1\n    s_mul_i32 s{sC}, s{sC}, 3"
    if "rot4" in OPT: ROTX = f"s_and_b32 s{sC}, s{S_ROT}, 3"
    a(f"""
    s_cmp_ge_u32 s2, 256
    s_cbranch_scc1 {done}
    s_load_dwordx4 s[36:39], s[0:1], 0
    s_load_dwordx4 s[40:43], s[0:1], 16
    s_load_dwordx4 s[{S_DBG}:{S_DBG+3}], s[0:1], 32
    s_memrealtime s[62:63]
    v_lshrrev_b32 v{vT}, 6, v0
    v_and_b32 v1, 63, v0
    s_and_b32 s34, s2, 3                  ; tg
    s_bfe_u32 s35, s2, 0x30003            ; r5 & 7
    v_readfirstlane_b32 s{S_WV}, v{vT}
    s_lshl_b32 s{S_TH}, s34, 3
    s_add_u32 s{S_TH}, s{S_TH}, s35
    s_lshr_b32 s{S_C}, s2, 6              ; cl
    s_lshl_b32 s{S_ROT}, s{S_C}, 1
    s_add_u32 s{S_ROT}, s{S_ROT}, s35
    s_cmp_ge_u32 s{S_ROT}, 7
    s_cselect_b32 s35, 7, 0
    s_sub_u32 s{sC}, s{S_ROT}, s35
    {ROTX}
    s_and_b32 s35, s2, 4
    s_add_u32 s{S_C}, s{S_C}, s35
    s_mov_b32 s{S_X+2}, {XB}
    s_mov_b32 s{S_X+3}, 0x00020000
    s_mov_b32 s{S_W+2}, {WB}
    s_mov_b32 s{S_W+3}, 0x00020000
    v_lshrrev_b32 v{vT+2}, 3, v0          ; 8w + r
    v_and_b32 v{vT+1}, 7, v1              ; pos
    v_bfe_u32 v{vT+3}, v0, 4, 3           ; swz = ((8w+r)>>1)&7
    v_xor_b32 v{vT+3}, v{vT+3}, v{vT+1}
    v_mul_u32_u24 v{vXg}, 896, v{vT+2}
    v_lshl_add_u32 v{vXg}, v{vT+3}, 4, v{vXg}
    v_lshrrev_b32 v{vT+3}, 2, v1
    v_and_b32 v{vT+3}, 4, v{vT+3}         ; ((r>>1)&1)*4
    v_xor_b32 v{vT+3}, v{vT+3}, v{vT+1}
    v_mul_u32_u24 v{vWg}, 2688, v{vT+2}
    v_lshl_add_u32 v{vWg}, v{vT+3}, 4, v{vWg}
    s_mul_i32 s{sXbase}, s{S_TH}, 57344
    s_lshl_b32 s{sCol}, s{S_C}, 7
    s_lshl_b32 s{sM}, s{S_WV}, 10
    s_waitcnt lgkmcnt(0)
    s_mov_b32 s{S_X}, s36
    s_mov_b32 s{S_X+1}, s37
    s_mov_b32 s{S_W}, s38
    s_mov_b32 s{S_W+1}, s39
    """)
    NSLOT = 4
    def issue_chunk(i):
        sl = (i % NSLOT) * 32768
        a(f"""
        s_lshl_b32 s{sXo}, s{sC}, 7
        s_add_u32 s{sXo}, s{sXo}, s{sXbase}
        s_add_u32 m0, s{sM}, {sl}
        s_mul_i32 s{sWo}, s{sC}, 172032
        buffer_load_dwordx4 v{vXg}, s[{S_X}:{S_X+3}], s{sXo} offen lds
        s_add_u32 m0, s{sM}, {sl+8192}
        s_add_u32 s{sWo}, s{sWo}, s{sCol}
        buffer_load_dwordx4 v{vWg}, s[{S_W}:{S_W+3}], s{sWo} offen lds
        s_add_u32 m0, s{sM}, {sl+16384-896}
        s_add_u32 s{sC}, s{sC}, 1
        buffer_load_dwordx4 v{vWg}, s[{S_W}:{S_W+3}], s{sWo} offen offset:896 lds
        s_add_u32 m0, s{sM}, {sl+24576-1792}
        s_cmp_eq_u32 s{sC}, 7
        buffer_load_dwordx4 v{vWg}, s[{S_W}:{S_W+3}], s{sWo} offen offset:1792 lds
        s_cselect_b32 s{sC}, 0, s{sC}
        """)
    Lsp1, Lsp2, Lnn = a.newlabel("L_sp"), a.newlabel("L_sp"), a.newlabel("L_nonon")
    stamp(a, 0)
    a(f"""
    s_cmp_eq_u32 s{S_C}, 7
    s_cbranch_scc1 {Lsp1}
    """)
    issue_chunk(0)
    a(f"""
    {Lsp1}:
    s_mov_b32 s{S_WS}, s{S_DBG+2}
    s_mov_b32 s{S_WS+1}, s{S_DBG+3}
    s_mov_b32 s{S_WS+2}, {WS_BYTES}
    s_mov_b32 s{S_WS+3}, 0x00020000
    s_mov_b32 s{S_DBG+2}, 256
    s_mov_b32 s{S_DBG+3}, 0x00020000
    v_mov_b32 v{vZ}, 0
    v_mov_b32 v{vN}, 0
    s_or_b32 s34, s2, s{S_WV}
    s_cmp_lg_u32 s34, 0
    s_cbranch_scc1 {Lnn}
    s_or_b32 s62, s62, 1
    v_mov_b32 v{vN}, s62
    v_mov_b32 v{vN+1}, s63
    s_mov_b64 exec, 1
    buffer_store_dwordx2 {vr(vN,2)}, v{vZ}, s[{S_DBG}:{S_DBG+3}], 0 offen {SC}
    s_mov_b64 exec, -1
    {Lnn}:
    s_cmp_eq_u32 s{S_C}, 7
    s_cbranch_scc1 {Lsp2}
    """)
    issue_chunk(1)
    a(f"""
    {Lsp2}:
    s_mov_b32 s{S_WO}, s40
    s_mov_b32 s{S_WO+1}, s41
    s_mov_b32 s{S_OUT}, s42
    s_mov_b32 s{S_OUT+1}, s43
    s_mov_b32 s{S_WO+2}, {WOB}
    s_mov_b32 s{S_WO+3}, 0x00020000
    s_mov_b32 s{S_OUT+2}, {OUTB}
    s_mov_b32 s{S_OUT+3}, 0x00020000
    s_and_b32 s34, s2, 3
    s_lshl_b32 s34, s34, 2
    s_bfe_u32 s35, s2, 0x20003
    s_add_u32 s{S_QB}, s34, s35
    s_and_b32 s34, s2, 4
    s_lshl_b32 s34, s34, 1
    s_lshr_b32 s35, s2, 5
    s_add_u32 s{S_HEAD}, s34, s35
    s_and_b32 s{S_T}, s{S_WV}, 3
    s_lshr_b32 s{S_HALF}, s{S_WV}, 2
    s_lshl_b32 s34, s{S_QB}, 2
    s_add_u32 s{S_TILE}, s34, s{S_T}
    s_cmp_eq_u32 s{S_C}, 7
    s_cbranch_scc1 {Lpoll}
    v_and_b32 v{vT}, 31, v1               ; tok
    v_lshrrev_b32 v{vT+1}, 5, v1          ; h
    v_bfe_u32 v{vT+2}, v1, 1, 3
    v_xor_b32 v{vT+2}, v{vT+2}, v{vT+1}   ; h ^ swz
    v_lshlrev_b32 v{vT+3}, 7, v{vT}       ; tok*128
    v_lshl_add_u32 v{vT+2}, v{vT+2}, 4, v{vT+3}
    s_and_b32 s34, s{S_WV}, s{S_HALF}
    s_lshl_b32 s34, s34, 12
    v_add_u32 v{vXa}, s34, v{vT+2}
    v_xor_b32 v{vXa+1}, 32, v{vXa}
    v_xor_b32 v{vXa+2}, 64, v{vXa}
    v_xor_b32 v{vXa+3}, 0x60, v{vXa}
    v_add_u32 v{vXa+4}, 0x10000, v{vXa}
    v_add_u32 v{vXa+5}, 0x10000, v{vXa+1}
    v_add_u32 v{vXa+6}, 0x10000, v{vXa+2}
    v_add_u32 v{vXa+7}, 0x10000, v{vXa+3}
    v_and_b32 v{vT+2}, 3, v1              ; c'
    v_lshrrev_b32 v{vT+3}, 1, v{vT+2}
    v_lshlrev_b32 v{vT+4}, 1, v{vT+2}
    v_and_b32 v{vT+4}, 2, v{vT+4}
    v_or_b32 v{vT+3}, v{vT+3}, v{vT+4}    ; bitswap2(c')
    v_bfe_u32 v{vT+4}, v1, 4, 1           ; a
    v_bfe_u32 v{vT+5}, v1, 2, 2           ; r'
    v_lshl_add_u32 v{vT+6}, v{vT+1}, 3, v{vT+5}   ; 8h + r'
    s_lshr_b32 s34, s{S_WV}, s{S_HALF}
    s_and_b32 s56, s34, 1
    s_lshr_b32 s35, s{S_WV}, 1
    s_min_u32 s35, s35, 2                 ; type 0=Q 1=K 2=V
    s_cmp_eq_u32 s{S_HALF}, 0
    s_cselect_b64 vcc, -1, 0
    s_lshl_b32 s34, s56, 3
    v_cndmask_b32 v{vT+7}, v{vT+2}, v{vT+3}, vcc  ; cg
    v_lshl_add_u32 v{vT+7}, v{vT+4}, 2, v{vT+7}
    v_add_u32 v{vT+7}, s34, v{vT+7}
    v_lshlrev_b32 v{vT+8}, 2, v{vT+5}
    v_and_b32 v{vT+8}, 8, v{vT+8}
    v_xor_b32 v{vT+7}, v{vT+7}, v{vT+8}
    v_lshlrev_b32 v{vT+7}, 3, v{vT+7}
    v_lshl_add_u32 v{vWa}, v{vT+6}, 7, v{vT+7}
    s_lshl_b32 s35, s35, 13
    s_add_u32 s35, s35, 8192
    v_add_u32 v{vWa}, s35, v{vWa}
    v_add_u32 v{vWa+1}, 0x10000, v{vWa}
    s_lshl_b32 s34, s{S_C}, 1
    s_add_u32 s56, s56, s34               ; Ctg (0..13)
    s_lshl_b32 s54, s{S_TH}, 13
    s_lshl_b32 s34, s{S_C}, 5
    s_add_u32 s34, s34, s{S_TH}
    s_lshl_b32 s34, s34, 7
    s_add_u32 s57, s34, {WS_F1}
    """)
    def kloop(qk):
        for i in range(7):
            a(f"s_waitcnt vmcnt({4 if i < 6 else 1})")
            a("s_barrier")
            stamp(a, 1 + i) if i in (0, 6) else None
            if i + 2 <= 6:
                issue_chunk(i + 2)
            elif i == 5:
                a(f"buffer_load_dwordx2 {vr(vN,2)}, v{vZ}, s[{S_DBG}:{S_DBG+3}], 0 offen {SC}")
            sl = i % NSLOT
            hi = sl >= 2
            so = (sl % 2) * 32768
            nt = 2 if qk else 1
            per = 2 + nt
            def rds(sub):
                for u in range(2):
                    a(f"ds_read_b64_tr_b16 {vr(vWf+4*sub+2*u,2)}, v{vWa+hi} offset:{so+sub*2048+u*512}")
                for tt in range(nt):
                    a(f"ds_read_b128 {vr(vXf+16*tt+4*sub,4)}, v{vXa+sub+4*hi} offset:{so+tt*4096}")
            for sub in range(3): rds(sub)
            for sub in range(4):
                if sub == 0:
                    a(f"s_waitcnt lgkmcnt({2*per})")
                else:
                    a(f"s_waitcnt lgkmcnt({per*(3-sub)})")
                for tt in range(nt):
                    X, W = vXf + 16 * tt + 4 * sub, vWf + 4 * sub
                    A, B = (W, X) if qk else (X, W)
                    C = "0" if (i == 0 and sub == 0) else vr(vAcc + 16 * tt, 16)
                    a(f"v_mfma_f32_32x32x16_bf16 {vr(vAcc+16*tt,16)}, {vr(A,4)}, {vr(B,4)}, {C}")
                if sub == 0: rds(3)
    Lv, Lq = a.newlabel("L_vtype"), a.newlabel("L_pub")
    a(f"""
    s_cmp_lg_u32 s{S_HALF}, 0
    s_cbranch_scc1 {Lv}
    """)
    a.c("---- Q / K waves")
    a(f"""
    v_and_b32 v{vT+2}, 0x13, v{vT}
    v_lshlrev_b32 v{vT+3}, 1, v{vT}
    v_and_b32 v{vT+3}, 8, v{vT+3}
    v_lshrrev_b32 v{vT+4}, 1, v{vT}
    v_and_b32 v{vT+4}, 4, v{vT+4}
    v_or3_b32 v{vT+2}, v{vT+2}, v{vT+3}, v{vT+4}  ; swap23(tok)
    s_cmp_lt_u32 s{S_WV}, 2
    s_cselect_b64 vcc, -1, 0
    s_cselect_b32 s58, {WS_Q}, 0
    s_cselect_b32 s59, {QSCALE:#x}, 1.0
    s_cselect_b32 s34, 0, 0x3f803f80
    s_cselect_b32 s35, 0, 0x3f80
    v_cndmask_b32 v{vT+2}, v{vT+2}, v{vT}, vcc
    v_lshlrev_b32 v{vT+2}, 4, v{vT+2}
    v_mov_b32 v{vD+10}, s34
    v_mov_b32 v{vD+11}, s35
    s_add_u32 s54, s54, s58
    s_mov_b32 s{S_ROT}, s59
    s_lshl_b32 s34, s56, 2
    """)
    for aa in range(2):
        a(f"""
        v_add_u32 v{vT+3}, s34, v{vT+1}
        v_add_u32 v{vT+3}, {2*aa}, v{vT+3}       ; U
        v_mul_u32_u24 v{vT+4}, 37, v{vT+3}
        v_lshrrev_b32 v{vT+4}, 8, v{vT+4}        ; e
        v_mul_u32_u24 v{vT+5}, 7, v{vT+4}
        v_sub_u32 v{vAd+2+aa}, v{vT+3}, v{vT+5}  ; u7
        v_lshl_add_u32 v{vAd+aa}, v{vT+4}, 19, v{vT+2}
        v_lshrrev_b32 v{vT+5}, 2, v{vAd+2+aa}
        v_lshl_add_u32 v{vAd+aa}, v{vT+5}, 18, v{vAd+aa}
        v_and_b32 v{vT+5}, 3, v{vAd+2+aa}
        v_lshl_add_u32 v{vAd+aa}, v{vT+5}, 9, v{vAd+aa}
        """)
    kloop(True)
    a("s_nop 9")
    for tt in range(2):
        a(f"s_add_u32 s56, s54, 262144")
        for r in range(16):
            a(f"v_mul_f32 v{vAcc+16*tt+r}, s{S_ROT}, v{vAcc+16*tt+r}")
        for t in range(8):
            a(f"v_cvt_pk_bf16_f32 v{vD+t}, v{vAcc+16*tt+2*t}, v{vAcc+16*tt+2*t+1}")
        for aa in range(2):
            Ls = a.newlabel("L_ks")
            a(f"""
            v_cmp_eq_u32 vcc, 3, v{vAd+2+aa}
            v_mov_b32 v{vD+8}, v{vD+4*aa+2}
            v_mov_b32 v{vD+9}, v{vD+4*aa+3}
            v_cndmask_b32 v{vD+4*aa+2}, v{vD+4*aa+2}, v{vD+10}, vcc
            v_cndmask_b32 v{vD+4*aa+3}, v{vD+4*aa+3}, v{vD+11}, vcc
            buffer_store_dwordx4 {vr(vD+4*aa,4)}, v{vAd+aa}, s[{S_WS}:{S_WS+3}], s54 offen {SCKV}
            s_and_saveexec_b64 s[58:59], vcc
            s_cbranch_execz {Ls}
            buffer_store_dwordx4 {vr(vD+8,4)}, v{vAd+aa}, s[{S_WS}:{S_WS+3}], s56 offen {SCKV}
            s_nop 1
            {Ls}:
            s_mov_b64 exec, s[58:59]
            """)
        if tt == 0:
            a(f"s_add_u32 s54, s54, 4096")
    a(f"s_branch {Lq}")
    a.label(Lv)
    a.c("---- V waves")
    a(f"""
    s_lshl_b32 s34, s56, 5
    v_add_u32 v{vT+2}, s34, v{vT}            ; C
    v_mul_u32_u24 v{vT+3}, 2341, v{vT+2}
    v_lshrrev_b32 v{vT+3}, 16, v{vT+3}       ; head
    v_mul_u32_u24 v{vT+4}, 28, v{vT+3}
    v_sub_u32 v{vAd+2}, v{vT+2}, v{vT+4}     ; d
    v_lshl_add_u32 v{vT+4}, v{vT+1}, 5, v{vAd+2}
    v_lshlrev_b32 v{vT+4}, 4, v{vT+4}
    v_lshl_add_u32 v{vAd}, v{vT+3}, 18, v{vT+4}
    v_cmp_eq_u32 vcc, 0, v{vAd+2}
    v_mov_b32 v{vT+5}, 0x3f803f80
    s_and_b32 s34, s{S_WV}, 1
    s_lshl_b32 s34, s34, 12
    s_add_u32 s54, s54, s34
    v_cndmask_b32 v{vD+8}, 0, v{vT+5}, vcc
    v_cndmask_b32 v{vD+9}, 0, v{vT+5}, vcc
    v_cndmask_b32 v{vD+10}, 0, v{vT+5}, vcc
    v_cndmask_b32 v{vD+11}, 0, v{vT+5}, vcc
    """)
    kloop(False)
    Ls = a.newlabel("L_vs")
    a(f"""
    v_cmp_gt_u32 vcc, 4, v{vAd+2}
    s_nop 10
    """)
    for t in range(8):
        a(f"v_cvt_pk_bf16_f32 v{vD+t}, v{vAcc+2*t}, v{vAcc+2*t+1}")
    a(f"""
    buffer_store_dwordx4 {vr(vD,4)}, v{vAd}, s[{S_WS}:{S_WS+3}], s54 offen offset:2048 {SCKV}
    buffer_store_dwordx4 {vr(vD+4,4)}, v{vAd}, s[{S_WS}:{S_WS+3}], s54 offen offset:3072 {SCKV}
    s_and_saveexec_b64 s[58:59], vcc
    s_cbranch_execz {Ls}
    buffer_store_dwordx4 {vr(vD+8,4)}, v{vAd}, s[{S_WS}:{S_WS+3}], s54 offen offset:{2048+448} {SCKV}
    buffer_store_dwordx4 {vr(vD+8,4)}, v{vAd}, s[{S_WS}:{S_WS+3}], s54 offen offset:{3072+448} {SCKV}
    {Ls}:
    s_mov_b64 exec, s[58:59]
    """)
    a.label(Lq)
    stamp(a, 2)
    stamp(a, 4)
    a.label(Lpoll)
    vL16, vL, vL2, vIdx = 2, 3, 4, 5
    vO = 82
    vS = [32, 48, 64]
    vK = [128, 136]
    vV = [144, 152, 160, 168]
    vQ = 98
    vX = 106
    vG3 = 122
    sG, sM0 = 46, 47
    Lng, Lnw, Lnf = a.newlabel("L_ngot"), a.newlabel("L_nwait"), a.newlabel("L_nof1")
    Lp, Lpd = a.newlabel("L_poll1"), a.newlabel("L_poll1d")
    a(f"""
    v_lshlrev_b32 v{vL16}, 4, v1
    s_lshl_b32 s34, s{S_HALF}, 14
    v_add_u32 v{vL}, s34, v{vL16}
    v_add_u32 v{vL2}, 0x10000, v{vL}
    v_mov_b32 v{vIdx}, 0xdddddddd
    s_lshl_b32 s34, s{S_HALF}, 5
    s_add_u32 s34, s34, s{S_T}
    s_lshl_b32 s34, s34, 12
    s_lshl_b32 s{sG}, s{S_HEAD}, 18
    s_lshl_b32 s48, s{S_TILE}, 12
    s_add_u32 s48, s48, s{sG}
    s_add_u32 s48, s48, {WS_Q}            ; Q frags
    s_add_u32 s{sG}, s{sG}, s34
    s_lshl_b32 s{sM0}, s{S_WV}, 12
    s_mul_i32 s34, s{S_HEAD}, 28
    s_add_u32 s35, s34, 27
    s_lshr_b32 s34, s34, 6
    s_lshr_b32 s35, s35, 6
    v_mov_b32 v{vT}, s34
    s_mov_b32 exec_lo, 0
    v_mov_b32 v{vT}, s35
    s_mov_b32 exec_lo, -1
    v_and_b32 v{vT+1}, 31, v1
    v_lshl_add_u32 v{vT}, v{vT}, 5, v{vT+1}
    v_lshlrev_b32 v{vT}, 7, v{vT}
    s_mov_b32 s56, {WS_F1}
    s_waitcnt vmcnt(0)
    v_readfirstlane_b32 s34, v{vN}
    s_mov_b32 s35, 0
    s_cmp_lg_u32 s34, 0
    s_cbranch_scc1 {Lng}
    {Lnw}:
    s_sleep 4
    buffer_load_dwordx2 {vr(vN,2)}, v{vZ}, s[{S_DBG}:{S_DBG+3}], 0 offen {SC}
    s_waitcnt vmcnt(0)
    v_readfirstlane_b32 s34, v{vN}
    s_add_u32 s35, s35, 1
    s_cmp_ge_u32 s35, {SPIN_MAX}
    s_cbranch_scc1 {Lng}
    s_cmp_eq_u32 s34, 0
    s_cbranch_scc1 {Lnw}
    {Lng}:
    s_barrier
    """)
    stamp(a, 3)
    a(f"""
    s_cmp_lg_u32 s{S_WV}, 7
    s_cbranch_scc1 {Lnf}
    s_cmp_eq_u32 s{S_C}, 7
    s_cbranch_scc1 {Lnf}
    s_mov_b64 exec, 1
    buffer_store_dwordx2 {vr(vN,2)}, v{vZ}, s[{S_WS}:{S_WS+3}], s57 offen {SC}
    s_mov_b64 exec, -1
    {Lnf}:
    s_mov_b32 s35, 0
    s_cmp_lg_u32 s{S_WV}, 0
    s_cbranch_scc1 {Lpd}
    {Lp}:
    {SLP}
    buffer_load_dwordx2 {vr(vT+2,2)}, v{vT}, s[{S_WS}:{S_WS+3}], s56 offen {SC}
    s_add_u32 s35, s35, 1
    s_waitcnt vmcnt(0)
    v_cmp_ne_u64 vcc, {vr(vT+2,2)}, {vr(vN,2)}
    s_cmp_ge_u32 s35, {SPIN_MAX}
    s_cbranch_scc1 {Lpd}
    s_cmp_lg_u64 vcc, 0
    s_cbranch_scc1 {Lp}
    {Lpd}:
    s_barrier
    """)
    stamp(a, 5)
    a(f"""
    s_mov_b32 m0, s{sM0}
    buffer_load_dwordx4 {vr(vQ,4)}, v{vL16}, s[{S_WS}:{S_WS+3}], s48 offen {SC}
    buffer_load_dwordx4 {vr(vQ+4,4)}, v{vL16}, s[{S_WS}:{S_WS+3}], s48 offen offset:1024 {SC}
    """)
    for st in range(3):
        if st:
            if "noorder" not in OPT: a("s_barrier")
            a(f"s_add_u32 m0, s{sM0}, {st*32768}")
            a(f"s_add_u32 s{sG}, s{sG}, 16384")
        for f in range(4):
            a(f"buffer_load_dwordx4 v{vL16}, s[{S_WS}:{S_WS+3}], s{sG} offen offset:{f*1024} {SC} lds")
    a("s_waitcnt vmcnt(8)")
    stamp(a, 6)
    a("s_barrier")
    stamp(a, 8)
    def ldsaddr(u, off):
        slot = (u // 4) % 3
        o = slot * 32768 + (u % 4) * 4096 + off
        return (vL, o) if o < 65536 - 16384 else (vL2, o - 65536)
    def rd(dst, u, off):
        r, o = ldsaddr(u, off)
        a(f"ds_read_b128 {vr(dst,4)}, v{r} offset:{o}")
    def rdK(u, f): rd(vK[u % 2] + 4 * f, u, f * 1024)
    def rdV(u, f): rd(vV[u % 4] + 4 * f, u, 2048 + f * 1024)
    def QK(u, i, K=None):
        C = "0" if i == 0 else vr(vS[u % 3], 16)
        K = vK[u % 2] if K is None else K
        a(f"v_mfma_f32_32x32x16_bf16 {vr(vS[u%3],16)}, {vr(K+4*i,4)}, {vr(vQ+4*i,4)}, {C}")
    def PV(u, i):
        a(f"v_smfmac_f32_32x32x32_bf16 {vr(vO,16)}, {vr(vV[u%4]+4*i,4)}, {vr(vS[u%3]+8*i,8)}, v{vIdx}")
    def E(u, r0, r1):
        for r in range(r0, r1):
            a(f"v_exp_f32 v{vS[u%3]+r}, v{vS[u%3]+r}")
    a(f"""
    ds_read_b128 {vr(vV[2],4)}, v{vL16}
    ds_read_b128 {vr(vV[2]+4,4)}, v{vL16} offset:1024
    """)
    rdK(0, 0); rdK(0, 1); rdK(1, 0); rdK(1, 1); rdV(0, 0); rdV(0, 1); rdV(1, 0); rdV(1, 1)
    a("s_waitcnt lgkmcnt(8)")
    QK(2, 0, vV[2]); QK(2, 1, vV[2])
    for r in range(16):
        a(f"v_mov_b32 v{vO+r}, 0")
    S = vS[2]
    a(f"v_max3_f32 v{vT}, v{S}, v{S+1}, v{S+2}")
    a(f"v_max3_f32 v{vT+1}, v{S+3}, v{S+4}, v{S+5}")
    for r in (6, 10):
        a(f"v_max3_f32 v{vT}, v{vT}, v{S+r}, v{S+r+1}")
        a(f"v_max3_f32 v{vT+1}, v{vT+1}, v{S+r+2}, v{S+r+3}")
    a(f"v_max3_f32 v{vT}, v{vT}, v{S+14}, v{S+15}")
    a(f"""
    v_max_f32 v{vT}, v{vT}, v{vT+1}
    v_mov_b32 v{vT+1}, v{vT}
    s_nop 1
    v_permlane32_swap_b32 v{vT}, v{vT+1}
    v_max_f32 v{vT}, v{vT}, v{vT+1}
    s_mov_b32 exec_lo, 0
    v_cvt_pk_bf16_f32 v{vQ+6}, -v{vT}, 0
    s_mov_b32 exec_lo, -1
    s_waitcnt lgkmcnt(4)
    """)
    QK(0, 0); QK(0, 1)
    rdK(2, 0); rdK(2, 1)
    a.c("wo DMA addresses (phase 3 prefetch)")
    a(f"""
    v_lshrrev_b32 v{vT}, 3, v0            ; 8w + r
    v_lshrrev_b32 v{vT+1}, 3, v1
    v_and_b32 v{vT+1}, 6, v{vT+1}
    v_and_b32 v{vT+2}, 7, v1
    v_xor_b32 v{vT+1}, v{vT+1}, v{vT+2}
    v_mul_u32_u24 v{vG3}, 896, v{vT}
    v_lshl_add_u32 v{vG3}, v{vT+1}, 4, v{vG3}
    s_lshr_b32 s49, s{S_HEAD}, 1
    s_min_u32 s49, s49, 6
    s_lshl_b32 s49, s49, 7
    s_lshl_b32 s50, s{S_WV}, 10
    """)
    stamp(a, 9)
    for t in range(32):
        if t + 1 < 32: QK(t + 1, 0)
        if 1 <= t <= 20 and (t - 1) % 4 == 0:
            st = (t - 1) // 4 + 3
            a(f"s_add_u32 s{sG}, s{sG}, 16384")
        elif 21 <= t <= 28:
            a(f"s_add_u32 s34, s49, {(t-21)*57344}")
        if t + 2 < 32: rdV(t + 2, 0)
        E(t, 0, 4)
        if t + 1 < 32: QK(t + 1, 1)
        if 1 <= t <= 20 and (t - 1) % 4 == 0:
            st = (t - 1) // 4 + 3
            a(f"s_add_u32 m0, s{sM0}, {(st % 3) * 32768}")
        elif 21 <= t <= 28:
            a(f"s_add_u32 m0, s50, {98304 + (t-21)*8192}")
        if t + 2 < 32: rdV(t + 2, 1)
        E(t, 4, 8)
        if t >= 1: PV(t - 1, 1)
        if t % 4 == 1 and t <= 25:
            a("s_waitcnt vmcnt(4) lgkmcnt(0)")
            a("s_barrier")
        if "noprio" not in OPT:
            a(f"s_setprio {3 - ((t - 1) % 4) if t <= 28 else 0}")
        if t + 3 < 32: rdK(t + 3, 0)
        if 1 <= t <= 20:
            a(f"buffer_load_dwordx4 v{vL16}, s[{S_WS}:{S_WS+3}], s{sG} offen offset:{((t-1)%4)*1024} {SC} lds")
        elif 21 <= t <= 28:
            a(f"buffer_load_dwordx4 v{vG3}, s[{S_WO}:{S_WO+3}], s34 offen lds")
        E(t, 8, 12)
        if t == 0:
            a("s_waitcnt lgkmcnt(5)")
        PV(t, 0)
        if t + 3 < 32:
            a("s_waitcnt lgkmcnt(3)")
            rdK(t + 3, 1)
        else:
            a("s_waitcnt lgkmcnt(0)")
        E(t, 12, 16)
    a("s_nop 1")
    PV(31, 1)
    stamp(a, 10)
    a.c("---- combine the two kv halves in slot 0 (stage 6 data is dead)")
    LB, LJ, Lslow, Lst = a.newlabel("L_halfB"), a.newlabel("L_join"), a.newlabel("L_slow"), a.newlabel("L_store")
    a(f"""
    s_mul_i32 s34, s{S_WV}, 2304
    s_xor_b32 s35, s{S_WV}, 4
    s_mul_i32 s35, s35, 2304
    v_add_u32 v{vT}, s34, v{vL16}
    v_add_u32 v{vT+1}, s35, v{vL16}
    v_lshl_add_u32 v{vT+2}, v1, 2, s34
    v_or_b32 v{vT+3}, 32, v1
    v_lshl_add_u32 v{vT+4}, v{vT+3}, 2, s35
    v_lshl_add_u32 v{vT+3}, v{vT+3}, 2, s34
    s_lshl_b32 s34, s{S_TILE}, 15
    s_lshl_b32 s35, s{S_HEAD}, 11
    s_add_u32 s54, s34, s35
    s_lshl_b32 s34, s{S_HALF}, 10
    s_add_u32 s54, s54, s34
    s_add_u32 s54, s54, {WS_O}
    s_lshl_b32 s56, s{S_QB}, 11
    s_add_u32 s56, s56, {WS_F2}
    s_lshl_b32 s57, s{S_HEAD}, 7
    s_add_u32 s57, s57, s56
    s_cmp_lg_u32 s{S_HALF}, 0
    s_cbranch_scc1 {LB}
    ds_write_b128 v{vT}, {vr(vO+8,4)}
    ds_write_b128 v{vT}, {vr(vO+12,4)} offset:1024
    ds_write_b32 v{vT+2}, v{vO+12} offset:2048
    s_branch {LJ}
    {LB}:
    ds_write_b128 v{vT}, {vr(vO,4)}
    ds_write_b128 v{vT}, {vr(vO+4,4)} offset:1024
    ds_write_b32 v{vT+2}, v{vO+12} offset:2048
    s_nop 1
    """)
    for r in range(8):
        a(f"v_mov_b32 v{vO+r}, v{vO+8+r}")
    a(f"""
    {LJ}:
    s_waitcnt vmcnt(0) lgkmcnt(0)
    s_barrier
    ds_read_b32 v{vX+8}, v{vT+3} offset:2048
    ds_read_b32 v{vX+9}, v{vT+4} offset:2048
    ds_read_b128 {vr(vX,4)}, v{vT+1}
    ds_read_b128 {vr(vX+4,4)}, v{vT+1} offset:1024
    s_waitcnt lgkmcnt(2)
    v_add_f32 v{vX+8}, v{vX+8}, v{vX+9}
    v_rcp_f32 v{vX+9}, v{vX+8}
    s_mov_b32 s34, 0x2b800000
    s_mov_b32 s35, 0x53800000
    s_waitcnt lgkmcnt(0)
    """)
    for r in range(8):
        a(f"v_add_f32 v{vO+r}, v{vO+r}, v{vX+r}")
    for r in range(8):
        a(f"v_fmac_f32 v{vX+8}, 0, v{vO+r}")
    a(f"""
    v_cmp_nle_f32 vcc, s34, v{vX+8}
    v_cmp_nge_f32 s[58:59], s35, v{vX+8}
    s_nop 0
    s_or_b64 vcc, vcc, s[58:59]
    s_cbranch_scc1 {Lslow}
    {Lst}:
    """)
    for r in range(8):
        a(f"v_mul_f32 v{vO+r}, v{vO+r}, v{vX+9}")
    for t in range(4):
        a(f"v_cvt_pk_bf16_f32 v{vX+t}, v{vO+2*t}, v{vO+2*t+1}")
    Lnz = a.newlabel("L_nz")
    a(f"""
    s_cmp_eq_u32 s{S_HALF}, 0
    s_cbranch_scc1 {Lnz}
    s_mov_b32 exec_lo, 0
    v_mov_b32 v{vX+2}, 0
    v_mov_b32 v{vX+3}, 0
    s_mov_b32 exec_lo, -1
    {Lnz}:
    buffer_store_dwordx4 {vr(vX,4)}, v{vL16}, s[{S_WS}:{S_WS+3}], s54 offen {SC}
    """)
    stamp(a, 11)
    vOg, vPa = 3, 4
    vA = 8
    vAc3 = 32
    vOf = 48
    vWo = 128
    WOB_L = 98304
    Lnf2 = a.newlabel('L_nof2')
    a(f"""
    v_lshrrev_b32 v{vT}, 4, v1            ; g
    v_and_b32 v{vT+1}, 15, v1             ; tok16
    v_bfe_u32 v{vT+2}, v1, 2, 2           ; r'
    v_bfe_u32 v{vT+3}, v1, 4, 1           ; g&1
    v_lshrrev_b32 v{vT+4}, 5, v1          ; g>>1
    v_lshl_add_u32 v{vT+5}, v{vT+3}, 2, v{vT+2}
    v_lshl_add_u32 v{vT+5}, v{vT+4}, 4, v{vT+5}   ; row
    v_lshrrev_b32 v{vT+6}, 1, v{vT+2}
    v_lshl_add_u32 v{vT+6}, v{vT+3}, 1, v{vT+6}   ; s0
    v_lshlrev_b32 v{vT+6}, 5, v{vT+6}
    v_lshl_add_u32 v{vT+5}, v{vT+5}, 7, v{vT+6}
    v_and_b32 v{vT+6}, 3, v1
    v_lshl_add_u32 v{vT+5}, v{vT+6}, 3, v{vT+5}
    s_mul_i32 s34, s{S_HALF}, {8*28*128}
    s_add_u32 s34, s34, {WOB_L}
    v_add_u32 v{vA}, s34, v{vT+5}
    v_xor_b32 v{vA+1}, 32, v{vA}
    v_xor_b32 v{vA+2}, 64, v{vA}
    v_xor_b32 v{vA+3}, 0x60, v{vA}
    """)
    def wr(hh):
        for ct in range(4):
            for u in range(2):
                a(f"ds_read_b64_tr_b16 {vr(vWo+16*hh+4*ct+2*u,2)}, v{vA+(ct^(2*(hh&1)))} offset:{(28*hh+8*u)*128}")
    for hh in range(4):
        wr(hh)
        a("s_waitcnt lgkmcnt(4)")
    a(f"""
    v_lshlrev_b32 v{vOg}, 9, v{vT}
    v_lshl_add_u32 v{vOg}, v{vT+1}, 4, v{vOg}
    v_lshlrev_b32 v{vPa}, 7, v{vT+1}
    s_lshl_b32 s34, s{S_QB}, 2
    s_and_b32 s35, s{S_HEAD}, 1
    s_lshl_b32 s35, s35, 1
    s_add_u32 s34, s34, s35
    s_lshr_b32 s35, s{S_T}, 1
    s_add_u32 s34, s34, s35
    s_lshl_b32 s34, s34, 15
    s_lshl_b32 s35, s{S_HALF}, 14
    s_add_u32 s48, s34, s35
    s_and_b32 s34, s{S_T}, 1
    s_lshl_b32 s34, s34, 8
    s_add_u32 s48, s48, s34
    s_add_u32 s48, s48, {WS_O}
    s_waitcnt vmcnt(0)
    s_barrier
    s_cmp_lg_u32 s{S_WV}, 7
    s_cbranch_scc1 {Lnf2}
    s_mov_b64 exec, 1
    buffer_store_dwordx2 {vr(vN,2)}, v{vZ}, s[{S_WS}:{S_WS+3}], s57 offen {SC}
    s_mov_b64 exec, -1
    {Lnf2}:
    s_cmp_ge_u32 s{S_HEAD}, 14
    s_cbranch_scc1 {"L_fin" if STAMPS else done}
    """)
    stamp(a, 12)
    for hh in range(4, 8):
        wr(hh)
        a("s_waitcnt lgkmcnt(4)")
    Lp, Lpd = a.newlabel("L_poll2"), a.newlabel("L_poll2d")
    a(f"""
    s_mov_b32 s35, 0
    s_cmp_lg_u32 s{S_WV}, 0
    s_cbranch_scc1 {Lpd}
    {Lp}:
    {SLP}
    buffer_load_dwordx2 {vr(vT+2,2)}, v{vPa}, s[{S_WS}:{S_WS+3}], s56 offen {SC}
    s_add_u32 s35, s35, 1
    s_waitcnt vmcnt(0)
    v_cmp_ne_u64 vcc, {vr(vT+2,2)}, {vr(vN,2)}
    s_cmp_ge_u32 s35, {SPIN_MAX}
    s_cbranch_scc1 {Lpd}
    s_cmp_lg_u64 vcc, 0
    s_cbranch_scc1 {Lp}
    {Lpd}:
    s_barrier
    """)
    stamp(a, 13)
    for hh in range(8):
        a(f"s_add_u32 s34, s48, {hh*2048}")
        a(f"buffer_load_dwordx4 {vr(vOf+4*hh,4)}, v{vOg}, s[{S_WS}:{S_WS+3}], s34 offen {SC}")
    XB3 = 32768
    a(f"""
    s_lshl_b32 s34, s{S_WV}, 11
    s_xor_b32 s35, s34, 8192
    v_add_u32 v{vT+3}, s35, v{vL16}
    v_add_u32 v{vT+2}, s34, v{vL16}
    s_lshl_b32 s34, s{S_QB}, 7
    s_and_b32 s35, s{S_HEAD}, 1
    s_lshl_b32 s35, s35, 6
    s_add_u32 s34, s34, s35
    s_lshl_b32 s35, s{S_T}, 4
    s_add_u32 s34, s34, s35
    s_mul_i32 s34, s34, 896
    s_add_u32 s34, s34, s49
    s_lshl_b32 s35, s{S_HALF}, 6
    s_add_u32 s50, s34, s35
    v_mul_u32_u24 v{vT+4}, 896, v{vT+1}
    v_lshl_add_u32 v{vT+4}, v{vT}, 3, v{vT+4}
    """)
    for hh in range(8):
        a(f"s_waitcnt vmcnt({7-hh}) lgkmcnt(0)")
        if hh == 0 and "p3" in OPT: stamp(a, 8)
        for ct in range(4):
            C = "0" if hh == 0 else vr(vAc3 + 4 * ct, 4)
            a(f"v_mfma_f32_16x16x32_bf16 {vr(vAc3+4*ct,4)}, {vr(vWo+16*hh+4*ct,4)}, {vr(vOf+4*hh,4)}, {C}")
    stamp(a, 9) if "p3" in OPT else None
    LB3, LJ3 = a.newlabel("L_p3B"), a.newlabel("L_p3J")
    a(f"""
    s_nop 5
    s_cmp_lg_u32 s{S_HALF}, 0
    s_cbranch_scc1 {LB3}
    ds_write_b128 v{vT+2}, {vr(vAc3+8,4)} offset:{XB3}
    ds_write_b128 v{vT+2}, {vr(vAc3+12,4)} offset:{XB3+1024}
    s_branch {LJ3}
    {LB3}:
    ds_write_b128 v{vT+2}, {vr(vAc3,4)} offset:{XB3}
    ds_write_b128 v{vT+2}, {vr(vAc3+4,4)} offset:{XB3+1024}
    s_nop 1
    """)
    for r in range(8):
        a(f"v_mov_b32 v{vAc3+r}, v{vAc3+8+r}")
    a(f"""
    {LJ3}:
    s_waitcnt lgkmcnt(0)
    s_barrier
    ds_read_b128 {vr(vX,4)}, v{vT+3} offset:{XB3}
    ds_read_b128 {vr(vX+4,4)}, v{vT+3} offset:{XB3+1024}
    s_waitcnt lgkmcnt(0)
    """)
    for r in range(8):
        a(f"v_add_f32 v{vAc3+r}, v{vAc3+r}, v{vX+r}")
    for t in range(4):
        a(f"v_cvt_pk_bf16_f32 v{vX+t}, v{vAc3+2*t}, v{vAc3+2*t+1}")
    a(f"""
    buffer_store_dwordx2 {vr(vX,2)}, v{vT+4}, s[{S_OUT}:{S_OUT+3}], s50 offen
    buffer_store_dwordx2 {vr(vX+2,2)}, v{vT+4}, s[{S_OUT}:{S_OUT+3}], s50 offen offset:32
    """)
    if STAMPS:
        stamp(a, 10) if "p3" in OPT else None
        a("s_waitcnt vmcnt(0)")
        stamp(a, 14)
        a.label("L_fin")
        a("s_memrealtime s[96:97]")
        a("s_waitcnt lgkmcnt(0)")
        for i in range(15):
            a(f"s_sub_u32 s{64+2*i}, s{64+2*i}, s100")
            a(f"v_mov_b32 v{8+i}, s{64+2*i}")
        a("v_mov_b32 v23, 0")
        a("v_mov_b32 v24, s98")
        a("v_mov_b32 v25, s96")
        a("v_mov_b32 v26, 0")
        a("v_mov_b32 v27, 0")
        a(f"""
        s_lshl_b32 s34, s2, 3
        s_add_u32 s34, s34, s{S_WV}
        s_lshl_b32 s34, s34, 7
        s_add_u32 s34, s34, {WS_ST}
        s_mov_b64 exec, 1
        buffer_store_dwordx4 v[8:11], v{vZ}, s[{S_WS}:{S_WS+3}], s34 offen
        buffer_store_dwordx4 v[12:15], v{vZ}, s[{S_WS}:{S_WS+3}], s34 offen offset:16
        buffer_store_dwordx4 v[16:19], v{vZ}, s[{S_WS}:{S_WS+3}], s34 offen offset:32
        buffer_store_dwordx4 v[20:23], v{vZ}, s[{S_WS}:{S_WS+3}], s34 offen offset:48
        buffer_store_dwordx4 v[24:27], v{vZ}, s[{S_WS}:{S_WS+3}], s34 offen offset:64
        """)
    a.label(done)
    a("s_endpgm")
    a.label(Lslow)
    L1, L2, Lh = a.newlabel("L_s1"), a.newlabel("L_s2"), a.newlabel("L_sh")
    sCnt = 48
    a(f"""
    s_mov_b32 exec_lo, 0
    v_mov_b32 v{vQ+6}, 0
    v_mov_b32 v{vQ+7}, 0
    s_mov_b32 exec_lo, -1
    v_mov_b32 v{vT}, 0xff800000
    s_lshl_b32 s{sG}, s{S_HEAD}, 18
    s_mov_b32 s{sCnt}, 0
    {L1}:
    buffer_load_dwordx4 {vr(vK[0],4)}, v{vL16}, s[{S_WS}:{S_WS+3}], s{sG} offen {SC}
    buffer_load_dwordx4 {vr(vK[0]+4,4)}, v{vL16}, s[{S_WS}:{S_WS+3}], s{sG} offen offset:1024 {SC}
    s_waitcnt vmcnt(0)
    """)
    QK(0, 0); QK(0, 1)
    a("s_nop 15")
    for r in range(0, 16, 2):
        a(f"v_max3_f32 v{vT}, v{vT}, v{vS[0]+r}, v{vS[0]+r+1}")
    a(f"""
    s_add_u32 s{sG}, s{sG}, 4096
    s_add_u32 s{sCnt}, s{sCnt}, 1
    s_cmp_lt_u32 s{sCnt}, 64
    s_cbranch_scc1 {L1}
    v_mov_b32 v{vT+1}, v{vT}
    s_nop 1
    v_permlane32_swap_b32 v{vT}, v{vT+1}
    s_nop 1
    v_max_f32 v{vT}, v{vT}, v{vT+1}
    v_and_b32 v{vT+1}, 0xffff0000, v{vT}       ; hi
    v_sub_f32 v{vT+2}, v{vT}, v{vT+1}
    v_and_b32 v{vT+3}, 0xffff0000, v{vT+2}     ; mid
    v_sub_f32 v{vT+2}, v{vT+2}, v{vT+3}        ; lo
    s_mov_b32 exec_lo, 0
    v_cvt_pk_bf16_f32 v{vQ+6}, -v{vT+1}, -v{vT+3}
    v_cvt_pk_bf16_f32 v{vQ+7}, -v{vT+2}, 0
    s_mov_b32 exec_lo, -1
    """)
    for r in range(16):
        a(f"v_mov_b32 v{vO+r}, 0")
    a(f"""
    s_lshl_b32 s{sG}, s{S_HEAD}, 18
    s_mov_b32 s{sCnt}, 0
    {L2}:
    buffer_load_dwordx4 {vr(vK[0],4)}, v{vL16}, s[{S_WS}:{S_WS+3}], s{sG} offen {SC}
    buffer_load_dwordx4 {vr(vK[0]+4,4)}, v{vL16}, s[{S_WS}:{S_WS+3}], s{sG} offen offset:1024 {SC}
    buffer_load_dwordx4 {vr(vV[0],4)}, v{vL16}, s[{S_WS}:{S_WS+3}], s{sG} offen offset:2048 {SC}
    buffer_load_dwordx4 {vr(vV[0]+4,4)}, v{vL16}, s[{S_WS}:{S_WS+3}], s{sG} offen offset:3072 {SC}
    s_waitcnt vmcnt(0)
    """)
    QK(0, 0); QK(0, 1)
    a("s_nop 15")
    E(0, 0, 16)
    a("s_nop 1")
    PV(0, 0); PV(0, 1)
    a(f"""
    s_nop 7
    s_add_u32 s{sG}, s{sG}, 4096
    s_add_u32 s{sCnt}, s{sCnt}, 1
    s_cmp_lt_u32 s{sCnt}, 64
    s_cbranch_scc1 {L2}
    s_nop 15
    v_mov_b32 v{vX+8}, v{vO+12}
    v_mov_b32 v{vX+9}, v{vO+12}
    s_nop 1
    v_permlane32_swap_b32 v{vX+8}, v{vX+9}
    s_nop 1
    v_rcp_f32 v{vX+9}, v{vX+9}
    s_cmp_eq_u32 s{S_HALF}, 0
    s_cbranch_scc1 {Lh}
    """)
    for r in range(8):
        a(f"v_mov_b32 v{vO+r}, v{vO+8+r}")
    a(f"""
    {Lh}:
    s_nop 1
    s_branch {Lst}
    """)
    a.raw('.section .rodata,"a"')
    a.raw(".p2align 6")
    a.raw(kernel_desc(NAME, 256, 102).rstrip("\n"))
    return a.text()

if __name__ == "__main__":
    out = sys.argv[1] if len(sys.argv) > 1 else "standalone__softmax_full_mha__prompt.s"
    OPT.update(sys.argv[2:])
    STAMPS = "stamps" in OPT
    open(out, "w").write(build())
```

```python
import sys, struct, math
from asmlib import *

WS_KV = 0
WS_Q = 0x400000
WS_O = 0x800000
WS_F1 = 0xa00000
WS_F2 = 0xa10000
WS_ST = 0xc00000
WS_BYTES = 0xd00000
XB, WB, WOB, OUTB = 1835008, 1204224, 401408, 1835008
QSCALE = struct.unpack("<I", struct.pack("<f", math.log2(math.e) / math.sqrt(28.0)))[0]
SPIN_MAX = 1 << 18

S_X, S_W, S_WS, S_WO, S_OUT, S_DBG = 8, 12, 16, 20, 24, 4
S_QB, S_JG, S_JL, S_WV, S_HEAD, S_ROT = 28, 29, 30, 31, 32, 33
S_TILE, S_HALF, S_T = 53, 60, 61
SC = "sc1"
OPT = set()
STAMPS = False
NAME = "standalone__softmax_full_mha__prompt_kernel"

def stamp(a, i):
    if STAMPS:
        a(f"s_mem{'real' if 'dbg' in OPT else ''}time s[{64+2*i}:{65+2*i}]")

def build():
    a = Asm()
    HEADER = open("standalone__softmax_full_mha__prompt.s.ref").read().split("; Override launch")[0]
    a.raw(HEADER.rstrip("\n"))
    a.raw("; @launch grid=(256,1,1) block=(512,1,1) lds=163840")
    a.raw('.amdgcn_target "amdgcn-amd-amdhsa--gfx950"\n.text')
    a.raw(f".globl {NAME}\n.p2align 8\n.type {NAME},@function\n{NAME}:")
    if STAMPS:
        a("s_memrealtime s[98:99]")
        a("s_memtime s[100:101]")
    done = "L_done"
    SCKV = '' if 'plainkv' in OPT else ('sc0 sc1' if 'sc01kv' in OPT else ('nt' if 'ntkv' in OPT else SC))
    PSC = "sc0 sc1" if "p01" in OPT else ("sc0 sc1 nt" if "p01nt" in OPT else ("sc1 nt" if "p1nt" in OPT else SC))
    SLEEP = [int(o[5:]) for o in OPT if o.startswith('sleep')]
    SLP = f's_sleep {SLEEP[0]}' if SLEEP else 's_nop 0'
    vXg, vWg = 2, 3
    vWa = 4
    vZ = 7
    vXa = 8
    vT = 16
    vAcc = 32
    vD = 64
    vAd = 76
    vN = 80
    vWf = 128
    vXf = 144
    sC, sXo, sWo, sCol, sM, sXbase = 46, 47, 48, 49, 50, 51
    S_TH, S_C = 52, 55
    Lpoll = a.newlabel("L_sync1")
    ROTX = "s_nop 0"
    if "rot0" in OPT: ROTX = f"s_mov_b32 s{sC}, 0"
    if "rot2" in OPT: ROTX = f"s_and_b32 s{sC}, s{S_ROT}, 1\n    s_lshl_b32 s{sC}, s{sC}, 1"
    if "rot2b" in OPT: ROTX = f"s_and_b32 s{sC}, s{S_ROT}, 1\n    s_mul_i32 s{sC}, s{sC}, 3"
    if "rot4" in OPT: ROTX = f"s_and_b32 s{sC}, s{S_ROT}, 3"
    a(f"""
    s_cmp_ge_u32 s2, 256
    s_cbranch_scc1 {done}
    s_load_dwordx4 s[36:39], s[0:1], 0
    s_load_dwordx4 s[40:43], s[0:1], 16
    s_load_dwordx4 s[{S_DBG}:{S_DBG+3}], s[0:1], 32
    s_memrealtime s[62:63]
    v_lshrrev_b32 v{vT}, 6, v0
    v_and_b32 v1, 63, v0
    s_and_b32 s34, s2, 3                  ; tg
    s_bfe_u32 s35, s2, 0x30003            ; r5 & 7
    v_readfirstlane_b32 s{S_WV}, v{vT}
    s_lshl_b32 s{S_TH}, s34, 3
    s_add_u32 s{S_TH}, s{S_TH}, s35
    s_lshr_b32 s{S_C}, s2, 6              ; cl
    s_lshl_b32 s{S_ROT}, s{S_C}, 1
    s_add_u32 s{S_ROT}, s{S_ROT}, s35
    s_cmp_ge_u32 s{S_ROT}, 7
    s_cselect_b32 s35, 7, 0
    s_sub_u32 s{sC}, s{S_ROT}, s35
    {ROTX}
    s_and_b32 s35, s2, 4
    s_add_u32 s{S_C}, s{S_C}, s35
    s_mov_b32 s{S_X+2}, {XB}
    s_mov_b32 s{S_X+3}, 0x00020000
    s_mov_b32 s{S_W+2}, {WB}
    s_mov_b32 s{S_W+3}, 0x00020000
    v_lshrrev_b32 v{vT+2}, 3, v0          ; 8w + r
    v_and_b32 v{vT+1}, 7, v1              ; pos
    v_bfe_u32 v{vT+3}, v0, 4, 3           ; swz = ((8w+r)>>1)&7
    v_xor_b32 v{vT+3}, v{vT+3}, v{vT+1}
    v_mul_u32_u24 v{vXg}, 896, v{vT+2}
    v_lshl_add_u32 v{vXg}, v{vT+3}, 4, v{vXg}
    v_lshrrev_b32 v{vT+3}, 2, v1
    v_and_b32 v{vT+3}, 4, v{vT+3}         ; ((r>>1)&1)*4
    v_xor_b32 v{vT+3}, v{vT+3}, v{vT+1}
    v_mul_u32_u24 v{vWg}, 2688, v{vT+2}
    v_lshl_add_u32 v{vWg}, v{vT+3}, 4, v{vWg}
    s_mul_i32 s{sXbase}, s{S_TH}, 57344
    s_lshl_b32 s{sCol}, s{S_C}, 7
    s_lshl_b32 s{sM}, s{S_WV}, 10
    s_waitcnt lgkmcnt(0)
    s_mov_b32 s{S_X}, s36
    s_mov_b32 s{S_X+1}, s37
    s_mov_b32 s{S_W}, s38
    s_mov_b32 s{S_W+1}, s39
    """)
    NSLOT = 4
    def issue_chunk(i):
        sl = (i % NSLOT) * 32768
        a(f"""
        s_lshl_b32 s{sXo}, s{sC}, 7
        s_add_u32 s{sXo}, s{sXo}, s{sXbase}
        s_add_u32 m0, s{sM}, {sl}
        s_mul_i32 s{sWo}, s{sC}, 172032
        buffer_load_dwordx4 v{vXg}, s[{S_X}:{S_X+3}], s{sXo} offen lds
        s_add_u32 m0, s{sM}, {sl+8192}
        s_add_u32 s{sWo}, s{sWo}, s{sCol}
        buffer_load_dwordx4 v{vWg}, s[{S_W}:{S_W+3}], s{sWo} offen lds
        s_add_u32 m0, s{sM}, {sl+16384-896}
        s_add_u32 s{sC}, s{sC}, 1
        buffer_load_dwordx4 v{vWg}, s[{S_W}:{S_W+3}], s{sWo} offen offset:896 lds
        s_add_u32 m0, s{sM}, {sl+24576-1792}
        s_cmp_eq_u32 s{sC}, 7
        buffer_load_dwordx4 v{vWg}, s[{S_W}:{S_W+3}], s{sWo} offen offset:1792 lds
        s_cselect_b32 s{sC}, 0, s{sC}
        """)
    Lsp1, Lsp2, Lnn = a.newlabel("L_sp"), a.newlabel("L_sp"), a.newlabel("L_nonon")
    stamp(a, 0)
    a(f"""
    s_cmp_eq_u32 s{S_C}, 7
    s_cbranch_scc1 {Lsp1}
    """)
    issue_chunk(0)
    a(f"""
    {Lsp1}:
    s_mov_b32 s{S_WS}, s{S_DBG+2}
    s_mov_b32 s{S_WS+1}, s{S_DBG+3}
    s_mov_b32 s{S_WS+2}, {WS_BYTES}
    s_mov_b32 s{S_WS+3}, 0x00020000
    s_mov_b32 s{S_DBG+2}, 256
    s_mov_b32 s{S_DBG+3}, 0x00020000
    v_mov_b32 v{vZ}, 0
    v_mov_b32 v{vN}, 0
    s_or_b32 s34, s2, s{S_WV}
    s_cmp_lg_u32 s34, 0
    s_cbranch_scc1 {Lnn}
    s_or_b32 s62, s62, 1
    v_mov_b32 v{vN}, s62
    v_mov_b32 v{vN+1}, s63
    s_mov_b64 exec, 1
    buffer_store_dwordx2 {vr(vN,2)}, v{vZ}, s[{S_DBG}:{S_DBG+3}], 0 offen {SC}
    s_mov_b64 exec, -1
    {Lnn}:
    s_cmp_eq_u32 s{S_C}, 7
    s_cbranch_scc1 {Lsp2}
    """)
    issue_chunk(1)
    a(f"""
    {Lsp2}:
    s_mov_b32 s{S_WO}, s40
    s_mov_b32 s{S_WO+1}, s41
    s_mov_b32 s{S_OUT}, s42
    s_mov_b32 s{S_OUT+1}, s43
    s_mov_b32 s{S_WO+2}, {WOB}
    s_mov_b32 s{S_WO+3}, 0x00020000
    s_mov_b32 s{S_OUT+2}, {OUTB}
    s_mov_b32 s{S_OUT+3}, 0x00020000
    s_and_b32 s34, s2, 3
    s_lshl_b32 s34, s34, 2
    s_bfe_u32 s35, s2, 0x20003
    s_add_u32 s{S_QB}, s34, s35
    s_and_b32 s34, s2, 4
    s_lshl_b32 s34, s34, 1
    s_lshr_b32 s35, s2, 5
    s_add_u32 s{S_HEAD}, s34, s35
    s_and_b32 s{S_T}, s{S_WV}, 3
    s_lshr_b32 s{S_HALF}, s{S_WV}, 2
    s_lshl_b32 s34, s{S_QB}, 2
    s_add_u32 s{S_TILE}, s34, s{S_T}
    s_cmp_eq_u32 s{S_C}, 7
    s_cbranch_scc1 {Lpoll}
    v_and_b32 v{vT}, 31, v1               ; tok
    v_lshrrev_b32 v{vT+1}, 5, v1          ; h
    v_bfe_u32 v{vT+2}, v1, 1, 3
    v_xor_b32 v{vT+2}, v{vT+2}, v{vT+1}   ; h ^ swz
    v_lshlrev_b32 v{vT+3}, 7, v{vT}       ; tok*128
    v_lshl_add_u32 v{vT+2}, v{vT+2}, 4, v{vT+3}
    s_and_b32 s34, s{S_WV}, s{S_HALF}
    s_lshl_b32 s34, s34, 12
    v_add_u32 v{vXa}, s34, v{vT+2}
    v_xor_b32 v{vXa+1}, 32, v{vXa}
    v_xor_b32 v{vXa+2}, 64, v{vXa}
    v_xor_b32 v{vXa+3}, 0x60, v{vXa}
    v_add_u32 v{vXa+4}, 0x10000, v{vXa}
    v_add_u32 v{vXa+5}, 0x10000, v{vXa+1}
    v_add_u32 v{vXa+6}, 0x10000, v{vXa+2}
    v_add_u32 v{vXa+7}, 0x10000, v{vXa+3}
    v_and_b32 v{vT+2}, 3, v1              ; c'
    v_lshrrev_b32 v{vT+3}, 1, v{vT+2}
    v_lshlrev_b32 v{vT+4}, 1, v{vT+2}
    v_and_b32 v{vT+4}, 2, v{vT+4}
    v_or_b32 v{vT+3}, v{vT+3}, v{vT+4}    ; bitswap2(c')
    v_bfe_u32 v{vT+4}, v1, 4, 1           ; a
    v_bfe_u32 v{vT+5}, v1, 2, 2           ; r'
    v_lshl_add_u32 v{vT+6}, v{vT+1}, 3, v{vT+5}   ; 8h + r'
    s_lshr_b32 s34, s{S_WV}, s{S_HALF}
    s_and_b32 s56, s34, 1
    s_lshr_b32 s35, s{S_WV}, 1
    s_min_u32 s35, s35, 2                 ; type 0=Q 1=K 2=V
    s_cmp_eq_u32 s{S_HALF}, 0
    s_cselect_b64 vcc, -1, 0
    s_lshl_b32 s34, s56, 3
    v_cndmask_b32 v{vT+7}, v{vT+2}, v{vT+3}, vcc  ; cg
    v_lshl_add_u32 v{vT+7}, v{vT+4}, 2, v{vT+7}
    v_add_u32 v{vT+7}, s34, v{vT+7}
    v_lshlrev_b32 v{vT+8}, 2, v{vT+5}
    v_and_b32 v{vT+8}, 8, v{vT+8}
    v_xor_b32 v{vT+7}, v{vT+7}, v{vT+8}
    v_lshlrev_b32 v{vT+7}, 3, v{vT+7}
    v_lshl_add_u32 v{vWa}, v{vT+6}, 7, v{vT+7}
    s_lshl_b32 s35, s35, 13
    s_add_u32 s35, s35, 8192
    v_add_u32 v{vWa}, s35, v{vWa}
    v_add_u32 v{vWa+1}, 0x10000, v{vWa}
    s_lshl_b32 s34, s{S_C}, 1
    s_add_u32 s56, s56, s34               ; Ctg (0..13)
    s_lshl_b32 s54, s{S_TH}, 13
    s_lshl_b32 s34, s{S_C}, 5
    s_add_u32 s34, s34, s{S_TH}
    s_lshl_b32 s34, s34, 7
    s_add_u32 s57, s34, {WS_F1}
    """)
    def kloop(qk):
        for i in range(7):
            a(f"s_waitcnt vmcnt({4 if i < 6 else 1})")
            a("s_barrier")
            stamp(a, 1 + i) if i in (0, 6) else None
            if i + 2 <= 6:
                issue_chunk(i + 2)
            elif i == 5:
                a(f"buffer_load_dwordx2 {vr(vN,2)}, v{vZ}, s[{S_DBG}:{S_DBG+3}], 0 offen {SC}")
            sl = i % NSLOT
            hi = sl >= 2
            so = (sl % 2) * 32768
            nt = 2 if qk else 1
            per = 2 + nt
            def rds(sub):
                for u in range(2):
                    a(f"ds_read_b64_tr_b16 {vr(vWf+4*sub+2*u,2)}, v{vWa+hi} offset:{so+sub*2048+u*512}")
                for tt in range(nt):
                    a(f"ds_read_b128 {vr(vXf+16*tt+4*sub,4)}, v{vXa+sub+4*hi} offset:{so+tt*4096}")
            for sub in range(3): rds(sub)
            for sub in range(4):
                if sub == 0:
                    a(f"s_waitcnt lgkmcnt({2*per})")
                else:
                    a(f"s_waitcnt lgkmcnt({per*(3-sub)})")
                for tt in range(nt):
                    X, W = vXf + 16 * tt + 4 * sub, vWf + 4 * sub
                    A, B = (W, X) if qk else (X, W)
                    C = "0" if (i == 0 and sub == 0) else vr(vAcc + 16 * tt, 16)
                    a(f"v_mfma_f32_32x32x16_bf16 {vr(vAcc+16*tt,16)}, {vr(A,4)}, {vr(B,4)}, {C}")
                if sub == 0: rds(3)
    Lv, Lq = a.newlabel("L_vtype"), a.newlabel("L_pub")
    a(f"""
    s_cmp_lg_u32 s{S_HALF}, 0
    s_cbranch_scc1 {Lv}
    """)
    a.c("---- Q / K waves")
    a(f"""
    v_and_b32 v{vT+2}, 0x13, v{vT}
    v_lshlrev_b32 v{vT+3}, 1, v{vT}
    v_and_b32 v{vT+3}, 8, v{vT+3}
    v_lshrrev_b32 v{vT+4}, 1, v{vT}
    v_and_b32 v{vT+4}, 4, v{vT+4}
    v_or3_b32 v{vT+2}, v{vT+2}, v{vT+3}, v{vT+4}  ; swap23(tok)
    s_cmp_lt_u32 s{S_WV}, 2
    s_cselect_b64 vcc, -1, 0
    s_cselect_b32 s58, {WS_Q}, 0
    s_cselect_b32 s59, {QSCALE:#x}, 1.0
    s_cselect_b32 s34, 0, 0x3f803f80
    s_cselect_b32 s35, 0, 0x3f80
    v_cndmask_b32 v{vT+2}, v{vT+2}, v{vT}, vcc
    v_lshlrev_b32 v{vT+2}, 4, v{vT+2}
    v_mov_b32 v{vD+10}, s34
    v_mov_b32 v{vD+11}, s35
    s_add_u32 s54, s54, s58
    s_mov_b32 s{S_ROT}, s59
    s_lshl_b32 s34, s56, 2
    """)
    for aa in range(2):
        a(f"""
        v_add_u32 v{vT+3}, s34, v{vT+1}
        v_add_u32 v{vT+3}, {2*aa}, v{vT+3}       ; U
        v_mul_u32_u24 v{vT+4}, 37, v{vT+3}
        v_lshrrev_b32 v{vT+4}, 8, v{vT+4}        ; e
        v_mul_u32_u24 v{vT+5}, 7, v{vT+4}
        v_sub_u32 v{vAd+2+aa}, v{vT+3}, v{vT+5}  ; u7
        v_lshl_add_u32 v{vAd+aa}, v{vT+4}, 19, v{vT+2}
        v_lshrrev_b32 v{vT+5}, 2, v{vAd+2+aa}
        v_lshl_add_u32 v{vAd+aa}, v{vT+5}, 18, v{vAd+aa}
        v_and_b32 v{vT+5}, 3, v{vAd+2+aa}
        v_lshl_add_u32 v{vAd+aa}, v{vT+5}, 9, v{vAd+aa}
        """)
    kloop(True)
    a("s_nop 9")
    for tt in range(2):
        a(f"s_add_u32 s56, s54, 262144")
        for r in range(16):
            a(f"v_mul_f32 v{vAcc+16*tt+r}, s{S_ROT}, v{vAcc+16*tt+r}")
        for t in range(8):
            a(f"v_cvt_pk_bf16_f32 v{vD+t}, v{vAcc+16*tt+2*t}, v{vAcc+16*tt+2*t+1}")
        for aa in range(2):
            Ls = a.newlabel("L_ks")
            a(f"""
            v_cmp_eq_u32 vcc, 3, v{vAd+2+aa}
            v_mov_b32 v{vD+8}, v{vD+4*aa+2}
            v_mov_b32 v{vD+9}, v{vD+4*aa+3}
            v_cndmask_b32 v{vD+4*aa+2}, v{vD+4*aa+2}, v{vD+10}, vcc
            v_cndmask_b32 v{vD+4*aa+3}, v{vD+4*aa+3}, v{vD+11}, vcc
            buffer_store_dwordx4 {vr(vD+4*aa,4)}, v{vAd+aa}, s[{S_WS}:{S_WS+3}], s54 offen {SCKV}
            s_and_saveexec_b64 s[58:59], vcc
            s_cbranch_execz {Ls}
            buffer_store_dwordx4 {vr(vD+8,4)}, v{vAd+aa}, s[{S_WS}:{S_WS+3}], s56 offen {SCKV}
            s_nop 1
            {Ls}:
            s_mov_b64 exec, s[58:59]
            """)
        if tt == 0:
            a(f"s_add_u32 s54, s54, 4096")
    a(f"s_branch {Lq}")
    a.label(Lv)
    a.c("---- V waves")
    a(f"""
    s_lshl_b32 s34, s56, 5
    v_add_u32 v{vT+2}, s34, v{vT}            ; C
    v_mul_u32_u24 v{vT+3}, 2341, v{vT+2}
    v_lshrrev_b32 v{vT+3}, 16, v{vT+3}       ; head
    v_mul_u32_u24 v{vT+4}, 28, v{vT+3}
    v_sub_u32 v{vAd+2}, v{vT+2}, v{vT+4}     ; d
    v_lshl_add_u32 v{vT+4}, v{vT+1}, 5, v{vAd+2}
    v_lshlrev_b32 v{vT+4}, 4, v{vT+4}
    v_lshl_add_u32 v{vAd}, v{vT+3}, 18, v{vT+4}
    v_cmp_eq_u32 vcc, 0, v{vAd+2}
    v_mov_b32 v{vT+5}, 0x3f803f80
    s_and_b32 s34, s{S_WV}, 1
    s_lshl_b32 s34, s34, 12
    s_add_u32 s54, s54, s34
    v_cndmask_b32 v{vD+8}, 0, v{vT+5}, vcc
    v_cndmask_b32 v{vD+9}, 0, v{vT+5}, vcc
    v_cndmask_b32 v{vD+10}, 0, v{vT+5}, vcc
    v_cndmask_b32 v{vD+11}, 0, v{vT+5}, vcc
    """)
    kloop(False)
    Ls = a.newlabel("L_vs")
    a(f"""
    v_cmp_gt_u32 vcc, 4, v{vAd+2}
    s_nop 10
    """)
    for t in range(8):
        a(f"v_cvt_pk_bf16_f32 v{vD+t}, v{vAcc+2*t}, v{vAcc+2*t+1}")
    a(f"""
    buffer_store_dwordx4 {vr(vD,4)}, v{vAd}, s[{S_WS}:{S_WS+3}], s54 offen offset:2048 {SCKV}
    buffer_store_dwordx4 {vr(vD+4,4)}, v{vAd}, s[{S_WS}:{S_WS+3}], s54 offen offset:3072 {SCKV}
    s_and_saveexec_b64 s[58:59], vcc
    s_cbranch_execz {Ls}
    buffer_store_dwordx4 {vr(vD+8,4)}, v{vAd}, s[{S_WS}:{S_WS+3}], s54 offen offset:{2048+448} {SCKV}
    buffer_store_dwordx4 {vr(vD+8,4)}, v{vAd}, s[{S_WS}:{S_WS+3}], s54 offen offset:{3072+448} {SCKV}
    {Ls}:
    s_mov_b64 exec, s[58:59]
    """)
    a.label(Lq)
    stamp(a, 2)
    stamp(a, 4)
    a.label(Lpoll)
    vL16, vL, vL2, vIdx = 2, 3, 4, 5
    vO = 82
    vS = [32, 48, 64]
    vK = [128, 136]
    vV = [144, 152, 160, 168]
    vQ = 98
    vX = 106
    vG3 = 122
    sG, sM0 = 46, 47
    Lng, Lnw, Lnf = a.newlabel("L_ngot"), a.newlabel("L_nwait"), a.newlabel("L_nof1")
    Lp, Lpd = a.newlabel("L_poll1"), a.newlabel("L_poll1d")
    a(f"""
    v_lshlrev_b32 v{vL16}, 4, v1
    s_lshl_b32 s34, s{S_HALF}, 14
    v_add_u32 v{vL}, s34, v{vL16}
    v_add_u32 v{vL2}, 0x10000, v{vL}
    v_mov_b32 v{vIdx}, 0xdddddddd
    s_lshl_b32 s34, s{S_HALF}, 5
    s_add_u32 s34, s34, s{S_T}
    s_lshl_b32 s34, s34, 12
    s_lshl_b32 s{sG}, s{S_HEAD}, 18
    s_lshl_b32 s48, s{S_TILE}, 12
    s_add_u32 s48, s48, s{sG}
    s_add_u32 s48, s48, {WS_Q}            ; Q frags
    s_add_u32 s{sG}, s{sG}, s34
    s_lshl_b32 s{sM0}, s{S_WV}, 12
    s_mul_i32 s34, s{S_HEAD}, 28
    s_add_u32 s35, s34, 27
    s_lshr_b32 s34, s34, 6
    s_lshr_b32 s35, s35, 6
    v_mov_b32 v{vT}, s34
    s_mov_b32 exec_lo, 0
    v_mov_b32 v{vT}, s35
    s_mov_b32 exec_lo, -1
    v_and_b32 v{vT+1}, 31, v1
    v_lshl_add_u32 v{vT}, v{vT}, 5, v{vT+1}
    v_lshlrev_b32 v{vT}, 7, v{vT}
    s_mov_b32 s56, {WS_F1}
    s_waitcnt vmcnt(0)
    v_readfirstlane_b32 s34, v{vN}
    s_mov_b32 s35, 0
    s_cmp_lg_u32 s34, 0
    s_cbranch_scc1 {Lng}
    {Lnw}:
    s_sleep 4
    buffer_load_dwordx2 {vr(vN,2)}, v{vZ}, s[{S_DBG}:{S_DBG+3}], 0 offen {SC}
    s_waitcnt vmcnt(0)
    v_readfirstlane_b32 s34, v{vN}
    s_add_u32 s35, s35, 1
    s_cmp_ge_u32 s35, {SPIN_MAX}
    s_cbranch_scc1 {Lng}
    s_cmp_eq_u32 s34, 0
    s_cbranch_scc1 {Lnw}
    {Lng}:
    s_barrier
    """)
    stamp(a, 3)
    a(f"""
    s_cmp_lg_u32 s{S_WV}, 7
    s_cbranch_scc1 {Lnf}
    s_cmp_eq_u32 s{S_C}, 7
    s_cbranch_scc1 {Lnf}
    s_mov_b64 exec, 1
    buffer_store_dwordx2 {vr(vN,2)}, v{vZ}, s[{S_WS}:{S_WS+3}], s57 offen {SC}
    s_mov_b64 exec, -1
    {Lnf}:
    s_mov_b32 s35, 0
    s_cmp_lg_u32 s{S_WV}, 0
    s_cbranch_scc1 {Lpd}
    {Lp}:
    {SLP}
    buffer_load_dwordx2 {vr(vT+2,2)}, v{vT}, s[{S_WS}:{S_WS+3}], s56 offen {PSC}
    s_add_u32 s35, s35, 1
    s_waitcnt vmcnt(0)
    v_cmp_ne_u64 vcc, {vr(vT+2,2)}, {vr(vN,2)}
    s_cmp_ge_u32 s35, {SPIN_MAX}
    s_cbranch_scc1 {Lpd}
    s_cmp_lg_u64 vcc, 0
    s_cbranch_scc1 {Lp}
    {Lpd}:
    s_barrier
    """)
    stamp(a, 5)
    a(f"""
    s_mov_b32 m0, s{sM0}
    buffer_load_dwordx4 {vr(vQ,4)}, v{vL16}, s[{S_WS}:{S_WS+3}], s48 offen {SC}
    buffer_load_dwordx4 {vr(vQ+4,4)}, v{vL16}, s[{S_WS}:{S_WS+3}], s48 offen offset:1024 {SC}
    """)
    for st in range(3):
        if st:
            if "noorder" not in OPT: a("s_barrier")
            a(f"s_add_u32 m0, s{sM0}, {st*32768}")
            a(f"s_add_u32 s{sG}, s{sG}, 16384")
        for f in range(4):
            a(f"buffer_load_dwordx4 v{vL16}, s[{S_WS}:{S_WS+3}], s{sG} offen offset:{f*1024} {SC} lds")
    a("s_waitcnt vmcnt(8)")
    stamp(a, 6)
    a("s_barrier")
    stamp(a, 8)
    def ldsaddr(u, off):
        slot = (u // 4) % 3
        o = slot * 32768 + (u % 4) * 4096 + off
        return (vL, o) if o < 65536 - 16384 else (vL2, o - 65536)
    def rd(dst, u, off):
        r, o = ldsaddr(u, off)
        a(f"ds_read_b128 {vr(dst,4)}, v{r} offset:{o}")
    def rdK(u, f): rd(vK[u % 2] + 4 * f, u, f * 1024)
    def rdV(u, f): rd(vV[u % 4] + 4 * f, u, 2048 + f * 1024)
    def QK(u, i, K=None):
        C = "0" if i == 0 else vr(vS[u % 3], 16)
        K = vK[u % 2] if K is None else K
        a(f"v_mfma_f32_32x32x16_bf16 {vr(vS[u%3],16)}, {vr(K+4*i,4)}, {vr(vQ+4*i,4)}, {C}")
    def PV(u, i):
        a(f"v_smfmac_f32_32x32x32_bf16 {vr(vO,16)}, {vr(vV[u%4]+4*i,4)}, {vr(vS[u%3]+8*i,8)}, v{vIdx}")
    def E(u, r0, r1):
        for r in range(r0, r1):
            a(f"v_exp_f32 v{vS[u%3]+r}, v{vS[u%3]+r}")
    a(f"""
    ds_read_b128 {vr(vV[2],4)}, v{vL16}
    ds_read_b128 {vr(vV[2]+4,4)}, v{vL16} offset:1024
    """)
    rdK(0, 0); rdK(0, 1); rdK(1, 0); rdK(1, 1); rdV(0, 0); rdV(0, 1); rdV(1, 0); rdV(1, 1)
    a("s_waitcnt lgkmcnt(8)")
    QK(2, 0, vV[2]); QK(2, 1, vV[2])
    for r in range(16):
        a(f"v_mov_b32 v{vO+r}, 0")
    S = vS[2]
    a(f"v_max3_f32 v{vT}, v{S}, v{S+1}, v{S+2}")
    a(f"v_max3_f32 v{vT+1}, v{S+3}, v{S+4}, v{S+5}")
    for r in (6, 10):
        a(f"v_max3_f32 v{vT}, v{vT}, v{S+r}, v{S+r+1}")
        a(f"v_max3_f32 v{vT+1}, v{vT+1}, v{S+r+2}, v{S+r+3}")
    a(f"v_max3_f32 v{vT}, v{vT}, v{S+14}, v{S+15}")
    a(f"""
    v_max_f32 v{vT}, v{vT}, v{vT+1}
    v_mov_b32 v{vT+1}, v{vT}
    s_nop 1
    v_permlane32_swap_b32 v{vT}, v{vT+1}
    v_max_f32 v{vT}, v{vT}, v{vT+1}
    s_mov_b32 exec_lo, 0
    v_cvt_pk_bf16_f32 v{vQ+6}, -v{vT}, 0
    s_mov_b32 exec_lo, -1
    s_waitcnt lgkmcnt(4)
    """)
    QK(0, 0); QK(0, 1)
    rdK(2, 0); rdK(2, 1)
    a.c("wo DMA addresses (phase 3 prefetch)")
    a(f"""
    v_lshrrev_b32 v{vT}, 3, v0            ; 8w + r
    v_lshrrev_b32 v{vT+1}, 3, v1
    v_and_b32 v{vT+1}, 6, v{vT+1}
    v_and_b32 v{vT+2}, 7, v1
    v_xor_b32 v{vT+1}, v{vT+1}, v{vT+2}
    v_mul_u32_u24 v{vG3}, 896, v{vT}
    v_lshl_add_u32 v{vG3}, v{vT+1}, 4, v{vG3}
    s_lshr_b32 s49, s{S_HEAD}, 1
    s_min_u32 s49, s49, 6
    s_lshl_b32 s49, s49, 7
    s_lshl_b32 s50, s{S_WV}, 10
    """)
    stamp(a, 9)
    for t in range(32):
        if t + 1 < 32: QK(t + 1, 0)
        if 1 <= t <= 20 and (t - 1) % 4 == 0:
            st = (t - 1) // 4 + 3
            a(f"s_add_u32 s{sG}, s{sG}, 16384")
        elif 21 <= t <= 28:
            a(f"s_add_u32 s34, s49, {(t-21)*57344}")
        if t + 2 < 32: rdV(t + 2, 0)
        E(t, 0, 4)
        if t + 1 < 32: QK(t + 1, 1)
        if 1 <= t <= 20 and (t - 1) % 4 == 0:
            st = (t - 1) // 4 + 3
            a(f"s_add_u32 m0, s{sM0}, {(st % 3) * 32768}")
        elif 21 <= t <= 28:
            a(f"s_add_u32 m0, s50, {98304 + (t-21)*8192}")
        if t + 2 < 32: rdV(t + 2, 1)
        E(t, 4, 8)
        if t >= 1: PV(t - 1, 1)
        if t % 4 == 1 and t <= 25:
            a("s_waitcnt vmcnt(4) lgkmcnt(0)")
            a("s_barrier")
        if "noprio" not in OPT:
            a(f"s_setprio {3 - ((t - 1) % 4) if t <= 28 else 0}")
        if t + 3 < 32: rdK(t + 3, 0)
        if 1 <= t <= 20:
            a(f"buffer_load_dwordx4 v{vL16}, s[{S_WS}:{S_WS+3}], s{sG} offen offset:{((t-1)%4)*1024} {SC} lds")
        elif 21 <= t <= 28:
            a(f"buffer_load_dwordx4 v{vG3}, s[{S_WO}:{S_WO+3}], s34 offen lds")
        E(t, 8, 12)
        if t == 0:
            a("s_waitcnt lgkmcnt(5)")
        PV(t, 0)
        if t + 3 < 32:
            a("s_waitcnt lgkmcnt(3)")
            rdK(t + 3, 1)
        else:
            a("s_waitcnt lgkmcnt(0)")
        E(t, 12, 16)
    a("s_nop 1")
    PV(31, 1)
    stamp(a, 10)
    a.c("---- combine the two kv halves in slot 0 (stage 6 data is dead)")
    LB, LJ, Lslow, Lst = a.newlabel("L_halfB"), a.newlabel("L_join"), a.newlabel("L_slow"), a.newlabel("L_store")
    a(f"""
    s_mul_i32 s34, s{S_WV}, 2304
    s_xor_b32 s35, s{S_WV}, 4
    s_mul_i32 s35, s35, 2304
    v_add_u32 v{vT}, s34, v{vL16}
    v_add_u32 v{vT+1}, s35, v{vL16}
    v_lshl_add_u32 v{vT+2}, v1, 2, s34
    v_or_b32 v{vT+3}, 32, v1
    v_lshl_add_u32 v{vT+4}, v{vT+3}, 2, s35
    v_lshl_add_u32 v{vT+3}, v{vT+3}, 2, s34
    s_lshl_b32 s34, s{S_TILE}, 15
    s_lshl_b32 s35, s{S_HEAD}, 11
    s_add_u32 s54, s34, s35
    s_lshl_b32 s34, s{S_HALF}, 10
    s_add_u32 s54, s54, s34
    s_add_u32 s54, s54, {WS_O}
    s_lshl_b32 s56, s{S_QB}, 11
    s_add_u32 s56, s56, {WS_F2}
    s_lshl_b32 s57, s{S_HEAD}, 7
    s_add_u32 s57, s57, s56
    s_cmp_lg_u32 s{S_HALF}, 0
    s_cbranch_scc1 {LB}
    ds_write_b128 v{vT}, {vr(vO+8,4)}
    ds_write_b128 v{vT}, {vr(vO+12,4)} offset:1024
    ds_write_b32 v{vT+2}, v{vO+12} offset:2048
    s_branch {LJ}
    {LB}:
    ds_write_b128 v{vT}, {vr(vO,4)}
    ds_write_b128 v{vT}, {vr(vO+4,4)} offset:1024
    ds_write_b32 v{vT+2}, v{vO+12} offset:2048
    s_nop 1
    """)
    for r in range(8):
        a(f"v_mov_b32 v{vO+r}, v{vO+8+r}")
    a(f"""
    {LJ}:
    s_waitcnt vmcnt(0) lgkmcnt(0)
    s_barrier
    ds_read_b32 v{vX+8}, v{vT+3} offset:2048
    ds_read_b32 v{vX+9}, v{vT+4} offset:2048
    ds_read_b128 {vr(vX,4)}, v{vT+1}
    ds_read_b128 {vr(vX+4,4)}, v{vT+1} offset:1024
    s_waitcnt lgkmcnt(2)
    v_add_f32 v{vX+8}, v{vX+8}, v{vX+9}
    v_rcp_f32 v{vX+9}, v{vX+8}
    s_mov_b32 s34, 0x2b800000
    s_mov_b32 s35, 0x53800000
    s_waitcnt lgkmcnt(0)
    """)
    for r in range(8):
        a(f"v_add_f32 v{vO+r}, v{vO+r}, v{vX+r}")
    for r in range(8):
        a(f"v_fmac_f32 v{vX+8}, 0, v{vO+r}")
    a(f"""
    v_cmp_nle_f32 vcc, s34, v{vX+8}
    v_cmp_nge_f32 s[58:59], s35, v{vX+8}
    s_nop 0
    s_or_b64 vcc, vcc, s[58:59]
    s_cbranch_scc1 {Lslow}
    {Lst}:
    """)
    for r in range(8):
        a(f"v_mul_f32 v{vO+r}, v{vO+r}, v{vX+9}")
    for t in range(4):
        a(f"v_cvt_pk_bf16_f32 v{vX+t}, v{vO+2*t}, v{vO+2*t+1}")
    Lnz = a.newlabel("L_nz")
    a(f"""
    s_cmp_eq_u32 s{S_HALF}, 0
    s_cbranch_scc1 {Lnz}
    s_mov_b32 exec_lo, 0
    v_mov_b32 v{vX+2}, 0
    v_mov_b32 v{vX+3}, 0
    s_mov_b32 exec_lo, -1
    {Lnz}:
    buffer_store_dwordx4 {vr(vX,4)}, v{vL16}, s[{S_WS}:{S_WS+3}], s54 offen {SC}
    """)
    stamp(a, 11)
    vOg, vPa = 3, 4
    vA = 8
    vAc3 = 32
    vOf = 48
    vWo = 128
    WOB_L = 98304
    Lnf2 = a.newlabel('L_nof2')
    a(f"""
    v_lshrrev_b32 v{vT}, 4, v1            ; g
    v_and_b32 v{vT+1}, 15, v1             ; tok16
    v_bfe_u32 v{vT+2}, v1, 2, 2           ; r'
    v_bfe_u32 v{vT+3}, v1, 4, 1           ; g&1
    v_lshrrev_b32 v{vT+4}, 5, v1          ; g>>1
    v_lshl_add_u32 v{vT+5}, v{vT+3}, 2, v{vT+2}
    v_lshl_add_u32 v{vT+5}, v{vT+4}, 4, v{vT+5}   ; row
    v_lshrrev_b32 v{vT+6}, 1, v{vT+2}
    v_lshl_add_u32 v{vT+6}, v{vT+3}, 1, v{vT+6}   ; s0
    v_lshlrev_b32 v{vT+6}, 5, v{vT+6}
    v_lshl_add_u32 v{vT+5}, v{vT+5}, 7, v{vT+6}
    v_and_b32 v{vT+6}, 3, v1
    v_lshl_add_u32 v{vT+5}, v{vT+6}, 3, v{vT+5}
    s_mul_i32 s34, s{S_HALF}, {8*28*128}
    s_add_u32 s34, s34, {WOB_L}
    v_add_u32 v{vA}, s34, v{vT+5}
    v_xor_b32 v{vA+1}, 32, v{vA}
    v_xor_b32 v{vA+2}, 64, v{vA}
    v_xor_b32 v{vA+3}, 0x60, v{vA}
    """)
    def wr(hh):
        for ct in range(4):
            for u in range(2):
                a(f"ds_read_b64_tr_b16 {vr(vWo+16*hh+4*ct+2*u,2)}, v{vA+(ct^(2*(hh&1)))} offset:{(28*hh+8*u)*128}")
    for hh in range(4):
        wr(hh)
        a("s_waitcnt lgkmcnt(4)")
    a(f"""
    v_lshlrev_b32 v{vOg}, 9, v{vT}
    v_lshl_add_u32 v{vOg}, v{vT+1}, 4, v{vOg}
    v_lshlrev_b32 v{vPa}, 7, v{vT+1}
    s_lshl_b32 s34, s{S_QB}, 2
    s_and_b32 s35, s{S_HEAD}, 1
    s_lshl_b32 s35, s35, 1
    s_add_u32 s34, s34, s35
    s_lshr_b32 s35, s{S_T}, 1
    s_add_u32 s34, s34, s35
    s_lshl_b32 s34, s34, 15
    s_lshl_b32 s35, s{S_HALF}, 14
    s_add_u32 s48, s34, s35
    s_and_b32 s34, s{S_T}, 1
    s_lshl_b32 s34, s34, 8
    s_add_u32 s48, s48, s34
    s_add_u32 s48, s48, {WS_O}
    s_waitcnt vmcnt(0)
    s_barrier
    s_cmp_lg_u32 s{S_WV}, 7
    s_cbranch_scc1 {Lnf2}
    s_mov_b64 exec, 1
    buffer_store_dwordx2 {vr(vN,2)}, v{vZ}, s[{S_WS}:{S_WS+3}], s57 offen {SC}
    s_mov_b64 exec, -1
    {Lnf2}:
    s_cmp_ge_u32 s{S_HEAD}, 14
    s_cbranch_scc1 {"L_fin" if STAMPS else done}
    """)
    stamp(a, 12)
    for hh in range(4, 8):
        wr(hh)
        a("s_waitcnt lgkmcnt(4)")
    Lp, Lpd = a.newlabel("L_poll2"), a.newlabel("L_poll2d")
    a(f"""
    s_mov_b32 s35, 0
    s_cmp_lg_u32 s{S_WV}, 0
    s_cbranch_scc1 {Lpd}
    {Lp}:
    {SLP}
    buffer_load_dwordx2 {vr(vT+2,2)}, v{vPa}, s[{S_WS}:{S_WS+3}], s56 offen {PSC}
    s_add_u32 s35, s35, 1
    s_waitcnt vmcnt(0)
    v_cmp_ne_u64 vcc, {vr(vT+2,2)}, {vr(vN,2)}
    s_cmp_ge_u32 s35, {SPIN_MAX}
    s_cbranch_scc1 {Lpd}
    s_cmp_lg_u64 vcc, 0
    s_cbranch_scc1 {Lp}
    {Lpd}:
    s_barrier
    """)
    stamp(a, 13)
    for hh in range(8):
        a(f"s_add_u32 s34, s48, {hh*2048}")
        a(f"buffer_load_dwordx4 {vr(vOf+4*hh,4)}, v{vOg}, s[{S_WS}:{S_WS+3}], s34 offen {SC}")
    XB3 = 32768
    a(f"""
    s_lshl_b32 s34, s{S_WV}, 11
    s_xor_b32 s35, s34, 8192
    v_add_u32 v{vT+3}, s35, v{vL16}
    v_add_u32 v{vT+2}, s34, v{vL16}
    s_lshl_b32 s34, s{S_QB}, 7
    s_and_b32 s35, s{S_HEAD}, 1
    s_lshl_b32 s35, s35, 6
    s_add_u32 s34, s34, s35
    s_lshl_b32 s35, s{S_T}, 4
    s_add_u32 s34, s34, s35
    s_mul_i32 s34, s34, 896
    s_add_u32 s34, s34, s49
    s_lshl_b32 s35, s{S_HALF}, 6
    s_add_u32 s50, s34, s35
    v_mul_u32_u24 v{vT+4}, 896, v{vT+1}
    v_lshl_add_u32 v{vT+4}, v{vT}, 3, v{vT+4}
    """)
    for hh in range(8):
        a(f"s_waitcnt vmcnt({7-hh}) lgkmcnt(0)")
        if hh == 0 and "p3" in OPT: stamp(a, 8)
        for ct in range(4):
            C = "0" if hh == 0 else vr(vAc3 + 4 * ct, 4)
            a(f"v_mfma_f32_16x16x32_bf16 {vr(vAc3+4*ct,4)}, {vr(vWo+16*hh+4*ct,4)}, {vr(vOf+4*hh,4)}, {C}")
    stamp(a, 9) if "p3" in OPT else None
    LB3, LJ3 = a.newlabel("L_p3B"), a.newlabel("L_p3J")
    a(f"""
    s_nop 5
    s_cmp_lg_u32 s{S_HALF}, 0
    s_cbranch_scc1 {LB3}
    ds_write_b128 v{vT+2}, {vr(vAc3+8,4)} offset:{XB3}
    ds_write_b128 v{vT+2}, {vr(vAc3+12,4)} offset:{XB3+1024}
    s_branch {LJ3}
    {LB3}:
    ds_write_b128 v{vT+2}, {vr(vAc3,4)} offset:{XB3}
    ds_write_b128 v{vT+2}, {vr(vAc3+4,4)} offset:{XB3+1024}
    s_nop 1
    """)
    for r in range(8):
        a(f"v_mov_b32 v{vAc3+r}, v{vAc3+8+r}")
    a(f"""
    {LJ3}:
    s_waitcnt lgkmcnt(0)
    s_barrier
    ds_read_b128 {vr(vX,4)}, v{vT+3} offset:{XB3}
    ds_read_b128 {vr(vX+4,4)}, v{vT+3} offset:{XB3+1024}
    s_waitcnt lgkmcnt(0)
    """)
    for r in range(8):
        a(f"v_add_f32 v{vAc3+r}, v{vAc3+r}, v{vX+r}")
    for t in range(4):
        a(f"v_cvt_pk_bf16_f32 v{vX+t}, v{vAc3+2*t}, v{vAc3+2*t+1}")
    a(f"""
    buffer_store_dwordx2 {vr(vX,2)}, v{vT+4}, s[{S_OUT}:{S_OUT+3}], s50 offen
    buffer_store_dwordx2 {vr(vX+2,2)}, v{vT+4}, s[{S_OUT}:{S_OUT+3}], s50 offen offset:32
    """)
    if STAMPS:
        stamp(a, 10) if "p3" in OPT else None
        a("s_waitcnt vmcnt(0)")
        stamp(a, 14)
        a.label("L_fin")
        a("s_memrealtime s[96:97]")
        a("s_waitcnt lgkmcnt(0)")
        if "dbg" in OPT:
            Lx = a.newlabel("L_x")
            a(f"s_cmp_ge_u32 s{S_HEAD}, 14")
            a(f"s_cbranch_scc1 {done}")
            a(f"s_cmp_lg_u32 s{S_WV}, 4")
            a(f"s_cbranch_scc1 {done}")
            a("s_mov_b64 exec, 1")
            a("s_not_b32 s34, s98")
            a("v_mov_b32 v8, s34")
            a(f"buffer_atomic_umax v8, v{vZ}, s[{S_DBG}:{S_DBG+3}], 0 offen offset:8")
            for k, sreg in enumerate([98, 64, 66, 78, 68, 70, 74, 82, 84, 86, 90, 92, 96]):
                a(f"v_mov_b32 v{9+k}, s{sreg}")
                a(f"buffer_atomic_umax v{9+k}, v{vZ}, s[{S_DBG}:{S_DBG+3}], 0 offen offset:{12+4*k}")
            a("s_endpgm")
        for i in range(15):
            a(f"s_sub_u32 s{64+2*i}, s{64+2*i}, s100")
            a(f"v_mov_b32 v{8+i}, s{64+2*i}")
        a("v_mov_b32 v23, 0")
        a("v_mov_b32 v24, s98")
        a("v_mov_b32 v25, s96")
        a("v_mov_b32 v26, 0")
        a("v_mov_b32 v27, 0")
        a(f"""
        s_lshl_b32 s34, s2, 3
        s_add_u32 s34, s34, s{S_WV}
        s_lshl_b32 s34, s34, 7
        s_add_u32 s34, s34, {WS_ST}
        s_mov_b64 exec, 1
        buffer_store_dwordx4 v[8:11], v{vZ}, s[{S_WS}:{S_WS+3}], s34 offen
        buffer_store_dwordx4 v[12:15], v{vZ}, s[{S_WS}:{S_WS+3}], s34 offen offset:16
        buffer_store_dwordx4 v[16:19], v{vZ}, s[{S_WS}:{S_WS+3}], s34 offen offset:32
        buffer_store_dwordx4 v[20:23], v{vZ}, s[{S_WS}:{S_WS+3}], s34 offen offset:48
        buffer_store_dwordx4 v[24:27], v{vZ}, s[{S_WS}:{S_WS+3}], s34 offen offset:64
        """)
    a.label(done)
    a("s_endpgm")
    a.label(Lslow)
    L1, L2, Lh = a.newlabel("L_s1"), a.newlabel("L_s2"), a.newlabel("L_sh")
    sCnt = 48
    a(f"""
    s_mov_b32 exec_lo, 0
    v_mov_b32 v{vQ+6}, 0
    v_mov_b32 v{vQ+7}, 0
    s_mov_b32 exec_lo, -1
    v_mov_b32 v{vT}, 0xff800000
    s_lshl_b32 s{sG}, s{S_HEAD}, 18
    s_mov_b32 s{sCnt}, 0
    {L1}:
    buffer_load_dwordx4 {vr(vK[0],4)}, v{vL16}, s[{S_WS}:{S_WS+3}], s{sG} offen {SC}
    buffer_load_dwordx4 {vr(vK[0]+4,4)}, v{vL16}, s[{S_WS}:{S_WS+3}], s{sG} offen offset:1024 {SC}
    s_waitcnt vmcnt(0)
    """)
    QK(0, 0); QK(0, 1)
    a("s_nop 15")
    for r in range(0, 16, 2):
        a(f"v_max3_f32 v{vT}, v{vT}, v{vS[0]+r}, v{vS[0]+r+1}")
    a(f"""
    s_add_u32 s{sG}, s{sG}, 4096
    s_add_u32 s{sCnt}, s{sCnt}, 1
    s_cmp_lt_u32 s{sCnt}, 64
    s_cbranch_scc1 {L1}
    v_mov_b32 v{vT+1}, v{vT}
    s_nop 1
    v_permlane32_swap_b32 v{vT}, v{vT+1}
    s_nop 1
    v_max_f32 v{vT}, v{vT}, v{vT+1}
    v_and_b32 v{vT+1}, 0xffff0000, v{vT}       ; hi
    v_sub_f32 v{vT+2}, v{vT}, v{vT+1}
    v_and_b32 v{vT+3}, 0xffff0000, v{vT+2}     ; mid
    v_sub_f32 v{vT+2}, v{vT+2}, v{vT+3}        ; lo
    s_mov_b32 exec_lo, 0
    v_cvt_pk_bf16_f32 v{vQ+6}, -v{vT+1}, -v{vT+3}
    v_cvt_pk_bf16_f32 v{vQ+7}, -v{vT+2}, 0
    s_mov_b32 exec_lo, -1
    """)
    for r in range(16):
        a(f"v_mov_b32 v{vO+r}, 0")
    a(f"""
    s_lshl_b32 s{sG}, s{S_HEAD}, 18
    s_mov_b32 s{sCnt}, 0
    {L2}:
    buffer_load_dwordx4 {vr(vK[0],4)}, v{vL16}, s[{S_WS}:{S_WS+3}], s{sG} offen {SC}
    buffer_load_dwordx4 {vr(vK[0]+4,4)}, v{vL16}, s[{S_WS}:{S_WS+3}], s{sG} offen offset:1024 {SC}
    buffer_load_dwordx4 {vr(vV[0],4)}, v{vL16}, s[{S_WS}:{S_WS+3}], s{sG} offen offset:2048 {SC}
    buffer_load_dwordx4 {vr(vV[0]+4,4)}, v{vL16}, s[{S_WS}:{S_WS+3}], s{sG} offen offset:3072 {SC}
    s_waitcnt vmcnt(0)
    """)
    QK(0, 0); QK(0, 1)
    a("s_nop 15")
    E(0, 0, 16)
    a("s_nop 1")
    PV(0, 0); PV(0, 1)
    a(f"""
    s_nop 7
    s_add_u32 s{sG}, s{sG}, 4096
    s_add_u32 s{sCnt}, s{sCnt}, 1
    s_cmp_lt_u32 s{sCnt}, 64
    s_cbranch_scc1 {L2}
    s_nop 15
    v_mov_b32 v{vX+8}, v{vO+12}
    v_mov_b32 v{vX+9}, v{vO+12}
    s_nop 1
    v_permlane32_swap_b32 v{vX+8}, v{vX+9}
    s_nop 1
    v_rcp_f32 v{vX+9}, v{vX+9}
    s_cmp_eq_u32 s{S_HALF}, 0
    s_cbranch_scc1 {Lh}
    """)
    for r in range(8):
        a(f"v_mov_b32 v{vO+r}, v{vO+8+r}")
    a(f"""
    {Lh}:
    s_nop 1
    s_branch {Lst}
    """)
    a.raw('.section .rodata,"a"')
    a.raw(".p2align 6")
    a.raw(kernel_desc(NAME, 256, 102).rstrip("\n"))
    return a.text()

if __name__ == "__main__":
    out = sys.argv[1] if len(sys.argv) > 1 else "standalone__softmax_full_mha__prompt.s"
    OPT.update(sys.argv[2:])
    STAMPS = "stamps" in OPT
    open(out, "w").write(build())
```

```python
import sys, struct, math
from asmlib import *

WS_KV = 0
WS_Q = 0x400000
WS_O = 0x800000
WS_F1 = 0xa00000
WS_F2 = 0xa10000
WS_ST = 0xc00000
WS_BYTES = 0xd00000
XB, WB, WOB, OUTB = 1835008, 1204224, 401408, 1835008
QSCALE = struct.unpack("<I", struct.pack("<f", math.log2(math.e) / math.sqrt(28.0)))[0]
SPIN_MAX = 1 << 18

S_X, S_W, S_WS, S_WO, S_OUT, S_DBG = 8, 12, 16, 20, 24, 4
S_QB, S_JG, S_JL, S_WV, S_HEAD, S_ROT = 28, 29, 30, 31, 32, 33
S_TILE, S_HALF, S_T = 53, 60, 61
SC = "sc1"
OPT = set()
STAMPS = False
NAME = "standalone__softmax_full_mha__prompt_kernel"

def stamp(a, i):
    if STAMPS:
        a(f"s_mem{'real' if 'dbg' in OPT else ''}time s[{64+2*i}:{65+2*i}]")

def build():
    a = Asm()
    HEADER = open("standalone__softmax_full_mha__prompt.s.ref").read().split("; Override launch")[0]
    a.raw(HEADER.rstrip("\n"))
    a.raw("; @launch grid=(256,1,1) block=(512,1,1) lds=163840")
    a.raw('.amdgcn_target "amdgcn-amd-amdhsa--gfx950"\n.text')
    a.raw(f".globl {NAME}\n.p2align 8\n.type {NAME},@function\n{NAME}:")
    if STAMPS:
        a("s_memrealtime s[98:99]")
        a("s_memtime s[100:101]")
    done = "L_done"
    SCKV = '' if 'plainkv' in OPT else ('sc0 sc1' if 'sc01kv' in OPT else ('nt' if 'ntkv' in OPT else SC))
    PSC = "sc0 sc1" if "p01" in OPT else ("sc0 sc1 nt" if "p01nt" in OPT else ("sc1 nt" if "p1nt" in OPT else SC))
    OSC = 'sc1' if 'osc1' in OPT else ('sc0 sc1' if 'osc01' in OPT else ('nt' if 'ont' in OPT else ''))
    SLEEP = [int(o[5:]) for o in OPT if o.startswith('sleep')]
    SLP = f's_sleep {SLEEP[0]}' if SLEEP else 's_nop 0'
    vXg, vWg = 2, 3
    vWa = 4
    vZ = 7
    vXa = 8
    vT = 16
    vAcc = 32
    vD = 64
    vAd = 76
    vN = 80
    vWf = 128
    vXf = 144
    sC, sXo, sWo, sCol, sM, sXbase = 46, 47, 48, 49, 50, 51
    S_TH, S_C = 52, 55
    Lpoll = a.newlabel("L_sync1")
    ROTX = "s_nop 0"
    if "rot0" in OPT: ROTX = f"s_mov_b32 s{sC}, 0"
    if "rot2" in OPT: ROTX = f"s_and_b32 s{sC}, s{S_ROT}, 1\n    s_lshl_b32 s{sC}, s{sC}, 1"
    if "rot2b" in OPT: ROTX = f"s_and_b32 s{sC}, s{S_ROT}, 1\n    s_mul_i32 s{sC}, s{sC}, 3"
    if "rot4" in OPT: ROTX = f"s_and_b32 s{sC}, s{S_ROT}, 3"
    a(f"""
    s_cmp_ge_u32 s2, 256
    s_cbranch_scc1 {done}
    s_load_dwordx4 s[36:39], s[0:1], 0
    s_load_dwordx4 s[40:43], s[0:1], 16
    s_load_dwordx4 s[{S_DBG}:{S_DBG+3}], s[0:1], 32
    s_memrealtime s[62:63]
    v_lshrrev_b32 v{vT}, 6, v0
    v_and_b32 v1, 63, v0
    s_and_b32 s34, s2, 3                  ; tg
    s_bfe_u32 s35, s2, 0x30003            ; r5 & 7
    v_readfirstlane_b32 s{S_WV}, v{vT}
    s_lshl_b32 s{S_TH}, s34, 3
    s_add_u32 s{S_TH}, s{S_TH}, s35
    s_lshr_b32 s{S_C}, s2, 6              ; cl
    s_lshl_b32 s{S_ROT}, s{S_C}, 1
    s_add_u32 s{S_ROT}, s{S_ROT}, s35
    s_cmp_ge_u32 s{S_ROT}, 7
    s_cselect_b32 s35, 7, 0
    s_sub_u32 s{sC}, s{S_ROT}, s35
    {ROTX}
    s_and_b32 s35, s2, 4
    s_add_u32 s{S_C}, s{S_C}, s35
    s_mov_b32 s{S_X+2}, {XB}
    s_mov_b32 s{S_X+3}, 0x00020000
    s_mov_b32 s{S_W+2}, {WB}
    s_mov_b32 s{S_W+3}, 0x00020000
    v_lshrrev_b32 v{vT+2}, 3, v0          ; 8w + r
    v_and_b32 v{vT+1}, 7, v1              ; pos
    v_bfe_u32 v{vT+3}, v0, 4, 3           ; swz = ((8w+r)>>1)&7
    v_xor_b32 v{vT+3}, v{vT+3}, v{vT+1}
    v_mul_u32_u24 v{vXg}, 896, v{vT+2}
    v_lshl_add_u32 v{vXg}, v{vT+3}, 4, v{vXg}
    v_lshrrev_b32 v{vT+3}, 2, v1
    v_and_b32 v{vT+3}, 4, v{vT+3}         ; ((r>>1)&1)*4
    v_xor_b32 v{vT+3}, v{vT+3}, v{vT+1}
    v_mul_u32_u24 v{vWg}, 2688, v{vT+2}
    v_lshl_add_u32 v{vWg}, v{vT+3}, 4, v{vWg}
    s_mul_i32 s{sXbase}, s{S_TH}, 57344
    s_lshl_b32 s{sCol}, s{S_C}, 7
    s_lshl_b32 s{sM}, s{S_WV}, 10
    s_waitcnt lgkmcnt(0)
    s_mov_b32 s{S_X}, s36
    s_mov_b32 s{S_X+1}, s37
    s_mov_b32 s{S_W}, s38
    s_mov_b32 s{S_W+1}, s39
    """)
    NSLOT = 4
    def issue_chunk(i):
        sl = (i % NSLOT) * 32768
        a(f"""
        s_lshl_b32 s{sXo}, s{sC}, 7
        s_add_u32 s{sXo}, s{sXo}, s{sXbase}
        s_add_u32 m0, s{sM}, {sl}
        s_mul_i32 s{sWo}, s{sC}, 172032
        buffer_load_dwordx4 v{vXg}, s[{S_X}:{S_X+3}], s{sXo} offen lds
        s_add_u32 m0, s{sM}, {sl+8192}
        s_add_u32 s{sWo}, s{sWo}, s{sCol}
        buffer_load_dwordx4 v{vWg}, s[{S_W}:{S_W+3}], s{sWo} offen lds
        s_add_u32 m0, s{sM}, {sl+16384-896}
        s_add_u32 s{sC}, s{sC}, 1
        buffer_load_dwordx4 v{vWg}, s[{S_W}:{S_W+3}], s{sWo} offen offset:896 lds
        s_add_u32 m0, s{sM}, {sl+24576-1792}
        s_cmp_eq_u32 s{sC}, 7
        buffer_load_dwordx4 v{vWg}, s[{S_W}:{S_W+3}], s{sWo} offen offset:1792 lds
        s_cselect_b32 s{sC}, 0, s{sC}
        """)
    Lsp1, Lsp2, Lnn = a.newlabel("L_sp"), a.newlabel("L_sp"), a.newlabel("L_nonon")
    stamp(a, 0)
    a(f"""
    s_cmp_eq_u32 s{S_C}, 7
    s_cbranch_scc1 {Lsp1}
    """)
    issue_chunk(0)
    a(f"""
    {Lsp1}:
    s_mov_b32 s{S_WS}, s{S_DBG+2}
    s_mov_b32 s{S_WS+1}, s{S_DBG+3}
    s_mov_b32 s{S_WS+2}, {WS_BYTES}
    s_mov_b32 s{S_WS+3}, 0x00020000
    s_mov_b32 s{S_DBG+2}, 256
    s_mov_b32 s{S_DBG+3}, 0x00020000
    v_mov_b32 v{vZ}, 0
    v_mov_b32 v{vN}, 0
    s_or_b32 s34, s2, s{S_WV}
    s_cmp_lg_u32 s34, 0
    s_cbranch_scc1 {Lnn}
    s_or_b32 s62, s62, 1
    v_mov_b32 v{vN}, s62
    v_mov_b32 v{vN+1}, s63
    s_mov_b64 exec, 1
    buffer_store_dwordx2 {vr(vN,2)}, v{vZ}, s[{S_DBG}:{S_DBG+3}], 0 offen {SC}
    s_mov_b64 exec, -1
    {Lnn}:
    s_cmp_eq_u32 s{S_C}, 7
    s_cbranch_scc1 {Lsp2}
    """)
    issue_chunk(1)
    a(f"""
    {Lsp2}:
    s_mov_b32 s{S_WO}, s40
    s_mov_b32 s{S_WO+1}, s41
    s_mov_b32 s{S_OUT}, s42
    s_mov_b32 s{S_OUT+1}, s43
    s_mov_b32 s{S_WO+2}, {WOB}
    s_mov_b32 s{S_WO+3}, 0x00020000
    s_mov_b32 s{S_OUT+2}, {OUTB}
    s_mov_b32 s{S_OUT+3}, 0x00020000
    s_and_b32 s34, s2, 3
    s_lshl_b32 s34, s34, 2
    s_bfe_u32 s35, s2, 0x20003
    s_add_u32 s{S_QB}, s34, s35
    s_and_b32 s34, s2, 4
    s_lshl_b32 s34, s34, 1
    s_lshr_b32 s35, s2, 5
    s_add_u32 s{S_HEAD}, s34, s35
    s_and_b32 s{S_T}, s{S_WV}, 3
    s_lshr_b32 s{S_HALF}, s{S_WV}, 2
    s_lshl_b32 s34, s{S_QB}, 2
    s_add_u32 s{S_TILE}, s34, s{S_T}
    s_cmp_eq_u32 s{S_C}, 7
    s_cbranch_scc1 {Lpoll}
    v_and_b32 v{vT}, 31, v1               ; tok
    v_lshrrev_b32 v{vT+1}, 5, v1          ; h
    v_bfe_u32 v{vT+2}, v1, 1, 3
    v_xor_b32 v{vT+2}, v{vT+2}, v{vT+1}   ; h ^ swz
    v_lshlrev_b32 v{vT+3}, 7, v{vT}       ; tok*128
    v_lshl_add_u32 v{vT+2}, v{vT+2}, 4, v{vT+3}
    s_and_b32 s34, s{S_WV}, s{S_HALF}
    s_lshl_b32 s34, s34, 12
    v_add_u32 v{vXa}, s34, v{vT+2}
    v_xor_b32 v{vXa+1}, 32, v{vXa}
    v_xor_b32 v{vXa+2}, 64, v{vXa}
    v_xor_b32 v{vXa+3}, 0x60, v{vXa}
    v_add_u32 v{vXa+4}, 0x10000, v{vXa}
    v_add_u32 v{vXa+5}, 0x10000, v{vXa+1}
    v_add_u32 v{vXa+6}, 0x10000, v{vXa+2}
    v_add_u32 v{vXa+7}, 0x10000, v{vXa+3}
    v_and_b32 v{vT+2}, 3, v1              ; c'
    v_lshrrev_b32 v{vT+3}, 1, v{vT+2}
    v_lshlrev_b32 v{vT+4}, 1, v{vT+2}
    v_and_b32 v{vT+4}, 2, v{vT+4}
    v_or_b32 v{vT+3}, v{vT+3}, v{vT+4}    ; bitswap2(c')
    v_bfe_u32 v{vT+4}, v1, 4, 1           ; a
    v_bfe_u32 v{vT+5}, v1, 2, 2           ; r'
    v_lshl_add_u32 v{vT+6}, v{vT+1}, 3, v{vT+5}   ; 8h + r'
    s_lshr_b32 s34, s{S_WV}, s{S_HALF}
    s_and_b32 s56, s34, 1
    s_lshr_b32 s35, s{S_WV}, 1
    s_min_u32 s35, s35, 2                 ; type 0=Q 1=K 2=V
    s_cmp_eq_u32 s{S_HALF}, 0
    s_cselect_b64 vcc, -1, 0
    s_lshl_b32 s34, s56, 3
    v_cndmask_b32 v{vT+7}, v{vT+2}, v{vT+3}, vcc  ; cg
    v_lshl_add_u32 v{vT+7}, v{vT+4}, 2, v{vT+7}
    v_add_u32 v{vT+7}, s34, v{vT+7}
    v_lshlrev_b32 v{vT+8}, 2, v{vT+5}
    v_and_b32 v{vT+8}, 8, v{vT+8}
    v_xor_b32 v{vT+7}, v{vT+7}, v{vT+8}
    v_lshlrev_b32 v{vT+7}, 3, v{vT+7}
    v_lshl_add_u32 v{vWa}, v{vT+6}, 7, v{vT+7}
    s_lshl_b32 s35, s35, 13
    s_add_u32 s35, s35, 8192
    v_add_u32 v{vWa}, s35, v{vWa}
    v_add_u32 v{vWa+1}, 0x10000, v{vWa}
    s_lshl_b32 s34, s{S_C}, 1
    s_add_u32 s56, s56, s34               ; Ctg (0..13)
    s_lshl_b32 s54, s{S_TH}, 13
    s_lshl_b32 s34, s{S_C}, 5
    s_add_u32 s34, s34, s{S_TH}
    s_lshl_b32 s34, s34, 7
    s_add_u32 s57, s34, {WS_F1}
    """)
    def kloop(qk):
        for i in range(7):
            a(f"s_waitcnt vmcnt({4 if i < 6 else 1})")
            a("s_barrier")
            stamp(a, 1 + i) if i in (0, 6) else None
            if i + 2 <= 6:
                issue_chunk(i + 2)
            elif i == 5:
                a(f"buffer_load_dwordx2 {vr(vN,2)}, v{vZ}, s[{S_DBG}:{S_DBG+3}], 0 offen {SC}")
            sl = i % NSLOT
            hi = sl >= 2
            so = (sl % 2) * 32768
            nt = 2 if qk else 1
            per = 2 + nt
            def rds(sub):
                for u in range(2):
                    a(f"ds_read_b64_tr_b16 {vr(vWf+4*sub+2*u,2)}, v{vWa+hi} offset:{so+sub*2048+u*512}")
                for tt in range(nt):
                    a(f"ds_read_b128 {vr(vXf+16*tt+4*sub,4)}, v{vXa+sub+4*hi} offset:{so+tt*4096}")
            for sub in range(3): rds(sub)
            for sub in range(4):
                if sub == 0:
                    a(f"s_waitcnt lgkmcnt({2*per})")
                else:
                    a(f"s_waitcnt lgkmcnt({per*(3-sub)})")
                for tt in range(nt):
                    X, W = vXf + 16 * tt + 4 * sub, vWf + 4 * sub
                    A, B = (W, X) if qk else (X, W)
                    C = "0" if (i == 0 and sub == 0) else vr(vAcc + 16 * tt, 16)
                    a(f"v_mfma_f32_32x32x16_bf16 {vr(vAcc+16*tt,16)}, {vr(A,4)}, {vr(B,4)}, {C}")
                if sub == 0: rds(3)
    Lv, Lq = a.newlabel("L_vtype"), a.newlabel("L_pub")
    a(f"""
    s_cmp_lg_u32 s{S_HALF}, 0
    s_cbranch_scc1 {Lv}
    """)
    a.c("---- Q / K waves")
    a(f"""
    v_and_b32 v{vT+2}, 0x13, v{vT}
    v_lshlrev_b32 v{vT+3}, 1, v{vT}
    v_and_b32 v{vT+3}, 8, v{vT+3}
    v_lshrrev_b32 v{vT+4}, 1, v{vT}
    v_and_b32 v{vT+4}, 4, v{vT+4}
    v_or3_b32 v{vT+2}, v{vT+2}, v{vT+3}, v{vT+4}  ; swap23(tok)
    s_cmp_lt_u32 s{S_WV}, 2
    s_cselect_b64 vcc, -1, 0
    s_cselect_b32 s58, {WS_Q}, 0
    s_cselect_b32 s59, {QSCALE:#x}, 1.0
    s_cselect_b32 s34, 0, 0x3f803f80
    s_cselect_b32 s35, 0, 0x3f80
    v_cndmask_b32 v{vT+2}, v{vT+2}, v{vT}, vcc
    v_lshlrev_b32 v{vT+2}, 4, v{vT+2}
    v_mov_b32 v{vD+10}, s34
    v_mov_b32 v{vD+11}, s35
    s_add_u32 s54, s54, s58
    s_mov_b32 s{S_ROT}, s59
    s_lshl_b32 s34, s56, 2
    """)
    for aa in range(2):
        a(f"""
        v_add_u32 v{vT+3}, s34, v{vT+1}
        v_add_u32 v{vT+3}, {2*aa}, v{vT+3}       ; U
        v_mul_u32_u24 v{vT+4}, 37, v{vT+3}
        v_lshrrev_b32 v{vT+4}, 8, v{vT+4}        ; e
        v_mul_u32_u24 v{vT+5}, 7, v{vT+4}
        v_sub_u32 v{vAd+2+aa}, v{vT+3}, v{vT+5}  ; u7
        v_lshl_add_u32 v{vAd+aa}, v{vT+4}, 19, v{vT+2}
        v_lshrrev_b32 v{vT+5}, 2, v{vAd+2+aa}
        v_lshl_add_u32 v{vAd+aa}, v{vT+5}, 18, v{vAd+aa}
        v_and_b32 v{vT+5}, 3, v{vAd+2+aa}
        v_lshl_add_u32 v{vAd+aa}, v{vT+5}, 9, v{vAd+aa}
        """)
    kloop(True)
    a("s_nop 9")
    for tt in range(2):
        a(f"s_add_u32 s56, s54, 262144")
        for r in range(16):
            a(f"v_mul_f32 v{vAcc+16*tt+r}, s{S_ROT}, v{vAcc+16*tt+r}")
        for t in range(8):
            a(f"v_cvt_pk_bf16_f32 v{vD+t}, v{vAcc+16*tt+2*t}, v{vAcc+16*tt+2*t+1}")
        for aa in range(2):
            Ls = a.newlabel("L_ks")
            a(f"""
            v_cmp_eq_u32 vcc, 3, v{vAd+2+aa}
            v_mov_b32 v{vD+8}, v{vD+4*aa+2}
            v_mov_b32 v{vD+9}, v{vD+4*aa+3}
            v_cndmask_b32 v{vD+4*aa+2}, v{vD+4*aa+2}, v{vD+10}, vcc
            v_cndmask_b32 v{vD+4*aa+3}, v{vD+4*aa+3}, v{vD+11}, vcc
            buffer_store_dwordx4 {vr(vD+4*aa,4)}, v{vAd+aa}, s[{S_WS}:{S_WS+3}], s54 offen {SCKV}
            s_and_saveexec_b64 s[58:59], vcc
            s_cbranch_execz {Ls}
            buffer_store_dwordx4 {vr(vD+8,4)}, v{vAd+aa}, s[{S_WS}:{S_WS+3}], s56 offen {SCKV}
            s_nop 1
            {Ls}:
            s_mov_b64 exec, s[58:59]
            """)
        if tt == 0:
            a(f"s_add_u32 s54, s54, 4096")
    a(f"s_branch {Lq}")
    a.label(Lv)
    a.c("---- V waves")
    a(f"""
    s_lshl_b32 s34, s56, 5
    v_add_u32 v{vT+2}, s34, v{vT}            ; C
    v_mul_u32_u24 v{vT+3}, 2341, v{vT+2}
    v_lshrrev_b32 v{vT+3}, 16, v{vT+3}       ; head
    v_mul_u32_u24 v{vT+4}, 28, v{vT+3}
    v_sub_u32 v{vAd+2}, v{vT+2}, v{vT+4}     ; d
    v_lshl_add_u32 v{vT+4}, v{vT+1}, 5, v{vAd+2}
    v_lshlrev_b32 v{vT+4}, 4, v{vT+4}
    v_lshl_add_u32 v{vAd}, v{vT+3}, 18, v{vT+4}
    v_cmp_eq_u32 vcc, 0, v{vAd+2}
    v_mov_b32 v{vT+5}, 0x3f803f80
    s_and_b32 s34, s{S_WV}, 1
    s_lshl_b32 s34, s34, 12
    s_add_u32 s54, s54, s34
    v_cndmask_b32 v{vD+8}, 0, v{vT+5}, vcc
    v_cndmask_b32 v{vD+9}, 0, v{vT+5}, vcc
    v_cndmask_b32 v{vD+10}, 0, v{vT+5}, vcc
    v_cndmask_b32 v{vD+11}, 0, v{vT+5}, vcc
    """)
    kloop(False)
    Ls = a.newlabel("L_vs")
    a(f"""
    v_cmp_gt_u32 vcc, 4, v{vAd+2}
    s_nop 10
    """)
    for t in range(8):
        a(f"v_cvt_pk_bf16_f32 v{vD+t}, v{vAcc+2*t}, v{vAcc+2*t+1}")
    a(f"""
    buffer_store_dwordx4 {vr(vD,4)}, v{vAd}, s[{S_WS}:{S_WS+3}], s54 offen offset:2048 {SCKV}
    buffer_store_dwordx4 {vr(vD+4,4)}, v{vAd}, s[{S_WS}:{S_WS+3}], s54 offen offset:3072 {SCKV}
    s_and_saveexec_b64 s[58:59], vcc
    s_cbranch_execz {Ls}
    buffer_store_dwordx4 {vr(vD+8,4)}, v{vAd}, s[{S_WS}:{S_WS+3}], s54 offen offset:{2048+448} {SCKV}
    buffer_store_dwordx4 {vr(vD+8,4)}, v{vAd}, s[{S_WS}:{S_WS+3}], s54 offen offset:{3072+448} {SCKV}
    {Ls}:
    s_mov_b64 exec, s[58:59]
    """)
    a.label(Lq)
    stamp(a, 2)
    stamp(a, 4)
    a.label(Lpoll)
    vL16, vL, vL2, vIdx = 2, 3, 4, 5
    vO = 82
    vS = [32, 48, 64]
    vK = [128, 136]
    vV = [144, 152, 160, 168]
    vQ = 98
    vX = 106
    vG3 = 122
    sG, sM0 = 46, 47
    Lng, Lnw, Lnf = a.newlabel("L_ngot"), a.newlabel("L_nwait"), a.newlabel("L_nof1")
    Lp, Lpd = a.newlabel("L_poll1"), a.newlabel("L_poll1d")
    a(f"""
    v_lshlrev_b32 v{vL16}, 4, v1
    s_lshl_b32 s34, s{S_HALF}, 14
    v_add_u32 v{vL}, s34, v{vL16}
    v_add_u32 v{vL2}, 0x10000, v{vL}
    v_mov_b32 v{vIdx}, 0xdddddddd
    s_lshl_b32 s34, s{S_HALF}, 5
    s_add_u32 s34, s34, s{S_T}
    s_lshl_b32 s34, s34, 12
    s_lshl_b32 s{sG}, s{S_HEAD}, 18
    s_lshl_b32 s48, s{S_TILE}, 12
    s_add_u32 s48, s48, s{sG}
    s_add_u32 s48, s48, {WS_Q}            ; Q frags
    s_add_u32 s{sG}, s{sG}, s34
    s_lshl_b32 s{sM0}, s{S_WV}, 12
    s_mul_i32 s34, s{S_HEAD}, 28
    s_add_u32 s35, s34, 27
    s_lshr_b32 s34, s34, 6
    s_lshr_b32 s35, s35, 6
    v_mov_b32 v{vT}, s34
    s_mov_b32 exec_lo, 0
    v_mov_b32 v{vT}, s35
    s_mov_b32 exec_lo, -1
    v_and_b32 v{vT+1}, 31, v1
    v_lshl_add_u32 v{vT}, v{vT}, 5, v{vT+1}
    v_lshlrev_b32 v{vT}, 7, v{vT}
    s_mov_b32 s56, {WS_F1}
    s_waitcnt vmcnt(0)
    v_readfirstlane_b32 s34, v{vN}
    s_mov_b32 s35, 0
    s_cmp_lg_u32 s34, 0
    s_cbranch_scc1 {Lng}
    {Lnw}:
    s_sleep 4
    buffer_load_dwordx2 {vr(vN,2)}, v{vZ}, s[{S_DBG}:{S_DBG+3}], 0 offen {SC}
    s_waitcnt vmcnt(0)
    v_readfirstlane_b32 s34, v{vN}
    s_add_u32 s35, s35, 1
    s_cmp_ge_u32 s35, {SPIN_MAX}
    s_cbranch_scc1 {Lng}
    s_cmp_eq_u32 s34, 0
    s_cbranch_scc1 {Lnw}
    {Lng}:
    s_barrier
    """)
    stamp(a, 3)
    a(f"""
    s_cmp_lg_u32 s{S_WV}, 7
    s_cbranch_scc1 {Lnf}
    s_cmp_eq_u32 s{S_C}, 7
    s_cbranch_scc1 {Lnf}
    s_mov_b64 exec, 1
    buffer_store_dwordx2 {vr(vN,2)}, v{vZ}, s[{S_WS}:{S_WS+3}], s57 offen {SC}
    s_mov_b64 exec, -1
    {Lnf}:
    s_mov_b32 s35, 0
    s_cmp_lg_u32 s{S_WV}, 0
    s_cbranch_scc1 {Lpd}
    {Lp}:
    {SLP}
    buffer_load_dwordx2 {vr(vT+2,2)}, v{vT}, s[{S_WS}:{S_WS+3}], s56 offen {PSC}
    s_add_u32 s35, s35, 1
    s_waitcnt vmcnt(0)
    v_cmp_ne_u64 vcc, {vr(vT+2,2)}, {vr(vN,2)}
    s_cmp_ge_u32 s35, {SPIN_MAX}
    s_cbranch_scc1 {Lpd}
    s_cmp_lg_u64 vcc, 0
    s_cbranch_scc1 {Lp}
    {Lpd}:
    s_barrier
    """)
    stamp(a, 5)
    a(f"""
    s_mov_b32 m0, s{sM0}
    buffer_load_dwordx4 {vr(vQ,4)}, v{vL16}, s[{S_WS}:{S_WS+3}], s48 offen {SC}
    buffer_load_dwordx4 {vr(vQ+4,4)}, v{vL16}, s[{S_WS}:{S_WS+3}], s48 offen offset:1024 {SC}
    """)
    for st in range(3):
        if st:
            if "noorder" not in OPT: a("s_barrier")
            a(f"s_add_u32 m0, s{sM0}, {st*32768}")
            a(f"s_add_u32 s{sG}, s{sG}, 16384")
        for f in range(4):
            a(f"buffer_load_dwordx4 v{vL16}, s[{S_WS}:{S_WS+3}], s{sG} offen offset:{f*1024} {SC} lds")
    a("s_waitcnt vmcnt(8)")
    stamp(a, 6)
    a("s_barrier")
    stamp(a, 8)
    def ldsaddr(u, off):
        slot = (u // 4) % 3
        o = slot * 32768 + (u % 4) * 4096 + off
        return (vL, o) if o < 65536 - 16384 else (vL2, o - 65536)
    def rd(dst, u, off):
        r, o = ldsaddr(u, off)
        a(f"ds_read_b128 {vr(dst,4)}, v{r} offset:{o}")
    def rdK(u, f): rd(vK[u % 2] + 4 * f, u, f * 1024)
    def rdV(u, f): rd(vV[u % 4] + 4 * f, u, 2048 + f * 1024)
    def QK(u, i, K=None):
        C = "0" if i == 0 else vr(vS[u % 3], 16)
        K = vK[u % 2] if K is None else K
        a(f"v_mfma_f32_32x32x16_bf16 {vr(vS[u%3],16)}, {vr(K+4*i,4)}, {vr(vQ+4*i,4)}, {C}")
    def PV(u, i):
        a(f"v_smfmac_f32_32x32x32_bf16 {vr(vO,16)}, {vr(vV[u%4]+4*i,4)}, {vr(vS[u%3]+8*i,8)}, v{vIdx}")
    def E(u, r0, r1):
        for r in range(r0, r1):
            a(f"v_exp_f32 v{vS[u%3]+r}, v{vS[u%3]+r}")
    a(f"""
    ds_read_b128 {vr(vV[2],4)}, v{vL16}
    ds_read_b128 {vr(vV[2]+4,4)}, v{vL16} offset:1024
    """)
    rdK(0, 0); rdK(0, 1); rdK(1, 0); rdK(1, 1); rdV(0, 0); rdV(0, 1); rdV(1, 0); rdV(1, 1)
    a("s_waitcnt lgkmcnt(8)")
    QK(2, 0, vV[2]); QK(2, 1, vV[2])
    for r in range(16):
        a(f"v_mov_b32 v{vO+r}, 0")
    S = vS[2]
    a(f"v_max3_f32 v{vT}, v{S}, v{S+1}, v{S+2}")
    a(f"v_max3_f32 v{vT+1}, v{S+3}, v{S+4}, v{S+5}")
    for r in (6, 10):
        a(f"v_max3_f32 v{vT}, v{vT}, v{S+r}, v{S+r+1}")
        a(f"v_max3_f32 v{vT+1}, v{vT+1}, v{S+r+2}, v{S+r+3}")
    a(f"v_max3_f32 v{vT}, v{vT}, v{S+14}, v{S+15}")
    a(f"""
    v_max_f32 v{vT}, v{vT}, v{vT+1}
    v_mov_b32 v{vT+1}, v{vT}
    s_nop 1
    v_permlane32_swap_b32 v{vT}, v{vT+1}
    v_max_f32 v{vT}, v{vT}, v{vT+1}
    s_mov_b32 exec_lo, 0
    v_cvt_pk_bf16_f32 v{vQ+6}, -v{vT}, 0
    s_mov_b32 exec_lo, -1
    s_waitcnt lgkmcnt(4)
    """)
    QK(0, 0); QK(0, 1)
    rdK(2, 0); rdK(2, 1)
    a.c("wo DMA addresses (phase 3 prefetch)")
    a(f"""
    v_lshrrev_b32 v{vT}, 3, v0            ; 8w + r
    v_lshrrev_b32 v{vT+1}, 3, v1
    v_and_b32 v{vT+1}, 6, v{vT+1}
    v_and_b32 v{vT+2}, 7, v1
    v_xor_b32 v{vT+1}, v{vT+1}, v{vT+2}
    v_mul_u32_u24 v{vG3}, 896, v{vT}
    v_lshl_add_u32 v{vG3}, v{vT+1}, 4, v{vG3}
    s_lshr_b32 s49, s{S_HEAD}, 1
    s_min_u32 s49, s49, 6
    s_lshl_b32 s49, s49, 7
    s_lshl_b32 s50, s{S_WV}, 10
    """)
    stamp(a, 9)
    for t in range(32):
        if t + 1 < 32: QK(t + 1, 0)
        if 1 <= t <= 20 and (t - 1) % 4 == 0:
            st = (t - 1) // 4 + 3
            a(f"s_add_u32 s{sG}, s{sG}, 16384")
        elif 21 <= t <= 28:
            a(f"s_add_u32 s34, s49, {(t-21)*57344}")
        if t + 2 < 32: rdV(t + 2, 0)
        E(t, 0, 4)
        if t + 1 < 32: QK(t + 1, 1)
        if 1 <= t <= 20 and (t - 1) % 4 == 0:
            st = (t - 1) // 4 + 3
            a(f"s_add_u32 m0, s{sM0}, {(st % 3) * 32768}")
        elif 21 <= t <= 28:
            a(f"s_add_u32 m0, s50, {98304 + (t-21)*8192}")
        if t + 2 < 32: rdV(t + 2, 1)
        E(t, 4, 8)
        if t >= 1: PV(t - 1, 1)
        if t % 4 == 1 and t <= 25:
            a("s_waitcnt vmcnt(4) lgkmcnt(0)")
            a("s_barrier")
        if "noprio" not in OPT:
            a(f"s_setprio {3 - ((t - 1) % 4) if t <= 28 else 0}")
        if t + 3 < 32: rdK(t + 3, 0)
        if 1 <= t <= 20:
            a(f"buffer_load_dwordx4 v{vL16}, s[{S_WS}:{S_WS+3}], s{sG} offen offset:{((t-1)%4)*1024} {SC} lds")
        elif 21 <= t <= 28:
            a(f"buffer_load_dwordx4 v{vG3}, s[{S_WO}:{S_WO+3}], s34 offen lds")
        E(t, 8, 12)
        if t == 0:
            a("s_waitcnt lgkmcnt(5)")
        PV(t, 0)
        if t + 3 < 32:
            a("s_waitcnt lgkmcnt(3)")
            rdK(t + 3, 1)
        else:
            a("s_waitcnt lgkmcnt(0)")
        E(t, 12, 16)
    a("s_nop 1")
    PV(31, 1)
    stamp(a, 10)
    a.c("---- combine the two kv halves in slot 0 (stage 6 data is dead)")
    LB, LJ, Lslow, Lst = a.newlabel("L_halfB"), a.newlabel("L_join"), a.newlabel("L_slow"), a.newlabel("L_store")
    a(f"""
    s_mul_i32 s34, s{S_WV}, 2304
    s_xor_b32 s35, s{S_WV}, 4
    s_mul_i32 s35, s35, 2304
    v_add_u32 v{vT}, s34, v{vL16}
    v_add_u32 v{vT+1}, s35, v{vL16}
    v_lshl_add_u32 v{vT+2}, v1, 2, s34
    v_or_b32 v{vT+3}, 32, v1
    v_lshl_add_u32 v{vT+4}, v{vT+3}, 2, s35
    v_lshl_add_u32 v{vT+3}, v{vT+3}, 2, s34
    s_lshl_b32 s34, s{S_TILE}, 15
    s_lshl_b32 s35, s{S_HEAD}, 11
    s_add_u32 s54, s34, s35
    s_lshl_b32 s34, s{S_HALF}, 10
    s_add_u32 s54, s54, s34
    s_add_u32 s54, s54, {WS_O}
    s_lshl_b32 s56, s{S_QB}, 11
    s_add_u32 s56, s56, {WS_F2}
    s_lshl_b32 s57, s{S_HEAD}, 7
    s_add_u32 s57, s57, s56
    s_cmp_lg_u32 s{S_HALF}, 0
    s_cbranch_scc1 {LB}
    ds_write_b128 v{vT}, {vr(vO+8,4)}
    ds_write_b128 v{vT}, {vr(vO+12,4)} offset:1024
    ds_write_b32 v{vT+2}, v{vO+12} offset:2048
    s_branch {LJ}
    {LB}:
    ds_write_b128 v{vT}, {vr(vO,4)}
    ds_write_b128 v{vT}, {vr(vO+4,4)} offset:1024
    ds_write_b32 v{vT+2}, v{vO+12} offset:2048
    s_nop 1
    """)
    for r in range(8):
        a(f"v_mov_b32 v{vO+r}, v{vO+8+r}")
    a(f"""
    {LJ}:
    s_waitcnt vmcnt(0) lgkmcnt(0)
    s_barrier
    ds_read_b32 v{vX+8}, v{vT+3} offset:2048
    ds_read_b32 v{vX+9}, v{vT+4} offset:2048
    ds_read_b128 {vr(vX,4)}, v{vT+1}
    ds_read_b128 {vr(vX+4,4)}, v{vT+1} offset:1024
    s_waitcnt lgkmcnt(2)
    v_add_f32 v{vX+8}, v{vX+8}, v{vX+9}
    v_rcp_f32 v{vX+9}, v{vX+8}
    s_mov_b32 s34, 0x2b800000
    s_mov_b32 s35, 0x53800000
    s_waitcnt lgkmcnt(0)
    """)
    for r in range(8):
        a(f"v_add_f32 v{vO+r}, v{vO+r}, v{vX+r}")
    for r in range(8):
        a(f"v_fmac_f32 v{vX+8}, 0, v{vO+r}")
    a(f"""
    v_cmp_nle_f32 vcc, s34, v{vX+8}
    v_cmp_nge_f32 s[58:59], s35, v{vX+8}
    s_nop 0
    s_or_b64 vcc, vcc, s[58:59]
    s_cbranch_scc1 {Lslow}
    {Lst}:
    """)
    for r in range(8):
        a(f"v_mul_f32 v{vO+r}, v{vO+r}, v{vX+9}")
    for t in range(4):
        a(f"v_cvt_pk_bf16_f32 v{vX+t}, v{vO+2*t}, v{vO+2*t+1}")
    Lnz = a.newlabel("L_nz")
    a(f"""
    s_cmp_eq_u32 s{S_HALF}, 0
    s_cbranch_scc1 {Lnz}
    s_mov_b32 exec_lo, 0
    v_mov_b32 v{vX+2}, 0
    v_mov_b32 v{vX+3}, 0
    s_mov_b32 exec_lo, -1
    {Lnz}:
    buffer_store_dwordx4 {vr(vX,4)}, v{vL16}, s[{S_WS}:{S_WS+3}], s54 offen {SC}
    """)
    stamp(a, 11)
    vOg, vPa = 3, 4
    vA = 8
    vAc3 = 32
    vOf = 48
    vWo = 128
    WOB_L = 98304
    Lnf2 = a.newlabel('L_nof2')
    a(f"""
    v_lshrrev_b32 v{vT}, 4, v1            ; g
    v_and_b32 v{vT+1}, 15, v1             ; tok16
    v_bfe_u32 v{vT+2}, v1, 2, 2           ; r'
    v_bfe_u32 v{vT+3}, v1, 4, 1           ; g&1
    v_lshrrev_b32 v{vT+4}, 5, v1          ; g>>1
    v_lshl_add_u32 v{vT+5}, v{vT+3}, 2, v{vT+2}
    v_lshl_add_u32 v{vT+5}, v{vT+4}, 4, v{vT+5}   ; row
    v_lshrrev_b32 v{vT+6}, 1, v{vT+2}
    v_lshl_add_u32 v{vT+6}, v{vT+3}, 1, v{vT+6}   ; s0
    v_lshlrev_b32 v{vT+6}, 5, v{vT+6}
    v_lshl_add_u32 v{vT+5}, v{vT+5}, 7, v{vT+6}
    v_and_b32 v{vT+6}, 3, v1
    v_lshl_add_u32 v{vT+5}, v{vT+6}, 3, v{vT+5}
    s_mul_i32 s34, s{S_HALF}, {8*28*128}
    s_add_u32 s34, s34, {WOB_L}
    v_add_u32 v{vA}, s34, v{vT+5}
    v_xor_b32 v{vA+1}, 32, v{vA}
    v_xor_b32 v{vA+2}, 64, v{vA}
    v_xor_b32 v{vA+3}, 0x60, v{vA}
    """)
    def wr(hh):
        for ct in range(4):
            for u in range(2):
                a(f"ds_read_b64_tr_b16 {vr(vWo+16*hh+4*ct+2*u,2)}, v{vA+(ct^(2*(hh&1)))} offset:{(28*hh+8*u)*128}")
    for hh in range(4):
        wr(hh)
        a("s_waitcnt lgkmcnt(4)")
    a(f"""
    v_lshlrev_b32 v{vOg}, 9, v{vT}
    v_lshl_add_u32 v{vOg}, v{vT+1}, 4, v{vOg}
    v_lshlrev_b32 v{vPa}, 7, v{vT+1}
    s_lshl_b32 s34, s{S_QB}, 2
    s_and_b32 s35, s{S_HEAD}, 1
    s_lshl_b32 s35, s35, 1
    s_add_u32 s34, s34, s35
    s_lshr_b32 s35, s{S_T}, 1
    s_add_u32 s34, s34, s35
    s_lshl_b32 s34, s34, 15
    s_lshl_b32 s35, s{S_HALF}, 14
    s_add_u32 s48, s34, s35
    s_and_b32 s34, s{S_T}, 1
    s_lshl_b32 s34, s34, 8
    s_add_u32 s48, s48, s34
    s_add_u32 s48, s48, {WS_O}
    s_waitcnt vmcnt(0)
    s_barrier
    s_cmp_lg_u32 s{S_WV}, 7
    s_cbranch_scc1 {Lnf2}
    s_mov_b64 exec, 1
    buffer_store_dwordx2 {vr(vN,2)}, v{vZ}, s[{S_WS}:{S_WS+3}], s57 offen {SC}
    s_mov_b64 exec, -1
    {Lnf2}:
    s_cmp_ge_u32 s{S_HEAD}, 14
    s_cbranch_scc1 {"L_fin" if STAMPS else done}
    """)
    stamp(a, 12)
    for hh in range(4, 8):
        wr(hh)
        a("s_waitcnt lgkmcnt(4)")
    Lp, Lpd = a.newlabel("L_poll2"), a.newlabel("L_poll2d")
    a(f"""
    s_mov_b32 s35, 0
    s_cmp_lg_u32 s{S_WV}, 0
    s_cbranch_scc1 {Lpd}
    {Lp}:
    {SLP}
    buffer_load_dwordx2 {vr(vT+2,2)}, v{vPa}, s[{S_WS}:{S_WS+3}], s56 offen {PSC}
    s_add_u32 s35, s35, 1
    s_waitcnt vmcnt(0)
    v_cmp_ne_u64 vcc, {vr(vT+2,2)}, {vr(vN,2)}
    s_cmp_ge_u32 s35, {SPIN_MAX}
    s_cbranch_scc1 {Lpd}
    s_cmp_lg_u64 vcc, 0
    s_cbranch_scc1 {Lp}
    {Lpd}:
    s_barrier
    """)
    stamp(a, 13)
    for hh in range(8):
        a(f"s_add_u32 s34, s48, {hh*2048}")
        a(f"buffer_load_dwordx4 {vr(vOf+4*hh,4)}, v{vOg}, s[{S_WS}:{S_WS+3}], s34 offen {SC}")
    XB3 = 32768
    a(f"""
    s_lshl_b32 s34, s{S_WV}, 11
    s_xor_b32 s35, s34, 8192
    v_add_u32 v{vT+3}, s35, v{vL16}
    v_add_u32 v{vT+2}, s34, v{vL16}
    s_lshl_b32 s34, s{S_QB}, 7
    s_and_b32 s35, s{S_HEAD}, 1
    s_lshl_b32 s35, s35, 6
    s_add_u32 s34, s34, s35
    s_lshl_b32 s35, s{S_T}, 4
    s_add_u32 s34, s34, s35
    s_mul_i32 s34, s34, 896
    s_add_u32 s34, s34, s49
    s_lshl_b32 s35, s{S_HALF}, 6
    s_add_u32 s50, s34, s35
    v_mul_u32_u24 v{vT+4}, 896, v{vT+1}
    v_lshl_add_u32 v{vT+4}, v{vT}, 3, v{vT+4}
    """)
    for hh in range(8):
        a(f"s_waitcnt vmcnt({7-hh}) lgkmcnt(0)")
        if hh == 0 and "p3" in OPT: stamp(a, 8)
        for ct in range(4):
            C = "0" if hh == 0 else vr(vAc3 + 4 * ct, 4)
            a(f"v_mfma_f32_16x16x32_bf16 {vr(vAc3+4*ct,4)}, {vr(vWo+16*hh+4*ct,4)}, {vr(vOf+4*hh,4)}, {C}")
    stamp(a, 9) if "p3" in OPT else None
    LB3, LJ3 = a.newlabel("L_p3B"), a.newlabel("L_p3J")
    a(f"""
    s_nop 5
    s_cmp_lg_u32 s{S_HALF}, 0
    s_cbranch_scc1 {LB3}
    ds_write_b128 v{vT+2}, {vr(vAc3+8,4)} offset:{XB3}
    ds_write_b128 v{vT+2}, {vr(vAc3+12,4)} offset:{XB3+1024}
    s_branch {LJ3}
    {LB3}:
    ds_write_b128 v{vT+2}, {vr(vAc3,4)} offset:{XB3}
    ds_write_b128 v{vT+2}, {vr(vAc3+4,4)} offset:{XB3+1024}
    s_nop 1
    """)
    for r in range(8):
        a(f"v_mov_b32 v{vAc3+r}, v{vAc3+8+r}")
    a(f"""
    {LJ3}:
    s_waitcnt lgkmcnt(0)
    s_barrier
    ds_read_b128 {vr(vX,4)}, v{vT+3} offset:{XB3}
    ds_read_b128 {vr(vX+4,4)}, v{vT+3} offset:{XB3+1024}
    s_waitcnt lgkmcnt(0)
    """)
    for r in range(8):
        a(f"v_add_f32 v{vAc3+r}, v{vAc3+r}, v{vX+r}")
    for t in range(4):
        a(f"v_cvt_pk_bf16_f32 v{vX+t}, v{vAc3+2*t}, v{vAc3+2*t+1}")
    a(f"""
    buffer_store_dwordx2 {vr(vX,2)}, v{vT+4}, s[{S_OUT}:{S_OUT+3}], s50 offen {OSC}
    buffer_store_dwordx2 {vr(vX+2,2)}, v{vT+4}, s[{S_OUT}:{S_OUT+3}], s50 offen offset:32 {OSC}
    """)
    if STAMPS:
        stamp(a, 10) if "p3" in OPT else None
        a("s_waitcnt vmcnt(0)")
        stamp(a, 14)
        a.label("L_fin")
        a("s_memrealtime s[96:97]")
        a("s_waitcnt lgkmcnt(0)")
        if "dbg" in OPT:
            Lx = a.newlabel("L_x")
            a(f"s_cmp_ge_u32 s{S_HEAD}, 14")
            a(f"s_cbranch_scc1 {done}")
            a(f"s_cmp_lg_u32 s{S_WV}, 4")
            a(f"s_cbranch_scc1 {done}")
            a("s_mov_b64 exec, 1")
            a("s_not_b32 s34, s98")
            a("v_mov_b32 v8, s34")
            a(f"buffer_atomic_umax v8, v{vZ}, s[{S_DBG}:{S_DBG+3}], 0 offen offset:8")
            for k, sreg in enumerate([98, 64, 66, 78, 68, 70, 74, 82, 84, 86, 90, 92, 96]):
                a(f"v_mov_b32 v{9+k}, s{sreg}")
                a(f"buffer_atomic_umax v{9+k}, v{vZ}, s[{S_DBG}:{S_DBG+3}], 0 offen offset:{12+4*k}")
            a("s_endpgm")
        for i in range(15):
            a(f"s_sub_u32 s{64+2*i}, s{64+2*i}, s100")
            a(f"v_mov_b32 v{8+i}, s{64+2*i}")
        a("v_mov_b32 v23, 0")
        a("v_mov_b32 v24, s98")
        a("v_mov_b32 v25, s96")
        a("v_mov_b32 v26, 0")
        a("v_mov_b32 v27, 0")
        a(f"""
        s_lshl_b32 s34, s2, 3
        s_add_u32 s34, s34, s{S_WV}
        s_lshl_b32 s34, s34, 7
        s_add_u32 s34, s34, {WS_ST}
        s_mov_b64 exec, 1
        buffer_store_dwordx4 v[8:11], v{vZ}, s[{S_WS}:{S_WS+3}], s34 offen
        buffer_store_dwordx4 v[12:15], v{vZ}, s[{S_WS}:{S_WS+3}], s34 offen offset:16
        buffer_store_dwordx4 v[16:19], v{vZ}, s[{S_WS}:{S_WS+3}], s34 offen offset:32
        buffer_store_dwordx4 v[20:23], v{vZ}, s[{S_WS}:{S_WS+3}], s34 offen offset:48
        buffer_store_dwordx4 v[24:27], v{vZ}, s[{S_WS}:{S_WS+3}], s34 offen offset:64
        """)
    if "fixend" in OPT:
        Lz = a.newlabel("L_z")
        a(f"""
        v_readfirstlane_b32 s34, v{vN}
        s_nop 3
        s_add_u32 s34, s34, {[int(o[2:]) for o in OPT if o.startswith('T=')][0]}
        {Lz}:
        s_memrealtime s[62:63]
        s_waitcnt lgkmcnt(0)
        s_sub_u32 s35, s62, s34
        s_cmp_gt_i32 s35, -1
        s_cbranch_scc0 {Lz}
        """)
    a.label(done)
    a("s_endpgm")
    a.label(Lslow)
    L1, L2, Lh = a.newlabel("L_s1"), a.newlabel("L_s2"), a.newlabel("L_sh")
    sCnt = 48
    a(f"""
    s_mov_b32 exec_lo, 0
    v_mov_b32 v{vQ+6}, 0
    v_mov_b32 v{vQ+7}, 0
    s_mov_b32 exec_lo, -1
    v_mov_b32 v{vT}, 0xff800000
    s_lshl_b32 s{sG}, s{S_HEAD}, 18
    s_mov_b32 s{sCnt}, 0
    {L1}:
    buffer_load_dwordx4 {vr(vK[0],4)}, v{vL16}, s[{S_WS}:{S_WS+3}], s{sG} offen {SC}
    buffer_load_dwordx4 {vr(vK[0]+4,4)}, v{vL16}, s[{S_WS}:{S_WS+3}], s{sG} offen offset:1024 {SC}
    s_waitcnt vmcnt(0)
    """)
    QK(0, 0); QK(0, 1)
    a("s_nop 15")
    for r in range(0, 16, 2):
        a(f"v_max3_f32 v{vT}, v{vT}, v{vS[0]+r}, v{vS[0]+r+1}")
    a(f"""
    s_add_u32 s{sG}, s{sG}, 4096
    s_add_u32 s{sCnt}, s{sCnt}, 1
    s_cmp_lt_u32 s{sCnt}, 64
    s_cbranch_scc1 {L1}
    v_mov_b32 v{vT+1}, v{vT}
    s_nop 1
    v_permlane32_swap_b32 v{vT}, v{vT+1}
    s_nop 1
    v_max_f32 v{vT}, v{vT}, v{vT+1}
    v_and_b32 v{vT+1}, 0xffff0000, v{vT}       ; hi
    v_sub_f32 v{vT+2}, v{vT}, v{vT+1}
    v_and_b32 v{vT+3}, 0xffff0000, v{vT+2}     ; mid
    v_sub_f32 v{vT+2}, v{vT+2}, v{vT+3}        ; lo
    s_mov_b32 exec_lo, 0
    v_cvt_pk_bf16_f32 v{vQ+6}, -v{vT+1}, -v{vT+3}
    v_cvt_pk_bf16_f32 v{vQ+7}, -v{vT+2}, 0
    s_mov_b32 exec_lo, -1
    """)
    for r in range(16):
        a(f"v_mov_b32 v{vO+r}, 0")
    a(f"""
    s_lshl_b32 s{sG}, s{S_HEAD}, 18
    s_mov_b32 s{sCnt}, 0
    {L2}:
    buffer_load_dwordx4 {vr(vK[0],4)}, v{vL16}, s[{S_WS}:{S_WS+3}], s{sG} offen {SC}
    buffer_load_dwordx4 {vr(vK[0]+4,4)}, v{vL16}, s[{S_WS}:{S_WS+3}], s{sG} offen offset:1024 {SC}
    buffer_load_dwordx4 {vr(vV[0],4)}, v{vL16}, s[{S_WS}:{S_WS+3}], s{sG} offen offset:2048 {SC}
    buffer_load_dwordx4 {vr(vV[0]+4,4)}, v{vL16}, s[{S_WS}:{S_WS+3}], s{sG} offen offset:3072 {SC}
    s_waitcnt vmcnt(0)
    """)
    QK(0, 0); QK(0, 1)
    a("s_nop 15")
    E(0, 0, 16)
    a("s_nop 1")
    PV(0, 0); PV(0, 1)
    a(f"""
    s_nop 7
    s_add_u32 s{sG}, s{sG}, 4096
    s_add_u32 s{sCnt}, s{sCnt}, 1
    s_cmp_lt_u32 s{sCnt}, 64
    s_cbranch_scc1 {L2}
    s_nop 15
    v_mov_b32 v{vX+8}, v{vO+12}
    v_mov_b32 v{vX+9}, v{vO+12}
    s_nop 1
    v_permlane32_swap_b32 v{vX+8}, v{vX+9}
    s_nop 1
    v_rcp_f32 v{vX+9}, v{vX+9}
    s_cmp_eq_u32 s{S_HALF}, 0
    s_cbranch_scc1 {Lh}
    """)
    for r in range(8):
        a(f"v_mov_b32 v{vO+r}, v{vO+8+r}")
    a(f"""
    {Lh}:
    s_nop 1
    s_branch {Lst}
    """)
    a.raw('.section .rodata,"a"')
    a.raw(".p2align 6")
    a.raw(kernel_desc(NAME, 256, 102).rstrip("\n"))
    return a.text()

if __name__ == "__main__":
    out = sys.argv[1] if len(sys.argv) > 1 else "standalone__softmax_full_mha__prompt.s"
    OPT.update(sys.argv[2:])
    STAMPS = "stamps" in OPT
    open(out, "w").write(build())
```

```python
import sys, struct, math
from asmlib import *

WS_KV = 0
WS_Q = 0x400000
WS_O = 0x800000
WS_F1 = 0xa00000
WS_F2 = 0xa10000
WS_ST = 0xc00000
WS_BYTES = 0xd00000
OOB = 0x40000000
XB, WB, WOB, OUTB = 1835008, 1204224, 401408, 1835008
QSCALE = struct.unpack("<I", struct.pack("<f", math.log2(math.e) / math.sqrt(28.0)))[0]
SPIN_MAX = 1 << 18

S_X, S_W, S_WS, S_WO, S_OUT, S_DBG = 8, 12, 16, 20, 24, 4
S_QB, S_WV, S_HEAD, S_ROT = 28, 31, 32, 33
S_TH, S_TILE, S_C, S_HALF, S_T = 52, 53, 55, 60, 61
S_M0 = 36
S_OA, S_FB = 40, 41
SC = "sc1"
OPT = set()
STAMPS = False
NAME = "standalone__softmax_full_mha__prompt_kernel"
WS = f"s[{S_WS}:{S_WS+3}]"
DBG = f"s[{S_DBG}:{S_DBG+3}]"

def stamp(a, i):
    if STAMPS:
        a(f"s_memrealtime s[{64+2*i}:{65+2*i}]")

def optint(name, default):
    for o in OPT:
        if o.startswith(name + "="):
            return int(o.split("=")[1])
    return default

def build():
    a = Asm()
    HEADER = open("standalone__softmax_full_mha__prompt.s.ref").read().split("; Override launch")[0]
    a.raw(HEADER.rstrip("\n"))
    a.raw("; @launch grid=(256,1,1) block=(512,1,1) lds=163840")
    a.raw('.amdgcn_target "amdgcn-amd-amdhsa--gfx950"\n.text')
    a.raw(f".globl {NAME}\n.p2align 8\n.type {NAME},@function\n{NAME}:")
    if STAMPS:
        a("s_memrealtime s[98:99]")
    done = "L_done"
    OSC = "sc0 sc1" if "oplain" not in OPT else ""
    vXg, vWg = 2, 3
    vWa = 4
    vF = 6
    vZ = 7
    vXa = 8
    vT = 16
    vAcc = 32
    vWf = 48
    vD = 64
    vAd = 76
    vN = 80
    vWqa = 122
    vL16 = 123
    vSen = 124
    vXf = 128
    sC, sXo, sWo, sCol, sM, sXbase = 46, 47, 48, 49, 50, 51
    SLOT = 24576
    WQB = 98304
    Lspare, Lsync = a.newlabel("L_spare"), a.newlabel("L_sync1")
    a(f"""
    s_cmp_ge_u32 s2, 256
    s_cbranch_scc1 {done}
    s_load_dwordx4 s[36:39], s[0:1], 0
    s_load_dwordx4 s[40:43], s[0:1], 16
    s_load_dwordx4 {DBG}, s[0:1], 32
    s_memrealtime s[62:63]
    v_lshrrev_b32 v{vT}, 6, v0
    v_and_b32 v1, 63, v0
    s_and_b32 s34, s2, 3                  ; tg
    s_bfe_u32 s35, s2, 0x30003            ; r5 & 7
    v_readfirstlane_b32 s{S_WV}, v{vT}
    s_lshl_b32 s{S_TH}, s34, 3
    s_add_u32 s{S_TH}, s{S_TH}, s35
    s_lshr_b32 s{S_C}, s2, 6              ; cl
    s_lshl_b32 s{sC}, s{S_C}, 1
    s_add_u32 s{sC}, s{sC}, s35
    s_cmp_ge_u32 s{sC}, 7
    s_cselect_b32 s35, 7, 0
    s_sub_u32 s{sC}, s{sC}, s35
    s_and_b32 s35, s2, 4
    s_add_u32 s{S_C}, s{S_C}, s35
    s_mov_b32 s{S_X+2}, {XB}
    s_mov_b32 s{S_X+3}, 0x00020000
    s_mov_b32 s{S_W+2}, {WB}
    s_mov_b32 s{S_W+3}, 0x00020000
    v_lshrrev_b32 v{vT+2}, 3, v0          ; 8w + r
    v_and_b32 v{vT+1}, 7, v1              ; pos
    v_bfe_u32 v{vT+3}, v0, 4, 3           ; swz = ((8w+r)>>1)&7
    v_xor_b32 v{vT+3}, v{vT+3}, v{vT+1}
    v_mul_u32_u24 v{vXg}, 896, v{vT+2}
    v_lshl_add_u32 v{vXg}, v{vT+3}, 4, v{vXg}
    v_lshrrev_b32 v{vT+3}, 2, v1
    v_and_b32 v{vT+3}, 4, v{vT+3}         ; ((r>>1)&1)*4
    v_xor_b32 v{vT+3}, v{vT+3}, v{vT+1}
    v_mul_u32_u24 v{vWg}, 2688, v{vT+2}
    v_lshl_add_u32 v{vWg}, v{vT+3}, 4, v{vWg}
    s_mul_i32 s{sXbase}, s{S_TH}, 57344
    s_lshl_b32 s{sCol}, s{S_C}, 7
    s_lshl_b32 s{sM}, s{S_WV}, 10
    s_cmp_eq_u32 s{S_C}, 7
    s_waitcnt lgkmcnt(0)
    s_mov_b32 s{S_X}, s36
    s_mov_b32 s{S_X+1}, s37
    s_mov_b32 s{S_W}, s38
    s_mov_b32 s{S_W+1}, s39
    """)
    def adv():
        a(f"""
        s_add_u32 s{sC}, s{sC}, 1
        s_cmp_eq_u32 s{sC}, 7
        s_cselect_b32 s{sC}, 0, s{sC}
        """)
    def issue_chunk(i):
        sl = (i % 4) * SLOT
        a(f"""
        s_lshl_b32 s{sXo}, s{sC}, 7
        s_add_u32 s{sXo}, s{sXo}, s{sXbase}
        s_add_u32 m0, s{sM}, {sl}
        s_mul_i32 s{sWo}, s{sC}, 172032
        buffer_load_dwordx4 v{vXg}, s[{S_X}:{S_X+3}], s{sXo} offen lds
        s_add_u32 m0, s{sM}, {sl+8192-896}
        s_add_u32 s{sWo}, s{sWo}, s{sCol}
        buffer_load_dwordx4 v{vWg}, s[{S_W}:{S_W+3}], s{sWo} offen offset:896 lds
        s_add_u32 m0, s{sM}, {sl+16384-1792}
        s_add_u32 s{sC}, s{sC}, 1
        buffer_load_dwordx4 v{vWg}, s[{S_W}:{S_W+3}], s{sWo} offen offset:1792 lds
        s_cmp_eq_u32 s{sC}, 7
        s_cselect_b32 s{sC}, 0, s{sC}
        """)
    def issue_wq(i):
        a(f"""
        s_mul_i32 s{sWo}, s{sC}, 172032
        s_add_u32 m0, s{sM}, {WQB+i*8192}
        s_add_u32 s{sWo}, s{sWo}, s{sCol}
        buffer_load_dwordx4 v{vWg}, s[{S_W}:{S_W+3}], s{sWo} offen lds
        """)
        adv()
    def issue_chunk2(i):
        sl = (i % 4) * SLOT
        a(f"""
        s_lshl_b32 s{sXo}, s{sC}, 7
        s_add_u32 s{sXo}, s{sXo}, s{sXbase}
        s_add_u32 m0, s{sM}, {sl}
        s_mul_i32 s{sWo}, s{sC}, 172032
        buffer_load_dwordx4 v{vXg}, s[{S_X}:{S_X+3}], s{sXo} offen lds
        s_add_u32 m0, s{sM}, {(sl-4096) & 0xffffffff}
        s_add_u32 s{sWo}, s{sWo}, s{sCol}
        buffer_load_dwordx4 v{vXg2}, s[{S_X}:{S_X+3}], s{sXo} offen lds
        s_add_u32 m0, s{sM}, {sl+8192-896}
        s_add_u32 s{sC}, s{sC}, 1
        buffer_load_dwordx4 v{vWg}, s[{S_W}:{S_W+3}], s{sWo} offen offset:896 lds
        s_add_u32 m0, s{sM}, {sl+4096-896}
        s_nop 0
        buffer_load_dwordx4 v{vWg2}, s[{S_W}:{S_W+3}], s{sWo} offen offset:896 lds
        s_add_u32 m0, s{sM}, {sl+16384-1792}
        s_nop 0
        buffer_load_dwordx4 v{vWg}, s[{S_W}:{S_W+3}], s{sWo} offen offset:1792 lds
        s_add_u32 m0, s{sM}, {sl+12288-1792}
        s_cmp_eq_u32 s{sC}, 7
        buffer_load_dwordx4 v{vWg2}, s[{S_W}:{S_W+3}], s{sWo} offen offset:1792 lds
        s_cselect_b32 s{sC}, 0, s{sC}
        """)
    def issue_wq2(i):
        a(f"""
        s_mul_i32 s{sWo}, s{sC}, 172032
        s_add_u32 m0, s{sM}, {WQB+i*8192}
        s_add_u32 s{sWo}, s{sWo}, s{sCol}
        buffer_load_dwordx4 v{vWg}, s[{S_W}:{S_W+3}], s{sWo} offen lds
        s_add_u32 m0, s{sM}, {WQB+i*8192-4096}
        s_add_u32 s{sC}, s{sC}, 1
        buffer_load_dwordx4 v{vWg2}, s[{S_W}:{S_W+3}], s{sWo} offen lds
        s_cmp_eq_u32 s{sC}, 7
        s_cselect_b32 s{sC}, 0, s{sC}
        """)
    vXg2, vWg2 = 240, 241
    SPLIT = False
    Lsp1, Lnn = a.newlabel("L_sp"), a.newlabel("L_nonon")
    stamp(a, 0)
    PRE = optint("pre", 2)
    EARLY = "early" in OPT
    a(f"s_cbranch_scc1 {Lsp1}")
    if EARLY:
        a(f"s_cmp_lt_u32 s{S_WV}, 4")
        a(f"s_cbranch_scc1 {Lsp1}")
        a(f"v_subrev_u32 v{vXg2}, {32*896}, v{vXg}")
        a(f"v_subrev_u32 v{vWg2}, {32*2688}, v{vWg}")
        for i in range(PRE): issue_chunk2(i)
    else:
        for i in range(PRE): issue_chunk(i)
    a(f"""
    {Lsp1}:
    s_mov_b32 s{S_WS}, s{S_DBG+2}
    s_mov_b32 s{S_WS+1}, s{S_DBG+3}
    s_mov_b32 s{S_DBG+2}, 256
    s_mov_b32 s{S_DBG+3}, 0x00020000
    s_mov_b32 s{S_WS+2}, {WS_BYTES}
    s_mov_b32 s{S_WS+3}, 0x00020000
    s_mov_b32 s{S_WO}, s40
    s_mov_b32 s{S_WO+1}, s41
    s_mov_b32 s{S_OUT}, s42
    s_mov_b32 s{S_OUT+1}, s43
    s_mov_b32 s{S_WO+2}, {WOB}
    s_mov_b32 s{S_WO+3}, 0x00020000
    s_mov_b32 s{S_OUT+2}, {OUTB}
    s_mov_b32 s{S_OUT+3}, 0x00020000
    v_mov_b32 v{vZ}, 0
    s_bfe_u32 s{S_QB}, s2, 0x40003
    s_and_b32 s34, s2, 7
    s_lshl_b32 s34, s34, 1
    s_lshr_b32 s35, s2, 7
    s_add_u32 s{S_HEAD}, s34, s35         ;          head = 2*(b&7) + (b>>7)
    s_and_b32 s{S_T}, s{S_WV}, 3
    s_lshr_b32 s{S_HALF}, s{S_WV}, 2
    s_lshl_b32 s34, s{S_QB}, 2
    s_add_u32 s{S_TILE}, s34, s{S_T}
    s_lshl_b32 s34, s{S_TILE}, 15
    s_lshl_b32 s35, s{S_HEAD}, 11
    s_add_u32 s{S_OA}, s34, s35
    s_lshl_b32 s34, s{S_HALF}, 10
    s_add_u32 s{S_OA}, s{S_OA}, s34
    s_add_u32 s{S_OA}, s{S_OA}, {WS_O}
    s_mov_b32 s{S_FB}, {WS_F1}
    s_lshl_b32 s57, s2, 7
    s_add_u32 s57, s57, {WS_F1}
    v_lshlrev_b32 v{vL16}, 4, v1
    v_mov_b32 v{vT}, {OOB}
    v_cmp_eq_u32 vcc, 0x1c0, v0
    v_mov_b32 v{vSen}, -1
    v_mov_b32 v{vSen+1}, -1
    v_mov_b32 v{vSen+2}, -1
    v_mov_b32 v{vSen+3}, -1
    v_cndmask_b32 v{vF}, v{vT}, v{vZ}, vcc
    s_cmp_eq_u32 s{S_C}, 7
    s_cbranch_scc1 {Lspare}
    v_and_b32 v{vT}, 31, v1               ; tok
    v_lshrrev_b32 v{vT+1}, 5, v1          ; h
    s_bfe_u32 s56, s{S_WV}, 0x10001       ; Ct = (w>>1)&1
    s_lshl_b32 s34, s{S_C}, 1
    s_add_u32 s58, s56, s34               ; Ctg (0..13)
    s_and_b32 s34, s{S_WV}, 1
    s_lshl_b32 s34, s34, 12
    s_lshl_b32 s54, s{S_TH}, 13
    s_add_u32 s54, s54, s34               ; tile * 4096
    v_bfe_u32 v{vT+2}, v1, 1, 3
    v_xor_b32 v{vT+2}, v{vT+2}, v{vT+1}   ; h ^ swz
    v_lshlrev_b32 v{vT+3}, 7, v{vT}       ; tok*128
    v_lshl_add_u32 v{vT+2}, v{vT+2}, 4, v{vT+3}
    v_add_u32 v{vXa}, s34, v{vT+2}
    v_xor_b32 v{vXa+1}, 32, v{vXa}
    v_xor_b32 v{vXa+2}, 64, v{vXa}
    v_xor_b32 v{vXa+3}, 0x60, v{vXa}
    v_add_u32 v{vXa+4}, {2*SLOT}, v{vXa}
    v_add_u32 v{vXa+5}, {2*SLOT}, v{vXa+1}
    v_add_u32 v{vXa+6}, {2*SLOT}, v{vXa+2}
    v_add_u32 v{vXa+7}, {2*SLOT}, v{vXa+3}
    v_and_b32 v{vT+2}, 3, v1              ; c'
    v_lshrrev_b32 v{vT+3}, 1, v{vT+2}
    v_lshlrev_b32 v{vT+4}, 1, v{vT+2}
    v_and_b32 v{vT+4}, 2, v{vT+4}
    v_or_b32 v{vT+3}, v{vT+3}, v{vT+4}    ; bitswap2(c')
    v_bfe_u32 v{vT+4}, v1, 4, 1           ; a
    v_bfe_u32 v{vT+5}, v1, 2, 2           ; r'
    v_lshl_add_u32 v{vT+6}, v{vT+1}, 3, v{vT+5}   ; 8h + r'
    s_cmp_eq_u32 s{S_HALF}, 0
    s_cselect_b64 vcc, -1, 0
    s_lshl_b32 s34, s56, 3
    v_cndmask_b32 v{vT+7}, v{vT+2}, v{vT+3}, vcc  ; cg
    v_lshl_add_u32 v{vT+7}, v{vT+4}, 2, v{vT+7}
    v_add_u32 v{vT+7}, s34, v{vT+7}
    v_lshlrev_b32 v{vT+8}, 2, v{vT+5}
    v_and_b32 v{vT+8}, 8, v{vT+8}
    v_xor_b32 v{vT+7}, v{vT+7}, v{vT+8}
    v_lshlrev_b32 v{vT+7}, 3, v{vT+7}
    v_lshl_add_u32 v{vWa}, v{vT+6}, 7, v{vT+7}
    v_add_u32 v{vWqa}, {WQB}, v{vWa}
    s_lshl_b32 s35, s{S_HALF}, 13
    s_add_u32 s35, s35, 8192
    v_add_u32 v{vWa}, s35, v{vWa}
    v_add_u32 v{vWa+1}, {2*SLOT}, v{vWa}
    v_mov_b32 v{vT+7}, {OOB}
    """)
    def nonce_wait():
        Lng, Lnw = a.newlabel("L_ngot"), a.newlabel("L_nwait")
        a(f"""
        v_readfirstlane_b32 s34, v{vN}
        s_mov_b32 s35, 0
        s_cmp_lg_u32 s34, 0
        s_cbranch_scc1 {Lng}
        {Lnw}:
        s_sleep 4
        buffer_load_dwordx2 {vr(vN,2)}, v{vZ}, {DBG}, 0 offen {SC}
        s_waitcnt vmcnt(0)
        v_readfirstlane_b32 s34, v{vN}
        s_add_u32 s35, s35, 1
        s_cmp_ge_u32 s35, {SPIN_MAX}
        s_cbranch_scc1 {Lng}
        s_cmp_eq_u32 s34, 0
        s_cbranch_scc1 {Lnw}
        {Lng}:
        """)
    NQ1 = optint("nq1", 4)
    CLA = optint("cla", 1)
    def kloop(kt, extra):
        issued = [3] * PRE
        seq = []
        for i in range(PRE): seq += [("c", i)] * ((0 if kt else 6) if EARLY else 3)
        for ins in extra.get(-1, []):
            a(ins); seq.append(("x", -1))
        vW2 = [vWf, 82]
        def mm(i, waits):
            for sub in range(4):
                if waits: a(f"s_waitcnt lgkmcnt({3*(3-sub)})")
                X, W = vXf + 16 * i + 4 * sub, vW2[i % 2] + 4 * sub
                A, B = (W, X) if kt else (X, W)
                C = "0" if (i == 0 and sub == 0) else vr(vAcc, 16)
                if "nomm" not in OPT or i == 0: a(f"v_mfma_f32_32x32x16_bf16 {vr(vAcc,16)}, {vr(A,4)}, {vr(B,4)}, {C}")
        for i in range(7):
            mine = [k for k, t in enumerate(seq) if t == ("c", i)]
            a(f"s_waitcnt vmcnt({len(seq) - 1 - max(mine)}) lgkmcnt(0)" if mine else "s_waitcnt lgkmcnt(0)")
            a("s_barrier")
            stamp(a, 1 + i) if i in (0, 6) else None
            if "cyc" in OPT and i in (0, 6): a(f"s_memtime s[{42 if i == 0 else 44}:{43 if i == 0 else 45}]")
            sl = i % 4
            hi = sl >= 2
            so = (sl % 2) * SLOT
            for sub in range(4):
                for u in range(2):
                    a(f"ds_read_b64_tr_b16 {vr(vW2[i%2]+4*sub+2*u,2)}, v{vWa+hi} offset:{so+sub*2048+u*512}")
                a(f"ds_read_b128 {vr(vXf+16*i+4*sub,4)}, v{vXa+sub+4*hi} offset:{so}")
            if "pipe" in OPT and i >= 1: mm(i - 1, False)
            if SPLIT and kt:
                pass
            elif i + PRE <= 6:
                (issue_chunk2 if SPLIT else issue_chunk)(i + PRE); seq += [("c", i + PRE)] * (6 if SPLIT else 3)
            elif i + PRE == 7:
                for q in range(NQ1):
                    issue_wq(q); seq += [("q", q)]
            elif i + PRE == 8:
                for q in range(NQ1, 7):
                    issue_wq(q); seq += [("q", q)]
            for ins in extra.get(i, []):
                a(ins); seq.append(("x", i))
            if "pipe" not in OPT or i == 6: mm(i, True)
    oclear = f"buffer_store_dwordx4 {vr(vSen,4)}, v{vL16}, {WS}, s{S_OA} offen {SC}"
    tagload = f"buffer_load_dwordx2 {vr(vN,2)}, v{vZ}, {DBG}, 0 offen {SC}"
    Lv = a.newlabel("L_vtype")
    Lpub = a.newlabel("L_pub")
    a(f"""
    s_cmp_lg_u32 s{S_HALF}, 0
    s_cbranch_scc1 {Lv}
    """)
    a.c("---- waves 0..3: K tile, then Q tile")
    a(f"""
    v_and_b32 v{vT+2}, 0x13, v{vT}
    v_lshlrev_b32 v{vT+3}, 1, v{vT}
    v_and_b32 v{vT+3}, 8, v{vT+3}
    v_lshrrev_b32 v{vT+4}, 1, v{vT}
    v_and_b32 v{vT+4}, 4, v{vT+4}
    v_or3_b32 v{vT+2}, v{vT+2}, v{vT+3}, v{vT+4}  ; swap23(tok)
    v_lshlrev_b32 v{vT+2}, 4, v{vT+2}
    v_mov_b32 v{vD+10}, 0x3f803f80
    v_mov_b32 v{vD+11}, 0x3f80
    v_mov_b32 v{vT+14}, 0x3f803f80
    v_mov_b32 v{vT+15}, 0x3f80
    s_add_u32 s59, s54, {WS_Q}
    s_lshl_b32 s34, s58, 2
    """)
    for aa in range(2):
        a(f"""
        v_add_u32 v{vT+3}, s34, v{vT+1}
        v_add_u32 v{vT+3}, {2*aa}, v{vT+3}       ; U
        v_mul_u32_u24 v{vT+4}, 37, v{vT+3}
        v_lshrrev_b32 v{vT+4}, 8, v{vT+4}        ; e
        v_mul_u32_u24 v{vT+5}, 7, v{vT+4}
        v_sub_u32 v{vT+6}, v{vT+3}, v{vT+5}      ; u7
        v_cmp_eq_u32 s[{S_M0+2*aa}:{S_M0+2*aa+1}], 3, v{vT+6}
        v_lshl_add_u32 v{vAd+aa}, v{vT+4}, 19, v{vT+2}
        v_lshrrev_b32 v{vT+5}, 2, v{vT+6}
        v_lshl_add_u32 v{vAd+aa}, v{vT+5}, 18, v{vAd+aa}
        v_and_b32 v{vT+5}, 3, v{vT+6}
        v_lshl_add_u32 v{vAd+aa}, v{vT+5}, 9, v{vAd+aa}
        v_add_u32 v{vT+5}, 0x40000, v{vAd+aa}
        v_cndmask_b32 v{vAd+2+aa}, v{vT+7}, v{vT+5}, s[{S_M0+2*aa}:{S_M0+2*aa+1}]
        """)
    kloop(True, {4: [tagload]})
    def unit_pack(aa, acc):
        L = [f"v_cvt_pk_bf16_f32 v{vD+4*aa+t}, v{acc+8*aa+2*t}, v{acc+8*aa+2*t+1}" for t in range(4)]
        X2 = vD + 8 if aa == 0 else vT + 12
        L += [f"v_mov_b32 v{X2}, v{vD+4*aa+2}", f"v_mov_b32 v{X2+1}, v{vD+4*aa+3}",
              f"v_cndmask_b32 v{vD+4*aa+2}, v{vD+4*aa+2}, v{vD+10}, s[{S_M0+2*aa}:{S_M0+2*aa+1}]",
              f"v_cndmask_b32 v{vD+4*aa+3}, v{vD+4*aa+3}, v{vD+11}, s[{S_M0+2*aa}:{S_M0+2*aa+1}]"]
        return L
    def unit_store(aa, soff):
        X2 = vD + 8 if aa == 0 else vT + 12
        return [f"buffer_store_dwordx4 {vr(vD+4*aa,4)}, v{vAd+aa}, {WS}, {soff} offen {SC}",
                f"buffer_store_dwordx4 {vr(X2,4)}, v{vAd+2+aa}, {WS}, {soff} offen {SC}"]
    a(f"s_waitcnt vmcnt({7 - NQ1})")
    a("s_barrier")
    vW2 = [vWf, 82]
    vQa = 98
    def qrd(i, sub):
        for u in range(2):
            a(f"ds_read_b64_tr_b16 {vr(vW2[i%2]+4*sub+2*u,2)}, v{vWqa} offset:{i*8192+sub*2048+u*512}")
    for sub in range(4): qrd(0, sub)
    KST = optint("kst", 8)
    fill = {}
    pk = unit_pack(0, vAcc) + unit_pack(1, vAcc)
    for m in range(4): fill[m + 1] = pk[4 * m:4 * m + 4]
    ks = unit_store(0, "s54") + unit_store(1, "s54")
    for m in range(4): fill[KST + m] = fill.get(KST + m, []) + [ks[m]]
    fill[20] = [f"v_mov_b32 v{vD+10}, 0", f"v_mov_b32 v{vD+11}, 0", f"v_mov_b32 v{vT+14}, 0", f"v_mov_b32 v{vT+15}, 0", f"s_mov_b32 s34, {QSCALE:#x}"]
    nst = 0
    for i in range(7):
        if i + 1 == NQ1:
            a(f"s_waitcnt vmcnt({nst})")
            a("s_barrier")
        for sub in range(4):
            if i + 1 < 7:
                qrd(i + 1, sub)
                a("s_waitcnt lgkmcnt(8)")
            else:
                a(f"s_waitcnt lgkmcnt({6-2*sub})")
            C = "0" if (i == 0 and sub == 0) else vr(vQa, 16)
            a(f"v_mfma_f32_32x32x16_bf16 {vr(vQa,16)}, {vr(vW2[i%2]+4*sub,4)}, {vr(vXf+16*i+4*sub,4)}, {C}")
            for ins in fill.get(4 * i + sub, []):
                a(ins)
                if ins.startswith("buffer_store"): nst += 1
            if 4 * i + sub == KST + 3: stamp(a, 2)
    a("s_nop 11")
    for aa in range(2):
        for r in range(8 * aa, 8 * aa + 8):
            a(f"v_mul_f32 v{vQa+r}, s34, v{vQa+r}")
        for ins in unit_pack(aa, vQa) + unit_store(aa, "s59"): a(ins)
    stamp(a, 4)
    a(f"s_branch {Lpub}")
    a.label(Lv)
    a.c("---- waves 4..7: V tile")
    a(f"""
    s_lshl_b32 s34, s58, 5
    v_add_u32 v{vT+2}, s34, v{vT}            ; C
    v_mul_u32_u24 v{vT+3}, 2341, v{vT+2}
    v_lshrrev_b32 v{vT+3}, 16, v{vT+3}       ; head
    v_mul_u32_u24 v{vT+4}, 28, v{vT+3}
    v_sub_u32 v{vT+6}, v{vT+2}, v{vT+4}      ; d
    v_lshl_add_u32 v{vT+4}, v{vT+1}, 5, v{vT+6}
    v_lshlrev_b32 v{vT+4}, 4, v{vT+4}
    v_lshl_add_u32 v{vAd}, v{vT+3}, 18, v{vT+4}
    v_cmp_eq_u32 vcc, 0, v{vT+6}
    v_mov_b32 v{vT+5}, 0x3f803f80
    s_nop 0
    v_cndmask_b32 v{vD+8}, 0, v{vT+5}, vcc
    v_cndmask_b32 v{vD+9}, 0, v{vT+5}, vcc
    v_cndmask_b32 v{vD+10}, 0, v{vT+5}, vcc
    v_cndmask_b32 v{vD+11}, 0, v{vT+5}, vcc
    v_cmp_gt_u32 vcc, 4, v{vT+6}
    s_nop 1
    v_cndmask_b32 v{vAd+1}, v{vT+7}, v{vAd}, vcc
    """)
    vpad = [f"buffer_store_dwordx4 {vr(vD+8,4)}, v{vAd+1}, {WS}, s54 offen offset:{o+448} {SC}" for o in (2048, 3072)]
    if "nowqpf" not in OPT:
        Lpf = a.newlabel("L_pf")
        a(f"""
        s_and_b32 s34, s{S_TH}, 7
        s_mul_i32 s34, s34, {56*2688}
        s_add_u32 s34, s34, s{sCol}
        v_and_b32 v{vT+8}, 15, v1
        v_min_u32 v{vT+8}, 13, v{vT+8}
        v_mad_u32_u24 v{vT+8}, s{S_T}, 14, v{vT+8}
        v_mul_u32_u24 v{vT+8}, 2688, v{vT+8}
        """)
        pf = [f"buffer_load_dword v{vT+9}, v{vT+8}, s[{S_W}:{S_W+3}], s34 offen"]
    else:
        pf = []
    kloop(False, {-1: pf, 4: [tagload]})
    a(f"s_waitcnt vmcnt({7 - NQ1})")
    a("s_barrier")
    a("s_nop 9")
    for t in range(8):
        a(f"v_cvt_pk_bf16_f32 v{vD+t}, v{vAcc+2*t}, v{vAcc+2*t+1}")
    if "vlate" in OPT:
        a(f"s_waitcnt vmcnt(0)")
        a("s_barrier")
    for i in range(2):
        a(f"buffer_store_dwordx4 {vr(vD+4*i,4)}, v{vAd}, {WS}, s54 offen offset:{2048+1024*i} {SC}")
    for ins in vpad: a(ins)
    stamp(a, 2)
    if "vlate" not in OPT:
        a(f"s_waitcnt vmcnt(4)")
        a("s_barrier")
    a.label(Lpub)
    a("s_waitcnt vmcnt(0)")
    nonce_wait()
    a("s_barrier")
    stamp(a, 3)
    Lp, Lpd = a.newlabel("L_poll1"), a.newlabel("L_poll1d")
    a(f"""
    buffer_store_dwordx2 {vr(vN,2)}, v{vF}, {WS}, s57 offen {SC}
    s_cmp_lg_u32 s{S_WV}, 4
    s_cbranch_scc1 {Lsync}
    s_mul_i32 s34, s{S_HEAD}, 28
    s_add_u32 s35, s34, 27
    s_lshr_b32 s34, s34, 6
    s_lshr_b32 s35, s35, 6
    v_mov_b32 v{vT}, s34
    s_mov_b32 exec_lo, 0
    v_mov_b32 v{vT}, s35
    s_mov_b32 exec_lo, -1
    v_and_b32 v{vT+1}, 4, v{vT}
    v_and_b32 v{vT}, 3, v{vT}
    v_lshl_add_u32 v{vT}, v{vT}, 6, v{vT+1}
    v_bfe_u32 v{vT+1}, v1, 3, 2
    v_add_u32 v{vT}, v{vT}, v{vT+1}
    v_and_b32 v{vT+1}, 7, v1
    v_lshl_add_u32 v{vT}, v{vT+1}, 3, v{vT}
    v_lshlrev_b32 v{vT}, 7, v{vT}
    s_mov_b32 s35, 0
    {Lp}:
    s_sleep {optint("sl1", 4)}
    buffer_load_dwordx2 {vr(vT+2,2)}, v{vT}, {WS}, s{S_FB} offen {SC}
    s_add_u32 s35, s35, 1
    s_waitcnt vmcnt(0)
    v_cmp_ne_u64 vcc, {vr(vT+2,2)}, {vr(vN,2)}
    s_cmp_ge_u32 s35, {SPIN_MAX}
    s_cbranch_scc1 {Lsync}
    s_cmp_lg_u64 vcc, 0
    s_cbranch_scc1 {Lp}
    """)
    a.label(Lsync)
    vL, vL2, vIdx = 3, 4, 5
    vO = 82
    vS = [32, 48, 64]
    vK = [128, 136]
    vV = [144, 152, 160, 168]
    vQ = 98
    vX = 106
    vG3, vOOB, vP2 = 176, 177, 178
    sG, sM0 = 46, 47
    a(f"""
    s_lshl_b32 s34, s{S_HALF}, 5
    s_add_u32 s34, s34, s{S_T}
    s_lshl_b32 s34, s34, 12
    s_lshl_b32 s{sG}, s{S_HEAD}, 18
    s_lshl_b32 s48, s{S_TILE}, 12
    s_add_u32 s48, s48, s{sG}
    s_add_u32 s48, s48, {WS_Q}            ; Q frags
    s_add_u32 s{sG}, s{sG}, s34
    s_lshl_b32 s{sM0}, s{S_WV}, 12
    s_mov_b32 m0, s{sM0}
    s_barrier
    """)
    stamp(a, 5)
    def load_q():
        a(f"buffer_load_dwordx4 {vr(vQ,4)}, v{vL16}, {WS}, s48 offen {SC}")
        a(f"buffer_load_dwordx4 {vr(vQ+4,4)}, v{vL16}, {WS}, s48 offen offset:1024 {SC}")
    def kvdma(piece):
        a(f"buffer_load_dwordx4 v{vL16}, {WS}, s{sG} offen offset:{piece*1024} {SC} lds")
    def maxchain(regs, t):
        regs = list(regs)
        a(f"v_max3_u32 v{t}, v{regs[0]}, v{regs[1]}, v{regs[2]}")
        rest = regs[3:]
        while len(rest) >= 2:
            a(f"v_max3_u32 v{t}, v{t}, v{rest[0]}, v{rest[1]}")
            rest = rest[2:]
        if rest:
            a(f"v_max_u32 v{t}, v{t}, v{rest[0]}")
    slowpaths = []
    def validate(regs, reload, t):
        Lr, Lb = a.newlabel("L_retry"), a.newlabel("L_back")
        maxchain(regs, t)
        a(f"v_cmp_eq_u32 vcc, -1, v{t}")
        a("s_nop 0")
        a("s_cmp_lg_u64 vcc, 0")
        a(f"s_cbranch_scc1 {Lr}")
        a.label(Lb)
        def emit():
            Ll = a.newlabel("L_rl")
            a.label(Lr)
            a("s_mov_b32 s35, 0")
            a.label(Ll)
            reload()
            a("s_add_u32 s35, s35, 1")
            a("s_waitcnt vmcnt(0)")
            maxchain(regs, t)
            a(f"v_cmp_eq_u32 vcc, -1, v{t}")
            a(f"s_cmp_ge_u32 s35, {SPIN_MAX}")
            a(f"s_cbranch_scc1 {Lb}")
            a("s_cmp_lg_u64 vcc, 0")
            a(f"s_cbranch_scc1 {Ll}")
            a(f"s_branch {Lb}")
        slowpaths.append(emit)
    for f in range(4): kvdma(f)
    load_q()
    for st in (1, 2):
        a("s_barrier")
        a(f"s_add_u32 m0, s{sM0}, {st*32768}")
        a(f"s_add_u32 s{sG}, s{sG}, 16384")
        for f in range(4): kvdma(f)
    a(f"""
    s_lshl_b32 s34, s{S_HALF}, 14
    v_add_u32 v{vL}, s34, v{vL16}
    v_add_u32 v{vL2}, 0x10000, v{vL}
    v_mov_b32 v{vIdx}, 0xdddddddd
    v_lshrrev_b32 v{vT}, 3, v0            ; 8w + r
    v_lshrrev_b32 v{vT+1}, 3, v1
    v_and_b32 v{vT+1}, 6, v{vT+1}
    v_and_b32 v{vT+2}, 7, v1
    v_xor_b32 v{vT+1}, v{vT+1}, v{vT+2}
    v_mul_u32_u24 v{vG3}, 896, v{vT}
    v_lshl_add_u32 v{vG3}, v{vT+1}, 4, v{vG3}
    v_mov_b32 v{vOOB}, {OOB}
    s_lshr_b32 s49, s2, 5
    s_min_u32 s49, s49, 6
    s_lshl_b32 s49, s49, 7
    s_lshl_b32 s54, s{S_WV}, 10
    s_add_u32 s57, s57, {WS_F2-WS_F1}
    s_mov_b32 s{S_FB}, {WS_F2}
    s_and_b32 s34, s2, 7
    s_lshl_b32 s34, s34, 2
    s_bfe_u32 s35, s2, 0x20003
    s_add_u32 s{S_TH}, s34, s35
    s_lshr_b32 s34, s{S_TH}, 1
    s_lshl_b32 s34, s34, 3
    s_lshl_b32 s35, s{S_HALF}, 2
    s_add_u32 s34, s34, s35
    v_bfe_u32 v{vT}, v1, 1, 2
    v_add_u32 v{vT}, s34, v{vT}
    v_and_b32 v{vT+1}, 1, v1
    v_lshl_add_u32 v{vT}, v{vT+1}, 7, v{vT}
    v_lshlrev_b32 v{vP2}, 7, v{vT}
    """)
    for r in range(16):
        a(f"v_mov_b32 v{vO+r}, 0")
    a("s_waitcnt vmcnt(8)")
    stamp(a, 6)
    a("s_barrier")
    stamp(a, 8)
    def ldsaddr(u, off):
        slot = (u // 4) % 3
        o = slot * 32768 + (u % 4) * 4096 + off
        return (vL, o) if o < 65536 else (vL2, o - 65536)
    def rd(dst, u, off):
        r, o = ldsaddr(u, off)
        a(f"ds_read_b128 {vr(dst,4)}, v{r} offset:{o}")
    def rdK(u, f): rd(vK[u % 2] + 4 * f, u, f * 1024)
    def rdV(u, f): rd(vV[u % 4] + 4 * f, u, 2048 + f * 1024)
    def QK(u, i, K=None):
        C = "0" if i == 0 else vr(vS[u % 3], 16)
        K = vK[u % 2] if K is None else K
        a(f"v_mfma_f32_32x32x16_bf16 {vr(vS[u%3],16)}, {vr(K+4*i,4)}, {vr(vQ+4*i,4)}, {C}")
    def PV(u, i):
        a(f"v_smfmac_f32_32x32x32_bf16 {vr(vO,16)}, {vr(vV[u%4]+4*i,4)}, {vr(vS[u%3]+8*i,8)}, v{vIdx}")
    def E(u, r0, r1):
        for r in range(r0, r1):
            a(f"v_exp_f32 v{vS[u%3]+r}, v{vS[u%3]+r}")
    a(f"""
    ds_read_b128 {vr(vV[2],4)}, v{vL16}
    ds_read_b128 {vr(vV[2]+4,4)}, v{vL16} offset:1024
    """)
    rdK(0, 0); rdK(0, 1); rdK(1, 0); rdK(1, 1); rdV(0, 0); rdV(0, 1); rdV(1, 0); rdV(1, 1)
    a("s_waitcnt lgkmcnt(8)")
    QK(2, 0, vV[2]); QK(2, 1, vV[2])
    a("s_waitcnt lgkmcnt(6)")
    QK(0, 0)
    a("s_nop 9")
    S = vS[2]
    a(f"v_max3_f32 v{vT}, v{S}, v{S+1}, v{S+2}")
    a(f"v_max3_f32 v{vT+1}, v{S+3}, v{S+4}, v{S+5}")
    for r in (6, 10):
        a(f"v_max3_f32 v{vT}, v{vT}, v{S+r}, v{S+r+1}")
        a(f"v_max3_f32 v{vT+1}, v{vT+1}, v{S+r+2}, v{S+r+3}")
    a(f"v_max3_f32 v{vT}, v{vT}, v{S+14}, v{S+15}")
    a(f"""
    v_max_f32 v{vT}, v{vT}, v{vT+1}
    v_mov_b32 v{vT+1}, v{vT}
    s_nop 1
    v_permlane32_swap_b32 v{vT}, v{vT+1}
    v_max_f32 v{vT}, v{vT}, v{vT+1}
    s_mov_b32 exec_lo, 0
    v_cvt_pk_bf16_f32 v{vQ+6}, -v{vT}, 0
    s_mov_b32 exec_lo, -1
    s_waitcnt lgkmcnt(4)
    """)
    QK(0, 1)
    rdK(2, 0); rdK(2, 1)
    a("s_nop 7")
    stamp(a, 9)
    for t in range(32):
        newst = 1 <= t <= 20 and (t - 1) % 4 == 0
        st = (t - 1) // 4 + 3
        if t + 1 < 32: QK(t + 1, 0)
        if newst:
            a(f"s_add_u32 s{sG}, s{sG}, 16384")
        elif 21 <= t <= 27:
            a(f"s_add_u32 s34, s49, {(t-21)*57344}")
        if t + 2 < 32: rdV(t + 2, 0)
        E(t, 0, 4)
        if t + 1 < 32: QK(t + 1, 1)
        if newst:
            a(f"s_add_u32 m0, s{sM0}, {(st % 3) * 32768}")
        elif 21 <= t <= 28:
            a(f"s_add_u32 m0, s54, {98304 + (t-21)*8192}")
        if t + 2 < 32: rdV(t + 2, 1)
        E(t, 4, 8)
        if t >= 1: PV(t - 1, 1)
        if t % 4 == 1 and t <= 25:
            a(f"s_waitcnt vmcnt({5 if t in (9, 21) else 4}) lgkmcnt(0)")
            a("s_barrier")
        a(f"s_setprio {3 - ((t - 1) % 4) if t < 25 else 3 - (t - 25) // 2}")
        if t + 3 < 32: rdK(t + 3, 0)
        if 1 <= t <= 20:
            kvdma((t - 1) % 4)
        elif 21 <= t <= 27:
            a(f"buffer_load_dwordx4 v{vG3}, s[{S_WO}:{S_WO+3}], s34 offen lds")
        elif t == 28:
            a(f"buffer_load_dwordx4 v{vOOB}, s[{S_WO}:{S_WO+3}], 0 offen lds")
        elif t == 29:
            a(f"buffer_load_dwordx2 {vr(vSen,2)}, v{vP2}, {WS}, s{S_FB} offen {SC}")
        E(t, 8, 12)
        if t == 0:
            a("s_waitcnt lgkmcnt(5)")
        PV(t, 0)
        if t + 3 < 32:
            a("s_waitcnt lgkmcnt(3)")
            rdK(t + 3, 1)
            if t == 6: a(oclear)
            if t == 18: a(f"buffer_store_dwordx2 {vr(vN,2)}, v{vF}, {WS}, s57 offen {SC}")
        else:
            a("s_waitcnt lgkmcnt(0)")
        E(t, 12, 16)
    a("s_nop 1")
    PV(31, 1)
    stamp(a, 10)
    a.c("---- combine the two kv halves in slot 0 (stage 6 data is dead)")
    LB, LJ, Lslow, Lst = a.newlabel("L_halfB"), a.newlabel("L_join"), a.newlabel("L_slow"), a.newlabel("L_store")
    a(f"""
    s_mul_i32 s34, s{S_WV}, 2304
    s_xor_b32 s35, s{S_WV}, 4
    s_mul_i32 s35, s35, 2304
    v_add_u32 v{vT}, s34, v{vL16}
    v_add_u32 v{vT+1}, s35, v{vL16}
    v_lshl_add_u32 v{vT+2}, v1, 2, s34
    v_or_b32 v{vT+3}, 32, v1
    v_lshl_add_u32 v{vT+4}, v{vT+3}, 2, s35
    v_lshl_add_u32 v{vT+3}, v{vT+3}, 2, s34
    s_nop 0
    s_cmp_lg_u32 s{S_HALF}, 0
    s_cbranch_scc1 {LB}
    ds_write_b128 v{vT}, {vr(vO+8,4)}
    ds_write_b128 v{vT}, {vr(vO+12,4)} offset:1024
    ds_write_b32 v{vT+2}, v{vO+12} offset:2048
    s_branch {LJ}
    {LB}:
    ds_write_b128 v{vT}, {vr(vO,4)}
    ds_write_b128 v{vT}, {vr(vO+4,4)} offset:1024
    ds_write_b32 v{vT+2}, v{vO+12} offset:2048
    s_nop 1
    """)
    for r in range(8):
        a(f"v_mov_b32 v{vO+r}, v{vO+8+r}")
    a(f"""
    {LJ}:
    s_waitcnt vmcnt(1) lgkmcnt(0)
    s_barrier
    ds_read_b32 v{vX+8}, v{vT+3} offset:2048
    ds_read_b32 v{vX+9}, v{vT+4} offset:2048
    ds_read_b128 {vr(vX,4)}, v{vT+1}
    ds_read_b128 {vr(vX+4,4)}, v{vT+1} offset:1024
    s_waitcnt lgkmcnt(2)
    v_add_f32 v{vX+8}, v{vX+8}, v{vX+9}
    v_rcp_f32 v{vX+9}, v{vX+8}
    s_mov_b32 s34, 0x2b800000
    s_mov_b32 s35, 0x53800000
    s_waitcnt lgkmcnt(0)
    """)
    for r in range(8):
        a(f"v_add_f32 v{vO+r}, v{vO+r}, v{vX+r}")
    for r in range(8):
        a(f"v_fmac_f32 v{vX+8}, 0, v{vO+r}")
    a(f"""
    v_cmp_nle_f32 vcc, s34, v{vX+8}
    v_cmp_nge_f32 s[58:59], s35, v{vX+8}
    s_nop 0
    s_or_b64 vcc, vcc, s[58:59]
    s_cbranch_scc1 {Lslow}
    {Lst}:
    s_mov_b32 s35, 0xfffffffe
    """)
    for r in range(8):
        a(f"v_mul_f32 v{vO+r}, v{vO+r}, v{vX+9}")
    for t in range(4):
        a(f"v_cvt_pk_bf16_f32 v{vX+t}, v{vO+2*t}, v{vO+2*t+1}")
    for t in range(4):
        a(f"v_min_u32 v{vX+t}, s35, v{vX+t}")
    Lnz = a.newlabel("L_nz")
    a(f"""
    s_cmp_eq_u32 s{S_HALF}, 0
    s_cbranch_scc1 {Lnz}
    s_mov_b32 exec_lo, 0
    v_mov_b32 v{vX+2}, 0
    v_mov_b32 v{vX+3}, 0
    s_mov_b32 exec_lo, -1
    {Lnz}:
    buffer_store_dwordx4 {vr(vX,4)}, v{vL16}, {WS}, s{S_OA} offen {SC}
    s_cmp_ge_u32 s2, 224
    s_cbranch_scc1 {"L_fin" if STAMPS else done}
    """)
    stamp(a, 11)
    vOg = 3
    vA = 8
    vAc3 = 32
    vOf = 48
    vWo = 128
    WOB_L = 98304
    a(f"""
    v_mov_b32 v2, v{vP2}
    v_lshrrev_b32 v{vT}, 4, v1            ; g
    v_and_b32 v{vT+1}, 15, v1
    v_bfe_u32 v{vT+2}, v1, 2, 2           ; r'
    v_bfe_u32 v{vT+3}, v1, 4, 1           ; g&1
    v_lshrrev_b32 v{vT+4}, 5, v1          ; g>>1
    v_lshl_add_u32 v{vT+5}, v{vT+3}, 2, v{vT+2}
    v_lshl_add_u32 v{vT+5}, v{vT+4}, 4, v{vT+5}   ; row
    v_lshrrev_b32 v{vT+6}, 1, v{vT+2}
    v_lshl_add_u32 v{vT+6}, v{vT+3}, 1, v{vT+6}   ; s0
    v_lshlrev_b32 v{vT+6}, 5, v{vT+6}
    v_lshl_add_u32 v{vT+5}, v{vT+5}, 7, v{vT+6}
    v_and_b32 v{vT+6}, 3, v1
    v_lshl_add_u32 v{vT+5}, v{vT+6}, 3, v{vT+5}
    s_mul_i32 s34, s{S_HALF}, {8*28*128}
    s_add_u32 s34, s34, {WOB_L}
    v_add_u32 v{vA}, s34, v{vT+5}
    v_xor_b32 v{vA+1}, 32, v{vA}
    v_xor_b32 v{vA+2}, 64, v{vA}
    v_xor_b32 v{vA+3}, 0x60, v{vA}
    """)
    def wr(hh):
        for ct in range(4):
            for u in range(2):
                a(f"ds_read_b64_tr_b16 {vr(vWo+16*hh+4*ct+2*u,2)}, v{vA+(ct^(2*(hh&1)))} offset:{(28*hh+8*u)*128}")
    NW1 = optint("nw1", 4)
    for hh in range(NW1):
        wr(hh)
        a("s_waitcnt lgkmcnt(4)")
    XB3 = 20480
    Lf2r, Lf2b = a.newlabel("L_f2r"), a.newlabel("L_f2b")
    a(f"""
    v_lshlrev_b32 v{vOg}, 9, v{vT}
    v_lshl_add_u32 v{vOg}, v{vT+1}, 4, v{vOg}
    s_lshl_b32 s34, s{S_TH}, 1
    s_lshr_b32 s35, s{S_T}, 1
    s_add_u32 s34, s34, s35
    s_lshl_b32 s34, s34, 15
    s_lshl_b32 s35, s{S_HALF}, 14
    s_add_u32 s48, s34, s35
    s_and_b32 s34, s{S_T}, 1
    s_lshl_b32 s34, s34, 8
    s_add_u32 s48, s48, s34
    s_add_u32 s48, s48, {WS_O}
    s_add_u32 s46, s48, 4096
    s_add_u32 s47, s48, 8192
    s_add_u32 s51, s48, 12288
    v_and_b32 v{vT+4}, 3, v1
    v_lshlrev_b32 v{vT+5}, 1, v1
    v_and_b32 v{vT+5}, 8, v{vT+5}
    v_lshrrev_b32 v{vT+6}, 1, v1
    v_and_b32 v{vT+6}, 4, v{vT+6}
    v_or3_b32 v{vT+4}, v{vT+4}, v{vT+5}, v{vT+6}
    v_mul_u32_u24 v{vT+4}, 272, v{vT+4}
    v_lshl_add_u32 v{vT+4}, v{vT}, 4, v{vT+4}
    s_mul_i32 s34, s{S_WV}, 4352
    v_add_u32 v{vT+2}, s34, v{vT+4}
    v_lshrrev_b32 v{vT+5}, 3, v0
    v_and_b32 v{vT+6}, 7, v0
    v_mul_u32_u24 v{vT+3}, 272, v{vT+5}
    v_lshl_add_u32 v{vT+3}, v{vT+6}, 5, v{vT+3}
    v_mul_u32_u24 v{vT+4}, 896, v{vT+5}
    v_lshl_add_u32 v{vT+4}, v{vT+6}, 4, v{vT+4}
    s_mul_i32 s50, s{S_TH}, 57344
    s_add_u32 s50, s50, s49
    s_waitcnt vmcnt({optint("ow", 0)})
    v_cmp_ne_u64 vcc, {vr(vSen,2)}, {vr(vN,2)}
    s_nop 0
    s_cmp_lg_u64 vcc, 0
    s_cbranch_scc1 {Lf2r}
    {Lf2b}:
    s_mov_b32 s35, 0
    """)
    def f2retry():
        Ll = a.newlabel("L_f2l")
        a(f"""
        {Lf2r}:
        s_mov_b32 s35, 0
        {Ll}:
        s_sleep 4
        buffer_load_dwordx2 {vr(vSen,2)}, v2, {WS}, s{S_FB} offen {SC}
        s_add_u32 s35, s35, 1
        s_waitcnt vmcnt(0)
        v_cmp_ne_u64 vcc, {vr(vSen,2)}, {vr(vN,2)}
        s_cmp_ge_u32 s35, {SPIN_MAX}
        s_cbranch_scc1 {Lf2b}
        s_cmp_lg_u64 vcc, 0
        s_cbranch_scc1 {Ll}
        s_branch {Lf2b}
        """)
    slowpaths.append(f2retry)
    stamp(a, 12)
    def oloads():
        for hh in range(8):
            so = ["s48", "s46", "s47", "s51"][hh // 2]
            a(f"buffer_load_dwordx4 {vr(vOf+4*hh,4)}, v{vOg}, {WS}, {so} offen offset:{(hh%2)*2048} {SC}")
    oloads()
    for hh in range(NW1, 8):
        wr(hh)
        a("s_waitcnt lgkmcnt(4)")
    Lo, Lo2, Lod = a.newlabel("L_o"), a.newlabel("L_o2"), a.newlabel("L_od")
    a(f"s_branch {Lo2}")
    a.label(Lo)
    oloads()
    a.label(Lo2)
    for hh in range(8):
        a(f"s_waitcnt vmcnt({7-hh}) lgkmcnt(0)")
        for ct in range(4):
            C = "0" if hh == 0 else vr(vAc3 + 4 * ct, 4)
            a(f"v_mfma_f32_16x16x32_bf16 {vr(vAc3+4*ct,4)}, {vr(vWo+16*hh+4*ct,4)}, {vr(vOf+4*hh,4)}, {C}")
        o4 = vOf + 4 * hh
        if hh == 0:
            a(f"v_max3_u32 v{vT+5}, v{o4}, v{o4+1}, v{o4+2}")
            a(f"v_max_u32 v{vT+5}, v{vT+5}, v{o4+3}")
        else:
            a(f"v_max3_u32 v{vT+5}, v{vT+5}, v{o4}, v{o4+1}")
            a(f"v_max3_u32 v{vT+5}, v{vT+5}, v{o4+2}, v{o4+3}")
    LB3, LJ3 = a.newlabel("L_p3B"), a.newlabel("L_p3J")
    a(f"""
    v_cmp_eq_u32 vcc, -1, v{vT+5}
    s_add_u32 s35, s35, 1
    s_cmp_ge_u32 s35, {SPIN_MAX}
    s_cbranch_scc1 {Lod}
    s_cmp_lg_u64 vcc, 0
    s_cbranch_scc1 {Lo}
    {Lod}:
    """)
    stamp(a, 13)
    if STAMPS: a("s_mov_b32 s94, s35")
    a("s_nop 1")
    for ct in range(4):
        a(f"ds_write_b128 v{vT+2}, {vr(vAc3+4*ct,4)} offset:{XB3+64*ct}")
    a(f"""
    s_waitcnt lgkmcnt(0)
    s_barrier
    ds_read_b128 {vr(vX,4)}, v{vT+3} offset:{XB3}
    ds_read_b128 {vr(vX+8,4)}, v{vT+3} offset:{XB3+17408}
    ds_read_b128 {vr(vX+4,4)}, v{vT+3} offset:{XB3+16}
    ds_read_b128 {vr(vX+12,4)}, v{vT+3} offset:{XB3+17408+16}
    s_waitcnt lgkmcnt(2)
    """)
    for r in range(4):
        a(f"v_add_f32 v{vX+r}, v{vX+r}, v{vX+8+r}")
    a("s_waitcnt lgkmcnt(0)")
    for r in range(4, 8):
        a(f"v_add_f32 v{vX+r}, v{vX+r}, v{vX+8+r}")
    for t in range(4):
        a(f"v_cvt_pk_bf16_f32 v{vX+8+t}, v{vX+2*t}, v{vX+2*t+1}")
    a(f"buffer_store_dwordx4 {vr(vX+8,4)}, v{vT+4}, s[{S_OUT}:{S_OUT+3}], s50 offen {OSC}")
    if STAMPS:
        a("s_waitcnt vmcnt(0)")
        stamp(a, 14)
        a.label("L_fin")
        a("s_memrealtime s[96:97]")
        a("s_waitcnt lgkmcnt(0)")
        for i in range(15):
            a(f"v_mov_b32 v{8+i}, s{64+2*i}")
        if "cyc" in OPT: a("s_sub_u32 s94, s44, s42")
        a("v_mov_b32 v23, s94")
        a("v_mov_b32 v24, s98")
        a("v_mov_b32 v25, s96")
        a("v_mov_b32 v26, 0")
        a("v_mov_b32 v27, 0")
        a(f"""
        s_lshl_b32 s34, s2, 3
        s_add_u32 s34, s34, s{S_WV}
        s_lshl_b32 s34, s34, 7
        s_add_u32 s34, s34, {WS_ST}
        s_mov_b64 exec, 1
        buffer_store_dwordx4 v[8:11], v{vZ}, {WS}, s34 offen
        buffer_store_dwordx4 v[12:15], v{vZ}, {WS}, s34 offen offset:16
        buffer_store_dwordx4 v[16:19], v{vZ}, {WS}, s34 offen offset:32
        buffer_store_dwordx4 v[20:23], v{vZ}, {WS}, s34 offen offset:48
        buffer_store_dwordx4 v[24:27], v{vZ}, {WS}, s34 offen offset:64
        """)
    a.label(done)
    a("s_endpgm")
    a.label(Lspare)
    a(f"""
    s_cmp_lg_u32 s2, 255
    s_cbranch_scc1 {Lnn}
    s_or_b32 s62, s62, 1
    v_mov_b32 v{vN}, s62
    v_mov_b32 v{vN+1}, s63
    buffer_store_dwordx2 {vr(vN,2)}, v{vF}, {DBG}, 0 offen {SC}
    s_waitcnt vmcnt(0)
    {Lnn}:
    {tagload}
    s_branch {Lpub}
    """)
    for e in slowpaths: e()
    a.label(Lslow)
    L1, L2, Lh = a.newlabel("L_s1"), a.newlabel("L_s2"), a.newlabel("L_sh")
    sCnt = 48
    a(f"""
    s_mov_b32 exec_lo, 0
    v_mov_b32 v{vQ+6}, 0
    v_mov_b32 v{vQ+7}, 0
    s_mov_b32 exec_lo, -1
    v_mov_b32 v{vT}, 0xff800000
    s_lshl_b32 s{sG}, s{S_HEAD}, 18
    s_mov_b32 s{sCnt}, 0
    {L1}:
    buffer_load_dwordx4 {vr(vK[0],4)}, v{vL16}, {WS}, s{sG} offen {SC}
    buffer_load_dwordx4 {vr(vK[0]+4,4)}, v{vL16}, {WS}, s{sG} offen offset:1024 {SC}
    s_waitcnt vmcnt(0)
    """)
    QK(0, 0); QK(0, 1)
    a("s_nop 15")
    for r in range(0, 16, 2):
        a(f"v_max3_f32 v{vT}, v{vT}, v{vS[0]+r}, v{vS[0]+r+1}")
    a(f"""
    s_add_u32 s{sG}, s{sG}, 4096
    s_add_u32 s{sCnt}, s{sCnt}, 1
    s_cmp_lt_u32 s{sCnt}, 64
    s_cbranch_scc1 {L1}
    v_mov_b32 v{vT+1}, v{vT}
    s_nop 1
    v_permlane32_swap_b32 v{vT}, v{vT+1}
    s_nop 1
    v_max_f32 v{vT}, v{vT}, v{vT+1}
    v_and_b32 v{vT+1}, 0xffff0000, v{vT}       ; hi
    v_sub_f32 v{vT+2}, v{vT}, v{vT+1}
    v_and_b32 v{vT+3}, 0xffff0000, v{vT+2}     ; mid
    v_sub_f32 v{vT+2}, v{vT+2}, v{vT+3}        ; lo
    s_mov_b32 exec_lo, 0
    v_cvt_pk_bf16_f32 v{vQ+6}, -v{vT+1}, -v{vT+3}
    v_cvt_pk_bf16_f32 v{vQ+7}, -v{vT+2}, 0
    s_mov_b32 exec_lo, -1
    """)
    for r in range(16):
        a(f"v_mov_b32 v{vO+r}, 0")
    a(f"""
    s_lshl_b32 s{sG}, s{S_HEAD}, 18
    s_mov_b32 s{sCnt}, 0
    {L2}:
    buffer_load_dwordx4 {vr(vK[0],4)}, v{vL16}, {WS}, s{sG} offen {SC}
    buffer_load_dwordx4 {vr(vK[0]+4,4)}, v{vL16}, {WS}, s{sG} offen offset:1024 {SC}
    buffer_load_dwordx4 {vr(vV[0],4)}, v{vL16}, {WS}, s{sG} offen offset:2048 {SC}
    buffer_load_dwordx4 {vr(vV[0]+4,4)}, v{vL16}, {WS}, s{sG} offen offset:3072 {SC}
    s_waitcnt vmcnt(0)
    """)
    QK(0, 0); QK(0, 1)
    a("s_nop 15")
    E(0, 0, 16)
    a("s_nop 1")
    PV(0, 0); PV(0, 1)
    a(f"""
    s_nop 7
    s_add_u32 s{sG}, s{sG}, 4096
    s_add_u32 s{sCnt}, s{sCnt}, 1
    s_cmp_lt_u32 s{sCnt}, 64
    s_cbranch_scc1 {L2}
    s_nop 15
    v_mov_b32 v{vX+8}, v{vO+12}
    v_mov_b32 v{vX+9}, v{vO+12}
    s_nop 1
    v_permlane32_swap_b32 v{vX+8}, v{vX+9}
    s_nop 1
    v_rcp_f32 v{vX+9}, v{vX+9}
    s_cmp_eq_u32 s{S_HALF}, 0
    s_cbranch_scc1 {Lh}
    """)
    for r in range(8):
        a(f"v_mov_b32 v{vO+r}, v{vO+8+r}")
    a(f"""
    {Lh}:
    s_nop 1
    s_branch {Lst}
    """)
    a.raw('.section .rodata,"a"')
    a.raw(".p2align 6")
    a.raw(kernel_desc(NAME, 256, 102).rstrip("\n"))
    return a.text()

if __name__ == "__main__":
    out = sys.argv[1] if len(sys.argv) > 1 else "standalone__softmax_full_mha__prompt.s"
    OPT.update(sys.argv[2:])
    STAMPS = "stamps" in OPT
    open(out, "w").write(build())
```

```python
import sys, struct, math
from asmlib import *

WS_KV = 0
WS_Q = 0x400000
WS_O = 0x800000
WS_F1 = 0xa00000
WS_F2 = 0xa10000
WS_ST = 0xc00000
WS_BYTES = 0xd00000
OOB = 0x40000000
XB, WB, WOB, OUTB = 1835008, 1204224, 401408, 1835008
QSCALE = struct.unpack("<I", struct.pack("<f", math.log2(math.e) / math.sqrt(28.0)))[0]
SPIN_MAX = 1 << 18

S_X, S_W, S_WS, S_WO, S_OUT, S_DBG = 8, 12, 16, 20, 24, 4
S_QB, S_WV, S_HEAD, S_ROT = 28, 31, 32, 33
S_TH, S_TILE, S_C, S_HALF, S_T = 52, 53, 55, 60, 61
S_M0 = 36
S_OA, S_FB = 40, 41
SC = "sc1"
OPT = set()
STAMPS = False
NAME = "standalone__softmax_full_mha__prompt_kernel"
WS = f"s[{S_WS}:{S_WS+3}]"
DBG = f"s[{S_DBG}:{S_DBG+3}]"

def stamp(a, i):
    if STAMPS:
        a(f"s_memrealtime s[{64+2*i}:{65+2*i}]")

def optint(name, default):
    for o in OPT:
        if o.startswith(name + "="):
            return int(o.split("=")[1])
    return default

def build():
    a = Asm()
    HEADER = open("standalone__softmax_full_mha__prompt.s.ref").read().split("; Override launch")[0]
    a.raw(HEADER.rstrip("\n"))
    a.raw("; @launch grid=(256,1,1) block=(512,1,1) lds=163840")
    a.raw('.amdgcn_target "amdgcn-amd-amdhsa--gfx950"\n.text')
    a.raw(f".globl {NAME}\n.p2align 8\n.type {NAME},@function\n{NAME}:")
    if STAMPS:
        a("s_memrealtime s[98:99]")
    done = "L_done"
    OSC = "sc0 sc1" if "oplain" not in OPT else ""
    vXg, vWg = 2, 3
    vWa = 4
    vF = 6
    vZ = 7
    vXa = 8
    vT = 16
    vAcc = 32
    vWf = 48
    vD = 64
    vAd = 76
    vN = 80
    vWqa = 122
    vL16 = 123
    vSen = 124
    vXf = 128
    sC, sXo, sWo, sCol, sM, sXbase = 46, 47, 48, 49, 50, 51
    SLOT = 24576
    WQB = 98304
    Lspare, Lsync = a.newlabel("L_spare"), a.newlabel("L_sync1")
    a(f"""
    s_cmp_ge_u32 s2, 256
    s_cbranch_scc1 {done}
    s_load_dwordx4 s[36:39], s[0:1], 0
    s_load_dwordx4 s[40:43], s[0:1], 16
    s_load_dwordx4 {DBG}, s[0:1], 32
    s_memrealtime s[62:63]
    v_lshrrev_b32 v{vT}, 6, v0
    v_and_b32 v1, 63, v0
    s_and_b32 s34, s2, 3                  ; tg
    s_bfe_u32 s35, s2, 0x30003            ; r5 & 7
    v_readfirstlane_b32 s{S_WV}, v{vT}
    s_lshl_b32 s{S_TH}, s34, 3
    s_add_u32 s{S_TH}, s{S_TH}, s35
    s_lshr_b32 s{S_C}, s2, 6              ; cl
    s_lshl_b32 s{sC}, s{S_C}, 1
    s_add_u32 s{sC}, s{sC}, s35
    s_cmp_ge_u32 s{sC}, 7
    s_cselect_b32 s35, 7, 0
    s_sub_u32 s{sC}, s{sC}, s35
    s_and_b32 s35, s2, 4
    s_add_u32 s{S_C}, s{S_C}, s35
    s_mov_b32 s{S_X+2}, {XB}
    s_mov_b32 s{S_X+3}, 0x00020000
    s_mov_b32 s{S_W+2}, {WB}
    s_mov_b32 s{S_W+3}, 0x00020000
    v_lshrrev_b32 v{vT+2}, 3, v0          ; 8w + r
    v_and_b32 v{vT+1}, 7, v1              ; pos
    v_bfe_u32 v{vT+3}, v0, 4, 3           ; swz = ((8w+r)>>1)&7
    v_xor_b32 v{vT+3}, v{vT+3}, v{vT+1}
    v_mul_u32_u24 v{vXg}, 896, v{vT+2}
    v_lshl_add_u32 v{vXg}, v{vT+3}, 4, v{vXg}
    v_lshrrev_b32 v{vT+3}, 2, v1
    v_and_b32 v{vT+3}, 4, v{vT+3}         ; ((r>>1)&1)*4
    v_xor_b32 v{vT+3}, v{vT+3}, v{vT+1}
    v_mul_u32_u24 v{vWg}, 2688, v{vT+2}
    v_lshl_add_u32 v{vWg}, v{vT+3}, 4, v{vWg}
    s_mul_i32 s{sXbase}, s{S_TH}, 57344
    s_lshl_b32 s{sCol}, s{S_C}, 7
    s_lshl_b32 s{sM}, s{S_WV}, 10
    s_cmp_eq_u32 s{S_C}, 7
    s_waitcnt lgkmcnt(0)
    s_mov_b32 s{S_X}, s36
    s_mov_b32 s{S_X+1}, s37
    s_mov_b32 s{S_W}, s38
    s_mov_b32 s{S_W+1}, s39
    """)
    def adv():
        a(f"""
        s_add_u32 s{sC}, s{sC}, 1
        s_cmp_eq_u32 s{sC}, 7
        s_cselect_b32 s{sC}, 0, s{sC}
        """)
    def issue_chunk(i):
        sl = (i % 4) * SLOT
        a(f"""
        s_lshl_b32 s{sXo}, s{sC}, 7
        s_add_u32 s{sXo}, s{sXo}, s{sXbase}
        s_add_u32 m0, s{sM}, {sl}
        s_mul_i32 s{sWo}, s{sC}, 172032
        buffer_load_dwordx4 v{vXg}, s[{S_X}:{S_X+3}], s{sXo} offen lds
        s_add_u32 m0, s{sM}, {sl+8192-896}
        s_add_u32 s{sWo}, s{sWo}, s{sCol}
        buffer_load_dwordx4 v{vWg}, s[{S_W}:{S_W+3}], s{sWo} offen offset:896 lds
        s_add_u32 m0, s{sM}, {sl+16384-1792}
        s_add_u32 s{sC}, s{sC}, 1
        buffer_load_dwordx4 v{vWg}, s[{S_W}:{S_W+3}], s{sWo} offen offset:1792 lds
        s_cmp_eq_u32 s{sC}, 7
        s_cselect_b32 s{sC}, 0, s{sC}
        """)
    def issue_wq(i):
        a(f"""
        s_mul_i32 s{sWo}, s{sC}, 172032
        s_add_u32 m0, s{sM}, {WQB+i*8192}
        s_add_u32 s{sWo}, s{sWo}, s{sCol}
        buffer_load_dwordx4 v{vWg}, s[{S_W}:{S_W+3}], s{sWo} offen lds
        """)
        adv()
    def issue_chunk2(i):
        sl = (i % 4) * SLOT
        a(f"""
        s_lshl_b32 s{sXo}, s{sC}, 7
        s_add_u32 s{sXo}, s{sXo}, s{sXbase}
        s_add_u32 m0, s{sM}, {sl}
        s_mul_i32 s{sWo}, s{sC}, 172032
        buffer_load_dwordx4 v{vXg}, s[{S_X}:{S_X+3}], s{sXo} offen lds
        s_add_u32 m0, s{sM}, {(sl-4096) & 0xffffffff}
        s_add_u32 s{sWo}, s{sWo}, s{sCol}
        buffer_load_dwordx4 v{vXg2}, s[{S_X}:{S_X+3}], s{sXo} offen lds
        s_add_u32 m0, s{sM}, {sl+8192-896}
        s_add_u32 s{sC}, s{sC}, 1
        buffer_load_dwordx4 v{vWg}, s[{S_W}:{S_W+3}], s{sWo} offen offset:896 lds
        s_add_u32 m0, s{sM}, {sl+4096-896}
        s_nop 0
        buffer_load_dwordx4 v{vWg2}, s[{S_W}:{S_W+3}], s{sWo} offen offset:896 lds
        s_add_u32 m0, s{sM}, {sl+16384-1792}
        s_nop 0
        buffer_load_dwordx4 v{vWg}, s[{S_W}:{S_W+3}], s{sWo} offen offset:1792 lds
        s_add_u32 m0, s{sM}, {sl+12288-1792}
        s_cmp_eq_u32 s{sC}, 7
        buffer_load_dwordx4 v{vWg2}, s[{S_W}:{S_W+3}], s{sWo} offen offset:1792 lds
        s_cselect_b32 s{sC}, 0, s{sC}
        """)
    def issue_wq2(i):
        a(f"""
        s_mul_i32 s{sWo}, s{sC}, 172032
        s_add_u32 m0, s{sM}, {WQB+i*8192}
        s_add_u32 s{sWo}, s{sWo}, s{sCol}
        buffer_load_dwordx4 v{vWg}, s[{S_W}:{S_W+3}], s{sWo} offen lds
        s_add_u32 m0, s{sM}, {WQB+i*8192-4096}
        s_add_u32 s{sC}, s{sC}, 1
        buffer_load_dwordx4 v{vWg2}, s[{S_W}:{S_W+3}], s{sWo} offen lds
        s_cmp_eq_u32 s{sC}, 7
        s_cselect_b32 s{sC}, 0, s{sC}
        """)
    vXg2, vWg2 = 240, 241
    SPLIT = False
    Lsp1, Lnn = a.newlabel("L_sp"), a.newlabel("L_nonon")
    stamp(a, 0)
    PRE = optint("pre", 2)
    EARLY = "early" in OPT
    a(f"s_cbranch_scc1 {Lsp1}")
    if EARLY:
        a(f"s_cmp_lt_u32 s{S_WV}, 4")
        a(f"s_cbranch_scc1 {Lsp1}")
        a(f"v_subrev_u32 v{vXg2}, {32*896}, v{vXg}")
        a(f"v_subrev_u32 v{vWg2}, {32*2688}, v{vWg}")
        for i in range(PRE): issue_chunk2(i)
    else:
        for i in range(PRE): issue_chunk(i)
    a(f"""
    {Lsp1}:
    s_mov_b32 s{S_WS}, s{S_DBG+2}
    s_mov_b32 s{S_WS+1}, s{S_DBG+3}
    s_mov_b32 s{S_DBG+2}, 256
    s_mov_b32 s{S_DBG+3}, 0x00020000
    s_mov_b32 s{S_WS+2}, {WS_BYTES}
    s_mov_b32 s{S_WS+3}, 0x00020000
    s_mov_b32 s{S_WO}, s40
    s_mov_b32 s{S_WO+1}, s41
    s_mov_b32 s{S_OUT}, s42
    s_mov_b32 s{S_OUT+1}, s43
    s_mov_b32 s{S_WO+2}, {WOB}
    s_mov_b32 s{S_WO+3}, 0x00020000
    s_mov_b32 s{S_OUT+2}, {OUTB}
    s_mov_b32 s{S_OUT+3}, 0x00020000
    v_mov_b32 v{vZ}, 0
    s_bfe_u32 s{S_QB}, s2, 0x40003
    s_and_b32 s34, s2, 7
    s_lshl_b32 s34, s34, 1
    s_lshr_b32 s35, s2, 7
    s_add_u32 s{S_HEAD}, s34, s35         ;          head = 2*(b&7) + (b>>7)
    s_and_b32 s{S_T}, s{S_WV}, 3
    s_lshr_b32 s{S_HALF}, s{S_WV}, 2
    s_lshl_b32 s34, s{S_QB}, 2
    s_add_u32 s{S_TILE}, s34, s{S_T}
    s_lshl_b32 s34, s{S_TILE}, 15
    s_lshl_b32 s35, s{S_HEAD}, 11
    s_add_u32 s{S_OA}, s34, s35
    s_lshl_b32 s34, s{S_HALF}, 10
    s_add_u32 s{S_OA}, s{S_OA}, s34
    s_add_u32 s{S_OA}, s{S_OA}, {WS_O}
    s_mov_b32 s{S_FB}, {WS_F1}
    s_lshl_b32 s57, s2, 7
    s_add_u32 s57, s57, {WS_F1}
    v_lshlrev_b32 v{vL16}, 4, v1
    v_mov_b32 v{vT}, {OOB}
    v_cmp_eq_u32 vcc, 0x1c0, v0
    v_mov_b32 v{vSen}, -1
    v_mov_b32 v{vSen+1}, -1
    v_mov_b32 v{vSen+2}, -1
    v_mov_b32 v{vSen+3}, -1
    v_cndmask_b32 v{vF}, v{vT}, v{vZ}, vcc
    s_cmp_eq_u32 s{S_C}, 7
    s_cbranch_scc1 {Lspare}
    v_and_b32 v{vT}, 31, v1               ; tok
    v_lshrrev_b32 v{vT+1}, 5, v1          ; h
    s_bfe_u32 s56, s{S_WV}, 0x10001       ; Ct = (w>>1)&1
    s_lshl_b32 s34, s{S_C}, 1
    s_add_u32 s58, s56, s34               ; Ctg (0..13)
    s_and_b32 s34, s{S_WV}, 1
    s_lshl_b32 s34, s34, 12
    s_lshl_b32 s54, s{S_TH}, 13
    s_add_u32 s54, s54, s34               ; tile * 4096
    v_bfe_u32 v{vT+2}, v1, 1, 3
    v_xor_b32 v{vT+2}, v{vT+2}, v{vT+1}   ; h ^ swz
    v_lshlrev_b32 v{vT+3}, 7, v{vT}       ; tok*128
    v_lshl_add_u32 v{vT+2}, v{vT+2}, 4, v{vT+3}
    v_add_u32 v{vXa}, s34, v{vT+2}
    v_xor_b32 v{vXa+1}, 32, v{vXa}
    v_xor_b32 v{vXa+2}, 64, v{vXa}
    v_xor_b32 v{vXa+3}, 0x60, v{vXa}
    v_add_u32 v{vXa+4}, {2*SLOT}, v{vXa}
    v_add_u32 v{vXa+5}, {2*SLOT}, v{vXa+1}
    v_add_u32 v{vXa+6}, {2*SLOT}, v{vXa+2}
    v_add_u32 v{vXa+7}, {2*SLOT}, v{vXa+3}
    v_and_b32 v{vT+2}, 3, v1              ; c'
    v_lshrrev_b32 v{vT+3}, 1, v{vT+2}
    v_lshlrev_b32 v{vT+4}, 1, v{vT+2}
    v_and_b32 v{vT+4}, 2, v{vT+4}
    v_or_b32 v{vT+3}, v{vT+3}, v{vT+4}    ; bitswap2(c')
    v_bfe_u32 v{vT+4}, v1, 4, 1           ; a
    v_bfe_u32 v{vT+5}, v1, 2, 2           ; r'
    v_lshl_add_u32 v{vT+6}, v{vT+1}, 3, v{vT+5}   ; 8h + r'
    s_cmp_eq_u32 s{S_HALF}, 0
    s_cselect_b64 vcc, -1, 0
    s_lshl_b32 s34, s56, 3
    v_cndmask_b32 v{vT+7}, v{vT+2}, v{vT+3}, vcc  ; cg
    v_lshl_add_u32 v{vT+7}, v{vT+4}, 2, v{vT+7}
    v_add_u32 v{vT+7}, s34, v{vT+7}
    v_lshlrev_b32 v{vT+8}, 2, v{vT+5}
    v_and_b32 v{vT+8}, 8, v{vT+8}
    v_xor_b32 v{vT+7}, v{vT+7}, v{vT+8}
    v_lshlrev_b32 v{vT+7}, 3, v{vT+7}
    v_lshl_add_u32 v{vWa}, v{vT+6}, 7, v{vT+7}
    v_add_u32 v{vWqa}, {WQB}, v{vWa}
    s_lshl_b32 s35, s{S_HALF}, 13
    s_add_u32 s35, s35, 8192
    v_add_u32 v{vWa}, s35, v{vWa}
    v_add_u32 v{vWa+1}, {2*SLOT}, v{vWa}
    v_mov_b32 v{vT+7}, {OOB}
    """)
    def nonce_wait():
        Lng, Lnw = a.newlabel("L_ngot"), a.newlabel("L_nwait")
        a(f"""
        v_readfirstlane_b32 s34, v{vN}
        s_mov_b32 s35, 0
        s_cmp_lg_u32 s34, 0
        s_cbranch_scc1 {Lng}
        {Lnw}:
        s_sleep 4
        buffer_load_dwordx2 {vr(vN,2)}, v{vZ}, {DBG}, 0 offen {SC}
        s_waitcnt vmcnt(0)
        v_readfirstlane_b32 s34, v{vN}
        s_add_u32 s35, s35, 1
        s_cmp_ge_u32 s35, {SPIN_MAX}
        s_cbranch_scc1 {Lng}
        s_cmp_eq_u32 s34, 0
        s_cbranch_scc1 {Lnw}
        {Lng}:
        """)
    NQ1 = optint("nq1", 4)
    CLA = optint("cla", 1)
    def kloop(kt, extra):
        issued = [3] * PRE
        seq = []
        for i in range(PRE): seq += [("c", i)] * ((0 if kt else 6) if EARLY else 3)
        for ins in extra.get(-1, []):
            a(ins); seq.append(("x", -1))
        vW2 = [vWf, 82]
        def mm(i, waits):
            for sub in range(4):
                if waits: a(f"s_waitcnt lgkmcnt({3*(3-sub)})")
                X, W = vXf + 16 * i + 4 * sub, vW2[i % 2] + 4 * sub
                A, B = (W, X) if kt else (X, W)
                C = "0" if (i == 0 and sub == 0) else vr(vAcc, 16)
                if "nomm" not in OPT or i == 0: a(f"v_mfma_f32_32x32x16_bf16 {vr(vAcc,16)}, {vr(A,4)}, {vr(B,4)}, {C}")
        for i in range(7):
            mine = [k for k, t in enumerate(seq) if t == ("c", i)]
            a(f"s_waitcnt vmcnt({len(seq) - 1 - max(mine)}) lgkmcnt(0)" if mine else "s_waitcnt lgkmcnt(0)")
            a("s_barrier")
            stamp(a, 1 + i) if i in (0, 6) else None
            if "cyc" in OPT and i in (0, 6): a(f"s_memtime s[{42 if i == 0 else 44}:{43 if i == 0 else 45}]")
            sl = i % 4
            hi = sl >= 2
            so = (sl % 2) * SLOT
            for sub in range(4):
                for u in range(2):
                    a(f"ds_read_b64_tr_b16 {vr(vW2[i%2]+4*sub+2*u,2)}, v{vWa+hi} offset:{so+sub*2048+u*512}")
                a(f"ds_read_b128 {vr(vXf+16*i+4*sub,4)}, v{vXa+sub+4*hi} offset:{so}")
            if "pipe" in OPT and i >= 1: mm(i - 1, False)
            if SPLIT and kt:
                pass
            elif i + PRE <= 6:
                (issue_chunk2 if SPLIT else issue_chunk)(i + PRE); seq += [("c", i + PRE)] * (6 if SPLIT else 3)
            elif i + PRE == 7:
                for q in range(NQ1):
                    issue_wq(q); seq += [("q", q)]
            elif i + PRE == 8:
                for q in range(NQ1, 7):
                    issue_wq(q); seq += [("q", q)]
            for ins in extra.get(i, []):
                a(ins); seq.append(("x", i))
            if "pipe" not in OPT or i == 6: mm(i, True)
    oclear = f"buffer_store_dwordx4 {vr(vSen,4)}, v{vL16}, {WS}, s{S_OA} offen {SC}"
    tagload = f"buffer_load_dwordx2 {vr(vN,2)}, v{vZ}, {DBG}, 0 offen {SC}"
    Lv = a.newlabel("L_vtype")
    Lpub = a.newlabel("L_pub")
    a(f"""
    s_cmp_lg_u32 s{S_HALF}, 0
    s_cbranch_scc1 {Lv}
    """)
    a.c("---- waves 0..3: K tile, then Q tile")
    a(f"""
    v_and_b32 v{vT+2}, 0x13, v{vT}
    v_lshlrev_b32 v{vT+3}, 1, v{vT}
    v_and_b32 v{vT+3}, 8, v{vT+3}
    v_lshrrev_b32 v{vT+4}, 1, v{vT}
    v_and_b32 v{vT+4}, 4, v{vT+4}
    v_or3_b32 v{vT+2}, v{vT+2}, v{vT+3}, v{vT+4}  ; swap23(tok)
    v_lshlrev_b32 v{vT+2}, 4, v{vT+2}
    v_mov_b32 v{vD+10}, 0x3f803f80
    v_mov_b32 v{vD+11}, 0x3f80
    v_mov_b32 v{vT+14}, 0x3f803f80
    v_mov_b32 v{vT+15}, 0x3f80
    s_add_u32 s59, s54, {WS_Q}
    s_lshl_b32 s34, s58, 2
    """)
    for aa in range(2):
        a(f"""
        v_add_u32 v{vT+3}, s34, v{vT+1}
        v_add_u32 v{vT+3}, {2*aa}, v{vT+3}       ; U
        v_mul_u32_u24 v{vT+4}, 37, v{vT+3}
        v_lshrrev_b32 v{vT+4}, 8, v{vT+4}        ; e
        v_mul_u32_u24 v{vT+5}, 7, v{vT+4}
        v_sub_u32 v{vT+6}, v{vT+3}, v{vT+5}      ; u7
        v_cmp_eq_u32 s[{S_M0+2*aa}:{S_M0+2*aa+1}], 3, v{vT+6}
        v_lshl_add_u32 v{vAd+aa}, v{vT+4}, 19, v{vT+2}
        v_lshrrev_b32 v{vT+5}, 2, v{vT+6}
        v_lshl_add_u32 v{vAd+aa}, v{vT+5}, 18, v{vAd+aa}
        v_and_b32 v{vT+5}, 3, v{vT+6}
        v_lshl_add_u32 v{vAd+aa}, v{vT+5}, 9, v{vAd+aa}
        v_add_u32 v{vT+5}, 0x40000, v{vAd+aa}
        v_cndmask_b32 v{vAd+2+aa}, v{vT+7}, v{vT+5}, s[{S_M0+2*aa}:{S_M0+2*aa+1}]
        """)
    kloop(True, {4: [tagload]})
    def unit_pack(aa, acc):
        L = [f"v_cvt_pk_bf16_f32 v{vD+4*aa+t}, v{acc+8*aa+2*t}, v{acc+8*aa+2*t+1}" for t in range(4)]
        X2 = vD + 8 if aa == 0 else vT + 12
        L += [f"v_mov_b32 v{X2}, v{vD+4*aa+2}", f"v_mov_b32 v{X2+1}, v{vD+4*aa+3}",
              f"v_cndmask_b32 v{vD+4*aa+2}, v{vD+4*aa+2}, v{vD+10}, s[{S_M0+2*aa}:{S_M0+2*aa+1}]",
              f"v_cndmask_b32 v{vD+4*aa+3}, v{vD+4*aa+3}, v{vD+11}, s[{S_M0+2*aa}:{S_M0+2*aa+1}]"]
        return L
    def unit_store(aa, soff):
        X2 = vD + 8 if aa == 0 else vT + 12
        return [f"buffer_store_dwordx4 {vr(vD+4*aa,4)}, v{vAd+aa}, {WS}, {soff} offen {SC}",
                f"buffer_store_dwordx4 {vr(X2,4)}, v{vAd+2+aa}, {WS}, {soff} offen {SC}"]
    a(f"s_waitcnt vmcnt({7 - NQ1})")
    a("s_barrier")
    vW2 = [vWf, 82]
    vQa = 98
    def qrd(i, sub):
        for u in range(2):
            a(f"ds_read_b64_tr_b16 {vr(vW2[i%2]+4*sub+2*u,2)}, v{vWqa} offset:{i*8192+sub*2048+u*512}")
    for sub in range(4): qrd(0, sub)
    KST = optint("kst", 8)
    fill = {}
    pk = unit_pack(0, vAcc) + unit_pack(1, vAcc)
    for m in range(4): fill[m + 1] = pk[4 * m:4 * m + 4]
    ks = unit_store(0, "s54") + unit_store(1, "s54")
    for m in range(4): fill[KST + m] = fill.get(KST + m, []) + [ks[m]]
    fill[20] = [f"v_mov_b32 v{vD+10}, 0", f"v_mov_b32 v{vD+11}, 0", f"v_mov_b32 v{vT+14}, 0", f"v_mov_b32 v{vT+15}, 0", f"s_mov_b32 s34, {QSCALE:#x}"]
    nst = 0
    for i in range(7):
        if i + 1 == NQ1:
            a(f"s_waitcnt vmcnt({nst})")
            a("s_barrier")
        for sub in range(4):
            if i + 1 < 7:
                qrd(i + 1, sub)
                a("s_waitcnt lgkmcnt(8)")
            else:
                a(f"s_waitcnt lgkmcnt({6-2*sub})")
            C = "0" if (i == 0 and sub == 0) else vr(vQa, 16)
            a(f"v_mfma_f32_32x32x16_bf16 {vr(vQa,16)}, {vr(vW2[i%2]+4*sub,4)}, {vr(vXf+16*i+4*sub,4)}, {C}")
            for ins in fill.get(4 * i + sub, []):
                a(ins)
                if ins.startswith("buffer_store"): nst += 1
            if 4 * i + sub == KST + 3: stamp(a, 2)
    a("s_nop 11")
    for aa in range(2):
        for r in range(8 * aa, 8 * aa + 8):
            a(f"v_mul_f32 v{vQa+r}, s34, v{vQa+r}")
        for ins in unit_pack(aa, vQa) + unit_store(aa, "s59"): a(ins)
    stamp(a, 4)
    a(f"s_branch {Lpub}")
    a.label(Lv)
    a.c("---- waves 4..7: V tile")
    a(f"""
    s_lshl_b32 s34, s58, 5
    v_add_u32 v{vT+2}, s34, v{vT}            ; C
    v_mul_u32_u24 v{vT+3}, 2341, v{vT+2}
    v_lshrrev_b32 v{vT+3}, 16, v{vT+3}       ; head
    v_mul_u32_u24 v{vT+4}, 28, v{vT+3}
    v_sub_u32 v{vT+6}, v{vT+2}, v{vT+4}      ; d
    v_lshl_add_u32 v{vT+4}, v{vT+1}, 5, v{vT+6}
    v_lshlrev_b32 v{vT+4}, 4, v{vT+4}
    v_lshl_add_u32 v{vAd}, v{vT+3}, 18, v{vT+4}
    v_cmp_eq_u32 vcc, 0, v{vT+6}
    v_mov_b32 v{vT+5}, 0x3f803f80
    s_nop 0
    v_cndmask_b32 v{vD+8}, 0, v{vT+5}, vcc
    v_cndmask_b32 v{vD+9}, 0, v{vT+5}, vcc
    v_cndmask_b32 v{vD+10}, 0, v{vT+5}, vcc
    v_cndmask_b32 v{vD+11}, 0, v{vT+5}, vcc
    v_cmp_gt_u32 vcc, 4, v{vT+6}
    s_nop 1
    v_cndmask_b32 v{vAd+1}, v{vT+7}, v{vAd}, vcc
    """)
    vpad = [f"buffer_store_dwordx4 {vr(vD+8,4)}, v{vAd+1}, {WS}, s54 offen offset:{o+448} {SC}" for o in (2048, 3072)]
    if "nowqpf" not in OPT:
        Lpf = a.newlabel("L_pf")
        a(f"""
        s_and_b32 s34, s{S_TH}, 7
        s_mul_i32 s34, s34, {56*2688}
        s_add_u32 s34, s34, s{sCol}
        v_and_b32 v{vT+8}, 15, v1
        v_min_u32 v{vT+8}, 13, v{vT+8}
        v_mad_u32_u24 v{vT+8}, s{S_T}, 14, v{vT+8}
        v_mul_u32_u24 v{vT+8}, 2688, v{vT+8}
        """)
        pf = [f"buffer_load_dword v{vT+9}, v{vT+8}, s[{S_W}:{S_W+3}], s34 offen"]
    else:
        pf = []
    kloop(False, {-1: pf, 4: [tagload]})
    a(f"s_waitcnt vmcnt({7 - NQ1})")
    a("s_barrier")
    a("s_nop 9")
    for t in range(8):
        a(f"v_cvt_pk_bf16_f32 v{vD+t}, v{vAcc+2*t}, v{vAcc+2*t+1}")
    if "vlate" in OPT:
        a(f"s_waitcnt vmcnt(0)")
        a("s_barrier")
    for i in range(2):
        a(f"buffer_store_dwordx4 {vr(vD+4*i,4)}, v{vAd}, {WS}, s54 offen offset:{2048+1024*i} {SC}")
    for ins in vpad: a(ins)
    stamp(a, 2)
    if "vlate" not in OPT:
        a(f"s_waitcnt vmcnt(4)")
        a("s_barrier")
    a.label(Lpub)
    a("s_waitcnt vmcnt(0)")
    nonce_wait()
    a("s_barrier")
    stamp(a, 3)
    Lp, Lpd = a.newlabel("L_poll1"), a.newlabel("L_poll1d")
    a(f"""
    buffer_store_dwordx2 {vr(vN,2)}, v{vF}, {WS}, s57 offen {SC}
    s_cmp_lg_u32 s{S_WV}, 4
    s_cbranch_scc1 {Lsync}
    s_mul_i32 s34, s{S_HEAD}, 28
    s_add_u32 s35, s34, 27
    s_lshr_b32 s34, s34, 6
    s_lshr_b32 s35, s35, 6
    v_mov_b32 v{vT}, s34
    s_mov_b32 exec_lo, 0
    v_mov_b32 v{vT}, s35
    s_mov_b32 exec_lo, -1
    v_and_b32 v{vT+1}, 4, v{vT}
    v_and_b32 v{vT}, 3, v{vT}
    v_lshl_add_u32 v{vT}, v{vT}, 6, v{vT+1}
    v_bfe_u32 v{vT+1}, v1, 3, 2
    v_add_u32 v{vT}, v{vT}, v{vT+1}
    v_and_b32 v{vT+1}, 7, v1
    v_lshl_add_u32 v{vT}, v{vT+1}, 3, v{vT}
    v_lshlrev_b32 v{vT}, 7, v{vT}
    s_mov_b32 s35, 0
    {Lp}:
    s_sleep {optint("sl1", 4)}
    buffer_load_dwordx2 {vr(vT+2,2)}, v{vT}, {WS}, s{S_FB} offen {SC}
    s_add_u32 s35, s35, 1
    s_waitcnt vmcnt(0)
    v_cmp_ne_u64 vcc, {vr(vT+2,2)}, {vr(vN,2)}
    s_cmp_ge_u32 s35, {SPIN_MAX}
    s_cbranch_scc1 {Lsync}
    s_cmp_lg_u64 vcc, 0
    s_cbranch_scc1 {Lp}
    """)
    a.label(Lsync)
    vL, vL2, vIdx = 3, 4, 5
    vO = 82
    vS = [32, 48, 64]
    vK = [128, 136]
    vV = [144, 152, 160, 168]
    vQ = 98
    vX = 106
    vG3, vOOB, vP2 = 176, 177, 178
    sG, sM0 = 46, 47
    a(f"""
    s_lshl_b32 s34, s{S_HALF}, 5
    s_add_u32 s34, s34, s{S_T}
    s_lshl_b32 s34, s34, 12
    s_lshl_b32 s{sG}, s{S_HEAD}, 18
    s_lshl_b32 s48, s{S_TILE}, 12
    s_add_u32 s48, s48, s{sG}
    s_add_u32 s48, s48, {WS_Q}            ; Q frags
    s_add_u32 s{sG}, s{sG}, s34
    s_lshl_b32 s{sM0}, s{S_WV}, 12
    s_mov_b32 m0, s{sM0}
    s_barrier
    """)
    stamp(a, 5)
    def load_q():
        a(f"buffer_load_dwordx4 {vr(vQ,4)}, v{vL16}, {WS}, s48 offen {SC}")
        a(f"buffer_load_dwordx4 {vr(vQ+4,4)}, v{vL16}, {WS}, s48 offen offset:1024 {SC}")
    def kvdma(piece):
        a(f"buffer_load_dwordx4 v{vL16}, {WS}, s{sG} offen offset:{piece*1024} {SC} lds")
    def maxchain(regs, t):
        regs = list(regs)
        a(f"v_max3_u32 v{t}, v{regs[0]}, v{regs[1]}, v{regs[2]}")
        rest = regs[3:]
        while len(rest) >= 2:
            a(f"v_max3_u32 v{t}, v{t}, v{rest[0]}, v{rest[1]}")
            rest = rest[2:]
        if rest:
            a(f"v_max_u32 v{t}, v{t}, v{rest[0]}")
    slowpaths = []
    def validate(regs, reload, t):
        Lr, Lb = a.newlabel("L_retry"), a.newlabel("L_back")
        maxchain(regs, t)
        a(f"v_cmp_eq_u32 vcc, -1, v{t}")
        a("s_nop 0")
        a("s_cmp_lg_u64 vcc, 0")
        a(f"s_cbranch_scc1 {Lr}")
        a.label(Lb)
        def emit():
            Ll = a.newlabel("L_rl")
            a.label(Lr)
            a("s_mov_b32 s35, 0")
            a.label(Ll)
            reload()
            a("s_add_u32 s35, s35, 1")
            a("s_waitcnt vmcnt(0)")
            maxchain(regs, t)
            a(f"v_cmp_eq_u32 vcc, -1, v{t}")
            a(f"s_cmp_ge_u32 s35, {SPIN_MAX}")
            a(f"s_cbranch_scc1 {Lb}")
            a("s_cmp_lg_u64 vcc, 0")
            a(f"s_cbranch_scc1 {Ll}")
            a(f"s_branch {Lb}")
        slowpaths.append(emit)
    for f in range(4): kvdma(f)
    load_q()
    for st in (1, 2):
        a("s_barrier")
        a(f"s_add_u32 m0, s{sM0}, {st*32768}")
        a(f"s_add_u32 s{sG}, s{sG}, 16384")
        for f in range(4): kvdma(f)
    a(f"""
    s_lshl_b32 s34, s{S_HALF}, 14
    v_add_u32 v{vL}, s34, v{vL16}
    v_add_u32 v{vL2}, 0x10000, v{vL}
    v_mov_b32 v{vIdx}, 0xdddddddd
    v_lshrrev_b32 v{vT}, 3, v0            ; 8w + r
    v_lshrrev_b32 v{vT+1}, 3, v1
    v_and_b32 v{vT+1}, 6, v{vT+1}
    v_and_b32 v{vT+2}, 7, v1
    v_xor_b32 v{vT+1}, v{vT+1}, v{vT+2}
    v_mul_u32_u24 v{vG3}, 896, v{vT}
    v_lshl_add_u32 v{vG3}, v{vT+1}, 4, v{vG3}
    v_mov_b32 v{vOOB}, {OOB}
    s_lshr_b32 s49, s2, 5
    s_min_u32 s49, s49, 6
    s_lshl_b32 s49, s49, 7
    s_lshl_b32 s54, s{S_WV}, 10
    s_add_u32 s57, s57, {WS_F2-WS_F1}
    s_mov_b32 s{S_FB}, {WS_F2}
    s_and_b32 s34, s2, 7
    s_lshl_b32 s34, s34, 2
    s_bfe_u32 s35, s2, 0x20003
    s_add_u32 s{S_TH}, s34, s35
    s_lshr_b32 s34, s{S_TH}, 1
    s_lshl_b32 s34, s34, 3
    s_lshl_b32 s35, s{S_HALF}, 2
    s_add_u32 s34, s34, s35
    v_bfe_u32 v{vT}, v1, 1, 2
    v_add_u32 v{vT}, s34, v{vT}
    v_and_b32 v{vT+1}, 1, v1
    v_lshl_add_u32 v{vT}, v{vT+1}, 7, v{vT}
    v_lshlrev_b32 v{vP2}, 7, v{vT}
    """)
    for r in range(16):
        a(f"v_mov_b32 v{vO+r}, 0")
    a("s_waitcnt vmcnt(8)")
    stamp(a, 6)
    a("s_barrier")
    stamp(a, 8)
    def ldsaddr(u, off):
        slot = (u // 4) % 3
        o = slot * 32768 + (u % 4) * 4096 + off
        return (vL, o) if o < 65536 else (vL2, o - 65536)
    def rd(dst, u, off):
        r, o = ldsaddr(u, off)
        a(f"ds_read_b128 {vr(dst,4)}, v{r} offset:{o}")
    def rdK(u, f): rd(vK[u % 2] + 4 * f, u, f * 1024)
    def rdV(u, f): rd(vV[u % 4] + 4 * f, u, 2048 + f * 1024)
    def QK(u, i, K=None):
        C = "0" if i == 0 else vr(vS[u % 3], 16)
        K = vK[u % 2] if K is None else K
        a(f"v_mfma_f32_32x32x16_bf16 {vr(vS[u%3],16)}, {vr(K+4*i,4)}, {vr(vQ+4*i,4)}, {C}")
    def PV(u, i):
        a(f"v_smfmac_f32_32x32x32_bf16 {vr(vO,16)}, {vr(vV[u%4]+4*i,4)}, {vr(vS[u%3]+8*i,8)}, v{vIdx}")
    def E(u, r0, r1):
        for r in range(r0, r1):
            a(f"v_exp_f32 v{vS[u%3]+r}, v{vS[u%3]+r}")
    a(f"""
    ds_read_b128 {vr(vV[2],4)}, v{vL16}
    ds_read_b128 {vr(vV[2]+4,4)}, v{vL16} offset:1024
    """)
    rdK(0, 0); rdK(0, 1); rdK(1, 0); rdK(1, 1); rdV(0, 0); rdV(0, 1); rdV(1, 0); rdV(1, 1)
    a("s_waitcnt lgkmcnt(8)")
    QK(2, 0, vV[2]); QK(2, 1, vV[2])
    a("s_waitcnt lgkmcnt(6)")
    QK(0, 0)
    a("s_nop 9")
    S = vS[2]
    a(f"v_max3_f32 v{vT}, v{S}, v{S+1}, v{S+2}")
    a(f"v_max3_f32 v{vT+1}, v{S+3}, v{S+4}, v{S+5}")
    for r in (6, 10):
        a(f"v_max3_f32 v{vT}, v{vT}, v{S+r}, v{S+r+1}")
        a(f"v_max3_f32 v{vT+1}, v{vT+1}, v{S+r+2}, v{S+r+3}")
    a(f"v_max3_f32 v{vT}, v{vT}, v{S+14}, v{S+15}")
    a(f"""
    v_max_f32 v{vT}, v{vT}, v{vT+1}
    v_mov_b32 v{vT+1}, v{vT}
    s_nop 1
    v_permlane32_swap_b32 v{vT}, v{vT+1}
    v_max_f32 v{vT}, v{vT}, v{vT+1}
    s_mov_b32 exec_lo, 0
    v_cvt_pk_bf16_f32 v{vQ+6}, -v{vT}, 0
    s_mov_b32 exec_lo, -1
    s_waitcnt lgkmcnt(4)
    """)
    QK(0, 1)
    rdK(2, 0); rdK(2, 1)
    a("s_nop 7")
    stamp(a, 9)
    F2AT, P2AT = optint("f2at", 28), optint("p2at", 31)
    for t in range(32):
        newst = 1 <= t <= 20 and (t - 1) % 4 == 0
        st = (t - 1) // 4 + 3
        if t + 1 < 32: QK(t + 1, 0)
        if newst:
            a(f"s_add_u32 s{sG}, s{sG}, 16384")
        elif 21 <= t <= 27:
            a(f"s_add_u32 s34, s49, {(t-21)*57344}")
        if t + 2 < 32: rdV(t + 2, 0)
        E(t, 0, 4)
        if t + 1 < 32: QK(t + 1, 1)
        if newst:
            a(f"s_add_u32 m0, s{sM0}, {(st % 3) * 32768}")
        elif 21 <= t <= 28:
            a(f"s_add_u32 m0, s54, {98304 + (t-21)*8192}")
        if t + 2 < 32: rdV(t + 2, 1)
        E(t, 4, 8)
        if t >= 1: PV(t - 1, 1)
        if t % 4 == 1 and t <= 25:
            a(f"s_waitcnt vmcnt({5 if (t == 9 or t - 4 <= F2AT < t) else 4}) lgkmcnt(0)")
            a("s_barrier")
        a(f"s_setprio {3 - ((t - 1) % 4) if t < 25 else 3 - (t - 25) // 2}")
        if t + 3 < 32: rdK(t + 3, 0)
        if 1 <= t <= 20:
            kvdma((t - 1) % 4)
        elif 21 <= t <= 27:
            a(f"buffer_load_dwordx4 v{vG3}, s[{S_WO}:{S_WO+3}], s34 offen lds")
        elif t == 28:
            a(f"buffer_load_dwordx4 v{vOOB}, s[{S_WO}:{S_WO+3}], 0 offen lds")
        if t == P2AT:
            a(f"buffer_load_dwordx2 {vr(vSen,2)}, v{vP2}, {WS}, s{S_FB} offen {SC}")
        E(t, 8, 12)
        if t == 0:
            a("s_waitcnt lgkmcnt(5)")
        PV(t, 0)
        if t + 3 < 32:
            a("s_waitcnt lgkmcnt(3)")
            rdK(t + 3, 1)
            if t == 6: a(oclear)
        else:
            a("s_waitcnt lgkmcnt(0)")
        if t == F2AT: a(f"buffer_store_dwordx2 {vr(vN,2)}, v{vF}, {WS}, s57 offen {SC}")
        E(t, 12, 16)
    a("s_nop 1")
    PV(31, 1)
    stamp(a, 10)
    a.c("---- combine the two kv halves in slot 0 (stage 6 data is dead)")
    LB, LJ, Lslow, Lst = a.newlabel("L_halfB"), a.newlabel("L_join"), a.newlabel("L_slow"), a.newlabel("L_store")
    a(f"""
    s_mul_i32 s34, s{S_WV}, 2304
    s_xor_b32 s35, s{S_WV}, 4
    s_mul_i32 s35, s35, 2304
    v_add_u32 v{vT}, s34, v{vL16}
    v_add_u32 v{vT+1}, s35, v{vL16}
    v_lshl_add_u32 v{vT+2}, v1, 2, s34
    v_or_b32 v{vT+3}, 32, v1
    v_lshl_add_u32 v{vT+4}, v{vT+3}, 2, s35
    v_lshl_add_u32 v{vT+3}, v{vT+3}, 2, s34
    s_nop 0
    s_cmp_lg_u32 s{S_HALF}, 0
    s_cbranch_scc1 {LB}
    ds_write_b128 v{vT}, {vr(vO+8,4)}
    ds_write_b128 v{vT}, {vr(vO+12,4)} offset:1024
    ds_write_b32 v{vT+2}, v{vO+12} offset:2048
    s_branch {LJ}
    {LB}:
    ds_write_b128 v{vT}, {vr(vO,4)}
    ds_write_b128 v{vT}, {vr(vO+4,4)} offset:1024
    ds_write_b32 v{vT+2}, v{vO+12} offset:2048
    s_nop 1
    """)
    for r in range(8):
        a(f"v_mov_b32 v{vO+r}, v{vO+8+r}")
    a(f"""
    {LJ}:
    s_waitcnt vmcnt({2 if F2AT >= 28 else 1}) lgkmcnt(0)
    s_barrier
    ds_read_b32 v{vX+8}, v{vT+3} offset:2048
    ds_read_b32 v{vX+9}, v{vT+4} offset:2048
    ds_read_b128 {vr(vX,4)}, v{vT+1}
    ds_read_b128 {vr(vX+4,4)}, v{vT+1} offset:1024
    s_waitcnt lgkmcnt(2)
    v_add_f32 v{vX+8}, v{vX+8}, v{vX+9}
    v_rcp_f32 v{vX+9}, v{vX+8}
    s_mov_b32 s34, 0x2b800000
    s_mov_b32 s35, 0x53800000
    s_waitcnt lgkmcnt(0)
    """)
    for r in range(8):
        a(f"v_add_f32 v{vO+r}, v{vO+r}, v{vX+r}")
    for r in range(8):
        a(f"v_fmac_f32 v{vX+8}, 0, v{vO+r}")
    a(f"""
    v_cmp_nle_f32 vcc, s34, v{vX+8}
    v_cmp_nge_f32 s[58:59], s35, v{vX+8}
    s_nop 0
    s_or_b64 vcc, vcc, s[58:59]
    s_cbranch_scc1 {Lslow}
    {Lst}:
    s_mov_b32 s35, 0xfffffffe
    """)
    for r in range(8):
        a(f"v_mul_f32 v{vO+r}, v{vO+r}, v{vX+9}")
    for t in range(4):
        a(f"v_cvt_pk_bf16_f32 v{vX+t}, v{vO+2*t}, v{vO+2*t+1}")
    for t in range(4):
        a(f"v_min_u32 v{vX+t}, s35, v{vX+t}")
    Lnz = a.newlabel("L_nz")
    a(f"""
    s_cmp_eq_u32 s{S_HALF}, 0
    s_cbranch_scc1 {Lnz}
    s_mov_b32 exec_lo, 0
    v_mov_b32 v{vX+2}, 0
    v_mov_b32 v{vX+3}, 0
    s_mov_b32 exec_lo, -1
    {Lnz}:
    buffer_store_dwordx4 {vr(vX,4)}, v{vL16}, {WS}, s{S_OA} offen {SC}
    s_cmp_ge_u32 s2, 224
    s_cbranch_scc1 {"L_fin" if STAMPS else done}
    """)
    stamp(a, 11)
    vOg = 3
    vA = 8
    vAc3 = 32
    vOf = 48
    vWo = 128
    WOB_L = 98304
    a(f"""
    v_mov_b32 v2, v{vP2}
    v_lshrrev_b32 v{vT}, 4, v1            ; g
    v_and_b32 v{vT+1}, 15, v1
    v_bfe_u32 v{vT+2}, v1, 2, 2           ; r'
    v_bfe_u32 v{vT+3}, v1, 4, 1           ; g&1
    v_lshrrev_b32 v{vT+4}, 5, v1          ; g>>1
    v_lshl_add_u32 v{vT+5}, v{vT+3}, 2, v{vT+2}
    v_lshl_add_u32 v{vT+5}, v{vT+4}, 4, v{vT+5}   ; row
    v_lshrrev_b32 v{vT+6}, 1, v{vT+2}
    v_lshl_add_u32 v{vT+6}, v{vT+3}, 1, v{vT+6}   ; s0
    v_lshlrev_b32 v{vT+6}, 5, v{vT+6}
    v_lshl_add_u32 v{vT+5}, v{vT+5}, 7, v{vT+6}
    v_and_b32 v{vT+6}, 3, v1
    v_lshl_add_u32 v{vT+5}, v{vT+6}, 3, v{vT+5}
    s_mul_i32 s34, s{S_HALF}, {8*28*128}
    s_add_u32 s34, s34, {WOB_L}
    v_add_u32 v{vA}, s34, v{vT+5}
    v_xor_b32 v{vA+1}, 32, v{vA}
    v_xor_b32 v{vA+2}, 64, v{vA}
    v_xor_b32 v{vA+3}, 0x60, v{vA}
    """)
    def wr(hh):
        for ct in range(4):
            for u in range(2):
                a(f"ds_read_b64_tr_b16 {vr(vWo+16*hh+4*ct+2*u,2)}, v{vA+(ct^(2*(hh&1)))} offset:{(28*hh+8*u)*128}")
    NW1 = optint("nw1", 4)
    for hh in range(NW1):
        wr(hh)
        a("s_waitcnt lgkmcnt(4)")
    XB3 = 20480
    Lf2r, Lf2b = a.newlabel("L_f2r"), a.newlabel("L_f2b")
    a(f"""
    v_lshlrev_b32 v{vOg}, 9, v{vT}
    v_lshl_add_u32 v{vOg}, v{vT+1}, 4, v{vOg}
    s_lshl_b32 s34, s{S_TH}, 1
    s_lshr_b32 s35, s{S_T}, 1
    s_add_u32 s34, s34, s35
    s_lshl_b32 s34, s34, 15
    s_lshl_b32 s35, s{S_HALF}, 14
    s_add_u32 s48, s34, s35
    s_and_b32 s34, s{S_T}, 1
    s_lshl_b32 s34, s34, 8
    s_add_u32 s48, s48, s34
    s_add_u32 s48, s48, {WS_O}
    s_add_u32 s46, s48, 4096
    s_add_u32 s47, s48, 8192
    s_add_u32 s51, s48, 12288
    v_and_b32 v{vT+4}, 3, v1
    v_lshlrev_b32 v{vT+5}, 1, v1
    v_and_b32 v{vT+5}, 8, v{vT+5}
    v_lshrrev_b32 v{vT+6}, 1, v1
    v_and_b32 v{vT+6}, 4, v{vT+6}
    v_or3_b32 v{vT+4}, v{vT+4}, v{vT+5}, v{vT+6}
    v_mul_u32_u24 v{vT+4}, 272, v{vT+4}
    v_lshl_add_u32 v{vT+4}, v{vT}, 4, v{vT+4}
    s_mul_i32 s34, s{S_WV}, 4352
    v_add_u32 v{vT+2}, s34, v{vT+4}
    v_lshrrev_b32 v{vT+5}, 3, v0
    v_and_b32 v{vT+6}, 7, v0
    v_mul_u32_u24 v{vT+3}, 272, v{vT+5}
    v_lshl_add_u32 v{vT+3}, v{vT+6}, 5, v{vT+3}
    v_mul_u32_u24 v{vT+4}, 896, v{vT+5}
    v_lshl_add_u32 v{vT+4}, v{vT+6}, 4, v{vT+4}
    s_mul_i32 s50, s{S_TH}, 57344
    s_add_u32 s50, s50, s49
    s_waitcnt vmcnt({optint("ow", 1)})
    v_cmp_ne_u64 vcc, {vr(vSen,2)}, {vr(vN,2)}
    s_nop 0
    s_cmp_lg_u64 vcc, 0
    s_cbranch_scc1 {Lf2r}
    {Lf2b}:
    s_mov_b32 s35, 0
    """)
    def f2retry():
        Ll = a.newlabel("L_f2l")
        a(f"""
        {Lf2r}:
        s_mov_b32 s35, 0
        {Ll}:
        s_sleep {optint("sl2", 2)}
        buffer_load_dwordx2 {vr(vSen,2)}, v2, {WS}, s{S_FB} offen {SC}
        s_add_u32 s35, s35, 1
        s_waitcnt vmcnt(0)
        v_cmp_ne_u64 vcc, {vr(vSen,2)}, {vr(vN,2)}
        s_cmp_ge_u32 s35, {SPIN_MAX}
        s_cbranch_scc1 {Lf2b}
        s_cmp_lg_u64 vcc, 0
        s_cbranch_scc1 {Ll}
        s_branch {Lf2b}
        """)
    slowpaths.append(f2retry)
    stamp(a, 12)
    def oload(hh):
        so = ["s48", "s46", "s47", "s51"][hh // 2]
        a(f"buffer_load_dwordx4 {vr(vOf+4*hh,4)}, v{vOg}, {WS}, {so} offen offset:{(hh%2)*2048} {SC}")
    def ocheck(hh, first):
        o4 = vOf + 4 * hh
        Lacc, Lskip = a.newlabel("L_oa"), a.newlabel("L_os")
        if not first:
            a(f"s_bitcmp0_b32 s34, {hh}")
            a(f"s_cbranch_scc1 {Lskip}")
            a(f"s_bitcmp0_b32 s56, {hh}")
            a(f"s_cbranch_scc1 {Lacc}")
        a(f"""
        v_max3_u32 v{vT+5}, v{o4}, v{o4+1}, v{o4+2}
        v_max_u32 v{vT+5}, v{vT+5}, v{o4+3}
        v_cmp_eq_u32 vcc, -1, v{vT+5}
        s_nop 0
        s_cmp_lg_u64 vcc, 0
        s_cbranch_scc1 {Lskip}
        s_bitset0_b32 s56, {hh}
        {Lacc}:
        """)
        if hh:
            a(f"s_and_b32 s58, s56, {(1 << hh) - 1}")
            a(f"s_cbranch_scc1 {Lskip}")
        a(f"s_bitset0_b32 s34, {hh}")
        for ct in range(4):
            C = "0" if hh == 0 else vr(vAc3 + 4 * ct, 4)
            a(f"v_mfma_f32_16x16x32_bf16 {vr(vAc3+4*ct,4)}, {vr(vWo+16*hh+4*ct,4)}, {vr(vOf+4*hh,4)}, {C}")
        a.label(Lskip)
    for hh in range(8): oload(hh)
    for hh in range(NW1, 8):
        wr(hh)
        a("s_waitcnt lgkmcnt(4)")
    Lo, Lo2, Lod = a.newlabel("L_o"), a.newlabel("L_o2"), a.newlabel("L_od")
    a(f"s_branch {Lo2}")
    a.label(Lo)
    for hh in range(8): oload(hh)
    a.label(Lo2)
    for hh in range(8):
        a(f"s_waitcnt vmcnt({7-hh}) lgkmcnt(0)")
        for ct in range(4):
            C = "0" if hh == 0 else vr(vAc3 + 4 * ct, 4)
            a(f"v_mfma_f32_16x16x32_bf16 {vr(vAc3+4*ct,4)}, {vr(vWo+16*hh+4*ct,4)}, {vr(vOf+4*hh,4)}, {C}")
        o4 = vOf + 4 * hh
        if hh == 0:
            a(f"v_max3_u32 v{vT+5}, v{o4}, v{o4+1}, v{o4+2}")
            a(f"v_max_u32 v{vT+5}, v{vT+5}, v{o4+3}")
        else:
            a(f"v_max3_u32 v{vT+5}, v{vT+5}, v{o4}, v{o4+1}")
            a(f"v_max3_u32 v{vT+5}, v{vT+5}, v{o4+2}, v{o4+3}")
    a(f"""
    v_cmp_eq_u32 vcc, -1, v{vT+5}
    s_add_u32 s35, s35, 1
    s_cmp_ge_u32 s35, {SPIN_MAX}
    s_cbranch_scc1 {Lod}
    s_cmp_lg_u64 vcc, 0
    s_cbranch_scc1 {Lo}
    {Lod}:
    """)
    stamp(a, 13)
    if STAMPS: a("s_mov_b32 s94, s35")
    a("s_nop 1")
    for ct in range(4):
        a(f"ds_write_b128 v{vT+2}, {vr(vAc3+4*ct,4)} offset:{XB3+64*ct}")
    a(f"""
    s_waitcnt lgkmcnt(0)
    s_barrier
    ds_read_b128 {vr(vX,4)}, v{vT+3} offset:{XB3}
    ds_read_b128 {vr(vX+8,4)}, v{vT+3} offset:{XB3+17408}
    ds_read_b128 {vr(vX+4,4)}, v{vT+3} offset:{XB3+16}
    ds_read_b128 {vr(vX+12,4)}, v{vT+3} offset:{XB3+17408+16}
    s_waitcnt lgkmcnt(2)
    """)
    for r in range(4):
        a(f"v_add_f32 v{vX+r}, v{vX+r}, v{vX+8+r}")
    a("s_waitcnt lgkmcnt(0)")
    for r in range(4, 8):
        a(f"v_add_f32 v{vX+r}, v{vX+r}, v{vX+8+r}")
    for t in range(4):
        a(f"v_cvt_pk_bf16_f32 v{vX+8+t}, v{vX+2*t}, v{vX+2*t+1}")
    a(f"buffer_store_dwordx4 {vr(vX+8,4)}, v{vT+4}, s[{S_OUT}:{S_OUT+3}], s50 offen {OSC}")
    if STAMPS:
        a("s_waitcnt vmcnt(0)")
        stamp(a, 14)
        a.label("L_fin")
        a("s_memrealtime s[96:97]")
        a("s_waitcnt lgkmcnt(0)")
        for i in range(15):
            a(f"v_mov_b32 v{8+i}, s{64+2*i}")
        if "cyc" in OPT: a("s_sub_u32 s94, s44, s42")
        a("v_mov_b32 v23, s94")
        a("v_mov_b32 v24, s98")
        a("v_mov_b32 v25, s96")
        a("v_mov_b32 v26, 0")
        a("v_mov_b32 v27, 0")
        a(f"""
        s_lshl_b32 s34, s2, 3
        s_add_u32 s34, s34, s{S_WV}
        s_lshl_b32 s34, s34, 7
        s_add_u32 s34, s34, {WS_ST}
        s_mov_b64 exec, 1
        buffer_store_dwordx4 v[8:11], v{vZ}, {WS}, s34 offen
        buffer_store_dwordx4 v[12:15], v{vZ}, {WS}, s34 offen offset:16
        buffer_store_dwordx4 v[16:19], v{vZ}, {WS}, s34 offen offset:32
        buffer_store_dwordx4 v[20:23], v{vZ}, {WS}, s34 offen offset:48
        buffer_store_dwordx4 v[24:27], v{vZ}, {WS}, s34 offen offset:64
        """)
    a.label(done)
    a("s_endpgm")
    for e in slowpaths: e()
    a.label(Lspare)
    a(f"""
    s_cmp_lg_u32 s2, 255
    s_cbranch_scc1 {Lnn}
    s_or_b32 s62, s62, 1
    v_mov_b32 v{vN}, s62
    v_mov_b32 v{vN+1}, s63
    buffer_store_dwordx2 {vr(vN,2)}, v{vF}, {DBG}, 0 offen {SC}
    s_waitcnt vmcnt(0)
    {Lnn}:
    {tagload}
    s_branch {Lpub}
    """)
    a.label(Lslow)
    L1, L2, Lh = a.newlabel("L_s1"), a.newlabel("L_s2"), a.newlabel("L_sh")
    sCnt = 48
    a(f"""
    s_mov_b32 exec_lo, 0
    v_mov_b32 v{vQ+6}, 0
    v_mov_b32 v{vQ+7}, 0
    s_mov_b32 exec_lo, -1
    v_mov_b32 v{vT}, 0xff800000
    s_lshl_b32 s{sG}, s{S_HEAD}, 18
    s_mov_b32 s{sCnt}, 0
    {L1}:
    buffer_load_dwordx4 {vr(vK[0],4)}, v{vL16}, {WS}, s{sG} offen {SC}
    buffer_load_dwordx4 {vr(vK[0]+4,4)}, v{vL16}, {WS}, s{sG} offen offset:1024 {SC}
    s_waitcnt vmcnt(0)
    """)
    QK(0, 0); QK(0, 1)
    a("s_nop 15")
    for r in range(0, 16, 2):
        a(f"v_max3_f32 v{vT}, v{vT}, v{vS[0]+r}, v{vS[0]+r+1}")
    a(f"""
    s_add_u32 s{sG}, s{sG}, 4096
    s_add_u32 s{sCnt}, s{sCnt}, 1
    s_cmp_lt_u32 s{sCnt}, 64
    s_cbranch_scc1 {L1}
    v_mov_b32 v{vT+1}, v{vT}
    s_nop 1
    v_permlane32_swap_b32 v{vT}, v{vT+1}
    s_nop 1
    v_max_f32 v{vT}, v{vT}, v{vT+1}
    v_and_b32 v{vT+1}, 0xffff0000, v{vT}       ; hi
    v_sub_f32 v{vT+2}, v{vT}, v{vT+1}
    v_and_b32 v{vT+3}, 0xffff0000, v{vT+2}     ; mid
    v_sub_f32 v{vT+2}, v{vT+2}, v{vT+3}        ; lo
    s_mov_b32 exec_lo, 0
    v_cvt_pk_bf16_f32 v{vQ+6}, -v{vT+1}, -v{vT+3}
    v_cvt_pk_bf16_f32 v{vQ+7}, -v{vT+2}, 0
    s_mov_b32 exec_lo, -1
    """)
    for r in range(16):
        a(f"v_mov_b32 v{vO+r}, 0")
    a(f"""
    s_lshl_b32 s{sG}, s{S_HEAD}, 18
    s_mov_b32 s{sCnt}, 0
    {L2}:
    buffer_load_dwordx4 {vr(vK[0],4)}, v{vL16}, {WS}, s{sG} offen {SC}
    buffer_load_dwordx4 {vr(vK[0]+4,4)}, v{vL16}, {WS}, s{sG} offen offset:1024 {SC}
    buffer_load_dwordx4 {vr(vV[0],4)}, v{vL16}, {WS}, s{sG} offen offset:2048 {SC}
    buffer_load_dwordx4 {vr(vV[0]+4,4)}, v{vL16}, {WS}, s{sG} offen offset:3072 {SC}
    s_waitcnt vmcnt(0)
    """)
    QK(0, 0); QK(0, 1)
    a("s_nop 15")
    E(0, 0, 16)
    a("s_nop 1")
    PV(0, 0); PV(0, 1)
    a(f"""
    s_nop 7
    s_add_u32 s{sG}, s{sG}, 4096
    s_add_u32 s{sCnt}, s{sCnt}, 1
    s_cmp_lt_u32 s{sCnt}, 64
    s_cbranch_scc1 {L2}
    s_nop 15
    v_mov_b32 v{vX+8}, v{vO+12}
    v_mov_b32 v{vX+9}, v{vO+12}
    s_nop 1
    v_permlane32_swap_b32 v{vX+8}, v{vX+9}
    s_nop 1
    v_rcp_f32 v{vX+9}, v{vX+9}
    s_cmp_eq_u32 s{S_HALF}, 0
    s_cbranch_scc1 {Lh}
    """)
    for r in range(8):
        a(f"v_mov_b32 v{vO+r}, v{vO+8+r}")
    a(f"""
    {Lh}:
    s_nop 1
    s_branch {Lst}
    """)
    a.raw('.section .rodata,"a"')
    a.raw(".p2align 6")
    a.raw(kernel_desc(NAME, 256, 102).rstrip("\n"))
    return a.text()

if __name__ == "__main__":
    out = sys.argv[1] if len(sys.argv) > 1 else "standalone__softmax_full_mha__prompt.s"
    OPT.update(sys.argv[2:])
    STAMPS = "stamps" in OPT
    open(out, "w").write(build())
```

```python
import sys, struct, math
from asmlib import *

WS_KV = 0
WS_Q = 0x400000
WS_O = 0x800000
WS_F1 = 0xa00000
WS_F2 = 0xa10000
WS_ST = 0xc00000
WS_BYTES = 0xd00000
OOB = 0x40000000
XB, WB, WOB, OUTB = 1835008, 1204224, 401408, 1835008
QSCALE = struct.unpack("<I", struct.pack("<f", math.log2(math.e) / math.sqrt(28.0)))[0]
SPIN_MAX = 1 << 18

S_X, S_W, S_WS, S_WO, S_OUT, S_DBG = 8, 12, 16, 20, 24, 4
S_QB, S_WV, S_HEAD, S_ROT = 28, 31, 32, 33
S_TH, S_TILE, S_C, S_HALF, S_T = 52, 53, 55, 60, 61
S_M0 = 36
S_OA, S_FB = 40, 41
SC = "sc1"
OPT = set()
STAMPS = False
NAME = "standalone__softmax_full_mha__prompt_kernel"
WS = f"s[{S_WS}:{S_WS+3}]"
DBG = f"s[{S_DBG}:{S_DBG+3}]"

def stamp(a, i):
    if STAMPS:
        a(f"s_memrealtime s[{64+2*i}:{65+2*i}]")

def optint(name, default):
    for o in OPT:
        if o.startswith(name + "="):
            return int(o.split("=")[1])
    return default

def build():
    a = Asm()
    HEADER = open("standalone__softmax_full_mha__prompt.s.ref").read().split("; Override launch")[0]
    a.raw(HEADER.rstrip("\n"))
    a.raw("; @launch grid=(256,1,1) block=(512,1,1) lds=163840")
    a.raw('.amdgcn_target "amdgcn-amd-amdhsa--gfx950"\n.text')
    a.raw(f".globl {NAME}\n.p2align 8\n.type {NAME},@function\n{NAME}:")
    if STAMPS:
        a("s_memrealtime s[98:99]")
    done = "L_done"
    OSC = "sc0 sc1" if "oplain" not in OPT else ""
    vXg, vWg = 2, 3
    vWa = 4
    vF = 6
    vZ = 7
    vXa = 8
    vT = 16
    vAcc = 32
    vWf = 48
    vD = 64
    vAd = 76
    vN = 80
    vWqa = 122
    vL16 = 123
    vSen = 124
    vXf = 128
    sC, sXo, sWo, sCol, sM, sXbase = 46, 47, 48, 49, 50, 51
    SLOT = 24576
    WQB = 98304
    Lspare, Lsync = a.newlabel("L_spare"), a.newlabel("L_sync1")
    a(f"""
    s_cmp_ge_u32 s2, 256
    s_cbranch_scc1 {done}
    s_load_dwordx4 s[36:39], s[0:1], 0
    s_load_dwordx4 s[40:43], s[0:1], 16
    s_load_dwordx4 {DBG}, s[0:1], 32
    s_memrealtime s[62:63]
    v_lshrrev_b32 v{vT}, 6, v0
    v_and_b32 v1, 63, v0
    s_and_b32 s34, s2, 3                  ; tg
    s_bfe_u32 s35, s2, 0x30003            ; r5 & 7
    v_readfirstlane_b32 s{S_WV}, v{vT}
    s_lshl_b32 s{S_TH}, s34, 3
    s_add_u32 s{S_TH}, s{S_TH}, s35
    s_lshr_b32 s{S_C}, s2, 6              ; cl
    s_lshl_b32 s{sC}, s{S_C}, 1
    s_add_u32 s{sC}, s{sC}, s35
    s_cmp_ge_u32 s{sC}, 7
    s_cselect_b32 s35, 7, 0
    s_sub_u32 s{sC}, s{sC}, s35
    s_and_b32 s35, s2, 4
    s_lshr_b32 s34, s2, 3
    s_xor_b32 s34, s34, s2
    s_and_b32 s34, s34, 4
    s_cmp_eq_u32 s{S_C}, 3
    s_cselect_b32 s35, s34, s35
    s_add_u32 s{S_C}, s{S_C}, s35
    s_mov_b32 s{S_X+2}, {XB}
    s_mov_b32 s{S_X+3}, 0x00020000
    s_mov_b32 s{S_W+2}, {WB}
    s_mov_b32 s{S_W+3}, 0x00020000
    s_cmp_lg_u32 s{S_C}, 7
    s_cbranch_scc1 L_work
    ; spare workgroup: pull the kernel's own code into this XCD's L2
    s_getpc_b64 s[44:45]
    L_pc:
    s_sub_u32 s44, s44, L_pc-{NAME}
    s_subb_u32 s45, s45, 0
    s_mov_b32 s46, L_end-{NAME}
    s_mov_b32 s47, 0x00020000
    v_lshlrev_b32 v{vT+10}, 7, v0
    buffer_load_dword v{vT+11}, v{vT+10}, s[44:47], 0 offen
    s_and_b32 s34, s{S_TH}, 3
    s_and_b32 s35, s2, 4
    s_cmp_eq_u32 s34, 3
    s_cselect_b32 s35, 0, s35
    s_add_u32 s34, s34, s35
    s_lshl_b32 s34, s34, 7
    v_mul_u32_u24 v{vT+10}, 2688, v0
    s_waitcnt lgkmcnt(0)
    s_mov_b32 s{S_W}, s38
    s_mov_b32 s{S_W+1}, s39
    {"" if "wqown" in OPT else f"buffer_load_dword v{vT+11}, v{vT+10}, s[{S_W}:{S_W+3}], s34 offen"}
    s_branch L_sp1
    L_work:
    v_lshrrev_b32 v{vT+2}, 3, v0          ; 8w + r
    v_and_b32 v{vT+1}, 7, v1              ; pos
    v_bfe_u32 v{vT+3}, v0, 4, 3           ; swz = ((8w+r)>>1)&7
    v_xor_b32 v{vT+3}, v{vT+3}, v{vT+1}
    v_mul_u32_u24 v{vXg}, 896, v{vT+2}
    v_lshl_add_u32 v{vXg}, v{vT+3}, 4, v{vXg}
    v_lshrrev_b32 v{vT+3}, 2, v1
    v_and_b32 v{vT+3}, 4, v{vT+3}         ; ((r>>1)&1)*4
    v_xor_b32 v{vT+3}, v{vT+3}, v{vT+1}
    v_mul_u32_u24 v{vWg}, 2688, v{vT+2}
    v_lshl_add_u32 v{vWg}, v{vT+3}, 4, v{vWg}
    s_mul_i32 s{sXbase}, s{S_TH}, 57344
    s_lshl_b32 s{sCol}, s{S_C}, 7
    s_lshl_b32 s{sM}, s{S_WV}, 10
    s_waitcnt lgkmcnt(0)
    s_mov_b32 s{S_X}, s36
    s_mov_b32 s{S_X+1}, s37
    s_mov_b32 s{S_W}, s38
    s_mov_b32 s{S_W+1}, s39
    """)
    def adv():
        a(f"""
        s_add_u32 s{sC}, s{sC}, 1
        s_cmp_eq_u32 s{sC}, 7
        s_cselect_b32 s{sC}, 0, s{sC}
        """)
    def issue_chunk(i):
        sl = (i % 4) * SLOT
        a(f"""
        s_lshl_b32 s{sXo}, s{sC}, 7
        s_add_u32 s{sXo}, s{sXo}, s{sXbase}
        s_add_u32 m0, s{sM}, {sl}
        s_mul_i32 s{sWo}, s{sC}, 172032
        buffer_load_dwordx4 v{vXg}, s[{S_X}:{S_X+3}], s{sXo} offen lds
        s_add_u32 m0, s{sM}, {sl+8192-896}
        s_add_u32 s{sWo}, s{sWo}, s{sCol}
        buffer_load_dwordx4 v{vWg}, s[{S_W}:{S_W+3}], s{sWo} offen offset:896 lds
        s_add_u32 m0, s{sM}, {sl+16384-1792}
        s_add_u32 s{sC}, s{sC}, 1
        buffer_load_dwordx4 v{vWg}, s[{S_W}:{S_W+3}], s{sWo} offen offset:1792 lds
        s_cmp_eq_u32 s{sC}, 7
        s_cselect_b32 s{sC}, 0, s{sC}
        """)
    def issue_wq(i):
        a(f"""
        s_mul_i32 s{sWo}, s{sC}, 172032
        s_add_u32 m0, s{sM}, {WQB+i*8192}
        s_add_u32 s{sWo}, s{sWo}, s{sCol}
        buffer_load_dwordx4 v{vWg}, s[{S_W}:{S_W+3}], s{sWo} offen lds
        """)
        adv()
    def issue_chunk2(i):
        sl = (i % 4) * SLOT
        a(f"""
        s_lshl_b32 s{sXo}, s{sC}, 7
        s_add_u32 s{sXo}, s{sXo}, s{sXbase}
        s_add_u32 m0, s{sM}, {sl}
        s_mul_i32 s{sWo}, s{sC}, 172032
        buffer_load_dwordx4 v{vXg}, s[{S_X}:{S_X+3}], s{sXo} offen lds
        s_add_u32 m0, s{sM}, {(sl-4096) & 0xffffffff}
        s_add_u32 s{sWo}, s{sWo}, s{sCol}
        buffer_load_dwordx4 v{vXg2}, s[{S_X}:{S_X+3}], s{sXo} offen lds
        s_add_u32 m0, s{sM}, {sl+8192-896}
        s_add_u32 s{sC}, s{sC}, 1
        buffer_load_dwordx4 v{vWg}, s[{S_W}:{S_W+3}], s{sWo} offen offset:896 lds
        s_add_u32 m0, s{sM}, {sl+4096-896}
        s_nop 0
        buffer_load_dwordx4 v{vWg2}, s[{S_W}:{S_W+3}], s{sWo} offen offset:896 lds
        s_add_u32 m0, s{sM}, {sl+16384-1792}
        s_nop 0
        buffer_load_dwordx4 v{vWg}, s[{S_W}:{S_W+3}], s{sWo} offen offset:1792 lds
        s_add_u32 m0, s{sM}, {sl+12288-1792}
        s_cmp_eq_u32 s{sC}, 7
        buffer_load_dwordx4 v{vWg2}, s[{S_W}:{S_W+3}], s{sWo} offen offset:1792 lds
        s_cselect_b32 s{sC}, 0, s{sC}
        """)
    def issue_wq2(i):
        a(f"""
        s_mul_i32 s{sWo}, s{sC}, 172032
        s_add_u32 m0, s{sM}, {WQB+i*8192}
        s_add_u32 s{sWo}, s{sWo}, s{sCol}
        buffer_load_dwordx4 v{vWg}, s[{S_W}:{S_W+3}], s{sWo} offen lds
        s_add_u32 m0, s{sM}, {WQB+i*8192-4096}
        s_add_u32 s{sC}, s{sC}, 1
        buffer_load_dwordx4 v{vWg2}, s[{S_W}:{S_W+3}], s{sWo} offen lds
        s_cmp_eq_u32 s{sC}, 7
        s_cselect_b32 s{sC}, 0, s{sC}
        """)
    vXg2, vWg2 = 240, 241
    SPLIT = False
    Lsp1, Lnn = "L_sp1", a.newlabel("L_nonon")
    stamp(a, 0)
    PRE = optint("pre", 2)
    EARLY = False
    for i in range(PRE): issue_chunk(i)
    a(f"""
    {Lsp1}:
    s_mov_b32 s{S_WS}, s{S_DBG+2}
    s_mov_b32 s{S_WS+1}, s{S_DBG+3}
    s_mov_b32 s{S_DBG+2}, 256
    s_mov_b32 s{S_DBG+3}, 0x00020000
    s_mov_b32 s{S_WS+2}, {WS_BYTES}
    s_mov_b32 s{S_WS+3}, 0x00020000
    s_mov_b32 s{S_WO}, s40
    s_mov_b32 s{S_WO+1}, s41
    s_mov_b32 s{S_OUT}, s42
    s_mov_b32 s{S_OUT+1}, s43
    s_mov_b32 s{S_WO+2}, {WOB}
    s_mov_b32 s{S_WO+3}, 0x00020000
    s_mov_b32 s{S_OUT+2}, {OUTB}
    s_mov_b32 s{S_OUT+3}, 0x00020000
    v_mov_b32 v{vZ}, 0
    s_bfe_u32 s{S_QB}, s2, 0x40003
    s_and_b32 s34, s2, 7
    s_lshl_b32 s34, s34, 1
    s_lshr_b32 s35, s2, 7
    s_add_u32 s{S_HEAD}, s34, s35         ;          head = 2*(b&7) + (b>>7)
    s_and_b32 s{S_T}, s{S_WV}, 3
    s_lshr_b32 s{S_HALF}, s{S_WV}, 2
    s_lshl_b32 s34, s{S_QB}, 2
    s_add_u32 s{S_TILE}, s34, s{S_T}
    s_lshl_b32 s34, s{S_TILE}, 15
    s_lshl_b32 s35, s{S_HEAD}, 11
    s_add_u32 s{S_OA}, s34, s35
    s_lshl_b32 s34, s{S_HALF}, 10
    s_add_u32 s{S_OA}, s{S_OA}, s34
    s_add_u32 s{S_OA}, s{S_OA}, {WS_O}
    s_mov_b32 s{S_FB}, {WS_F1}
    s_lshl_b32 s57, s2, 7
    s_add_u32 s57, s57, {WS_F1}
    v_lshlrev_b32 v{vL16}, 4, v1
    v_mov_b32 v{vT}, {OOB}
    v_cmp_eq_u32 vcc, 0x1c0, v0
    v_mov_b32 v{vSen}, -1
    v_mov_b32 v{vSen+1}, -1
    v_mov_b32 v{vSen+2}, -1
    v_mov_b32 v{vSen+3}, -1
    v_cndmask_b32 v{vF}, v{vT}, v{vZ}, vcc
    s_cmp_eq_u32 s{S_C}, 7
    s_cbranch_scc1 {Lspare}
    v_and_b32 v{vT}, 31, v1               ; tok
    v_lshrrev_b32 v{vT+1}, 5, v1          ; h
    s_bfe_u32 s56, s{S_WV}, 0x10001       ; Ct = (w>>1)&1
    s_lshl_b32 s34, s{S_C}, 1
    s_add_u32 s58, s56, s34               ; Ctg (0..13)
    s_and_b32 s34, s{S_WV}, 1
    s_lshl_b32 s34, s34, 12
    s_lshl_b32 s54, s{S_TH}, 13
    s_add_u32 s54, s54, s34               ; tile * 4096
    v_bfe_u32 v{vT+2}, v1, 1, 3
    v_xor_b32 v{vT+2}, v{vT+2}, v{vT+1}   ; h ^ swz
    v_lshlrev_b32 v{vT+3}, 7, v{vT}       ; tok*128
    v_lshl_add_u32 v{vT+2}, v{vT+2}, 4, v{vT+3}
    v_add_u32 v{vXa}, s34, v{vT+2}
    v_xor_b32 v{vXa+1}, 32, v{vXa}
    v_xor_b32 v{vXa+2}, 64, v{vXa}
    v_xor_b32 v{vXa+3}, 0x60, v{vXa}
    v_add_u32 v{vXa+4}, {2*SLOT}, v{vXa}
    v_add_u32 v{vXa+5}, {2*SLOT}, v{vXa+1}
    v_add_u32 v{vXa+6}, {2*SLOT}, v{vXa+2}
    v_add_u32 v{vXa+7}, {2*SLOT}, v{vXa+3}
    v_and_b32 v{vT+2}, 3, v1              ; c'
    v_lshrrev_b32 v{vT+3}, 1, v{vT+2}
    v_lshlrev_b32 v{vT+4}, 1, v{vT+2}
    v_and_b32 v{vT+4}, 2, v{vT+4}
    v_or_b32 v{vT+3}, v{vT+3}, v{vT+4}    ; bitswap2(c')
    v_bfe_u32 v{vT+4}, v1, 4, 1           ; a
    v_bfe_u32 v{vT+5}, v1, 2, 2           ; r'
    v_lshl_add_u32 v{vT+6}, v{vT+1}, 3, v{vT+5}   ; 8h + r'
    s_cmp_eq_u32 s{S_HALF}, 0
    s_cselect_b64 vcc, -1, 0
    s_lshl_b32 s34, s56, 3
    v_cndmask_b32 v{vT+7}, v{vT+2}, v{vT+3}, vcc  ; cg
    v_lshl_add_u32 v{vT+7}, v{vT+4}, 2, v{vT+7}
    v_add_u32 v{vT+7}, s34, v{vT+7}
    v_lshlrev_b32 v{vT+8}, 2, v{vT+5}
    v_and_b32 v{vT+8}, 8, v{vT+8}
    v_xor_b32 v{vT+7}, v{vT+7}, v{vT+8}
    v_lshlrev_b32 v{vT+7}, 3, v{vT+7}
    v_lshl_add_u32 v{vWa}, v{vT+6}, 7, v{vT+7}
    v_add_u32 v{vWqa}, {WQB}, v{vWa}
    s_lshl_b32 s35, s{S_HALF}, 13
    s_add_u32 s35, s35, 8192
    v_add_u32 v{vWa}, s35, v{vWa}
    v_add_u32 v{vWa+1}, {2*SLOT}, v{vWa}
    v_mov_b32 v{vT+7}, {OOB}
    """)
    def nonce_wait():
        Lng, Lnw = a.newlabel("L_ngot"), a.newlabel("L_nwait")
        a(f"""
        v_readfirstlane_b32 s34, v{vN}
        s_mov_b32 s35, 0
        s_cmp_lg_u32 s34, 0
        s_cbranch_scc1 {Lng}
        {Lnw}:
        s_sleep 4
        buffer_load_dwordx2 {vr(vN,2)}, v{vZ}, {DBG}, 0 offen {SC}
        s_waitcnt vmcnt(0)
        v_readfirstlane_b32 s34, v{vN}
        s_add_u32 s35, s35, 1
        s_cmp_ge_u32 s35, {SPIN_MAX}
        s_cbranch_scc1 {Lng}
        s_cmp_eq_u32 s34, 0
        s_cbranch_scc1 {Lnw}
        {Lng}:
        """)
    NQ1 = optint("nq1", 4)
    CLA = optint("cla", 1)
    def kloop(kt, extra):
        issued = [3] * PRE
        seq = []
        for i in range(PRE): seq += [("c", i)] * ((0 if kt else 6) if EARLY else 3)
        for ins in extra.get(-1, []):
            a(ins); seq.append(("x", -1))
        vW2 = [vWf, 82]
        def mm(i, waits):
            for sub in range(4):
                if waits: a(f"s_waitcnt lgkmcnt({3*(3-sub)})")
                X, W = vXf + 16 * i + 4 * sub, vW2[i % 2] + 4 * sub
                A, B = (W, X) if kt else (X, W)
                C = "0" if (i == 0 and sub == 0) else vr(vAcc, 16)
                if "nomm" not in OPT or i == 0: a(f"v_mfma_f32_32x32x16_bf16 {vr(vAcc,16)}, {vr(A,4)}, {vr(B,4)}, {C}")
        for i in range(7):
            mine = [k for k, t in enumerate(seq) if t == ("c", i)]
            a(f"s_waitcnt vmcnt({len(seq) - 1 - max(mine)}) lgkmcnt(0)" if mine else "s_waitcnt lgkmcnt(0)")
            a("s_barrier")
            stamp(a, 1 + i) if i in (0, 6) else None
            if "cyc" in OPT and i in (0, 6): a(f"s_memtime s[{42 if i == 0 else 44}:{43 if i == 0 else 45}]")
            sl = i % 4
            hi = sl >= 2
            so = (sl % 2) * SLOT
            for sub in range(4):
                for u in range(2):
                    a(f"ds_read_b64_tr_b16 {vr(vW2[i%2]+4*sub+2*u,2)}, v{vWa+hi} offset:{so+sub*2048+u*512}")
                a(f"ds_read_b128 {vr(vXf+16*i+4*sub,4)}, v{vXa+sub+4*hi} offset:{so}")
            if "pipe" in OPT and i >= 1: mm(i - 1, False)
            if SPLIT and kt:
                pass
            elif i + PRE <= 6:
                (issue_chunk2 if SPLIT else issue_chunk)(i + PRE); seq += [("c", i + PRE)] * (6 if SPLIT else 3)
            elif i + PRE == 7:
                for q in range(NQ1):
                    issue_wq(q); seq += [("q", q)]
            elif i + PRE == 8:
                for q in range(NQ1, 7):
                    issue_wq(q); seq += [("q", q)]
            for ins in extra.get(i, []):
                a(ins); seq.append(("x", i))
            if "pipe" not in OPT or i == 6: mm(i, True)
    oclear = f"buffer_store_dwordx4 {vr(vSen,4)}, v{vL16}, {WS}, s{S_OA} offen {SC}"
    tagload = f"buffer_load_dwordx2 {vr(vN,2)}, v{vZ}, {DBG}, 0 offen {SC}"
    Lv = a.newlabel("L_vtype")
    Lpub = a.newlabel("L_pub")
    a(f"""
    s_cmp_lg_u32 s{S_HALF}, 0
    s_cbranch_scc1 {Lv}
    """)
    a.c("---- waves 0..3: K tile, then Q tile")
    a(f"""
    v_and_b32 v{vT+2}, 0x13, v{vT}
    v_lshlrev_b32 v{vT+3}, 1, v{vT}
    v_and_b32 v{vT+3}, 8, v{vT+3}
    v_lshrrev_b32 v{vT+4}, 1, v{vT}
    v_and_b32 v{vT+4}, 4, v{vT+4}
    v_or3_b32 v{vT+2}, v{vT+2}, v{vT+3}, v{vT+4}  ; swap23(tok)
    v_lshlrev_b32 v{vT+2}, 4, v{vT+2}
    v_mov_b32 v{vD+10}, 0x3f803f80
    v_mov_b32 v{vD+11}, 0x3f80
    v_mov_b32 v{vT+14}, 0x3f803f80
    v_mov_b32 v{vT+15}, 0x3f80
    s_add_u32 s59, s54, {WS_Q}
    s_lshl_b32 s34, s58, 2
    """)
    for aa in range(2):
        a(f"""
        v_add_u32 v{vT+3}, s34, v{vT+1}
        v_add_u32 v{vT+3}, {2*aa}, v{vT+3}       ; U
        v_mul_u32_u24 v{vT+4}, 37, v{vT+3}
        v_lshrrev_b32 v{vT+4}, 8, v{vT+4}        ; e
        v_mul_u32_u24 v{vT+5}, 7, v{vT+4}
        v_sub_u32 v{vT+6}, v{vT+3}, v{vT+5}      ; u7
        v_cmp_eq_u32 s[{S_M0+2*aa}:{S_M0+2*aa+1}], 3, v{vT+6}
        v_lshl_add_u32 v{vAd+aa}, v{vT+4}, 19, v{vT+2}
        v_lshrrev_b32 v{vT+5}, 2, v{vT+6}
        v_lshl_add_u32 v{vAd+aa}, v{vT+5}, 18, v{vAd+aa}
        v_and_b32 v{vT+5}, 3, v{vT+6}
        v_lshl_add_u32 v{vAd+aa}, v{vT+5}, 9, v{vAd+aa}
        v_add_u32 v{vT+5}, 0x40000, v{vAd+aa}
        v_cndmask_b32 v{vAd+2+aa}, v{vT+7}, v{vT+5}, s[{S_M0+2*aa}:{S_M0+2*aa+1}]
        """)
    kloop(True, {4: [tagload]})
    def unit_pack(aa, acc):
        L = [f"v_cvt_pk_bf16_f32 v{vD+4*aa+t}, v{acc+8*aa+2*t}, v{acc+8*aa+2*t+1}" for t in range(4)]
        X2 = vD + 8 if aa == 0 else vT + 12
        L += [f"v_mov_b32 v{X2}, v{vD+4*aa+2}", f"v_mov_b32 v{X2+1}, v{vD+4*aa+3}",
              f"v_cndmask_b32 v{vD+4*aa+2}, v{vD+4*aa+2}, v{vD+10}, s[{S_M0+2*aa}:{S_M0+2*aa+1}]",
              f"v_cndmask_b32 v{vD+4*aa+3}, v{vD+4*aa+3}, v{vD+11}, s[{S_M0+2*aa}:{S_M0+2*aa+1}]"]
        return L
    def unit_store(aa, soff):
        X2 = vD + 8 if aa == 0 else vT + 12
        return [f"buffer_store_dwordx4 {vr(vD+4*aa,4)}, v{vAd+aa}, {WS}, {soff} offen {SC}",
                f"buffer_store_dwordx4 {vr(X2,4)}, v{vAd+2+aa}, {WS}, {soff} offen {SC}"]
    QG = [int(c) for c in str(optint("qg", 47))]
    assert QG[-1] == 7
    a(f"s_waitcnt vmcnt({7 - QG[0]})")
    a("s_barrier")
    vW2 = [vWf, 82]
    vQa = 98
    def qrd(i, sub):
        for u in range(2):
            a(f"ds_read_b64_tr_b16 {vr(vW2[i%2]+4*sub+2*u,2)}, v{vWqa} offset:{i*8192+sub*2048+u*512}")
    for sub in range(4): qrd(0, sub)
    KST = optint("kst", 5)
    fill = {}
    pk = unit_pack(0, vAcc) + unit_pack(1, vAcc)
    for m in range(4): fill[m + 1] = pk[4 * m:4 * m + 4]
    ks = unit_store(0, "s54") + unit_store(1, "s54")
    for m in range(4): fill[KST + m] = fill.get(KST + m, []) + [ks[m]]
    fill[20] = [f"v_mov_b32 v{vD+10}, 0", f"v_mov_b32 v{vD+11}, 0", f"v_mov_b32 v{vT+14}, 0", f"v_mov_b32 v{vT+15}, 0", f"s_mov_b32 s34, {QSCALE:#x}"]
    nst = 0
    for i in range(7):
        if i + 1 in QG[:-1]:
            a(f"s_waitcnt vmcnt({nst + 7 - QG[QG.index(i + 1) + 1]})")
            a("s_barrier")
        for sub in range(4):
            if i + 1 < 7:
                qrd(i + 1, sub)
                a("s_waitcnt lgkmcnt(8)")
            else:
                a(f"s_waitcnt lgkmcnt({6-2*sub})")
            C = "0" if (i == 0 and sub == 0) else vr(vQa, 16)
            a(f"v_mfma_f32_32x32x16_bf16 {vr(vQa,16)}, {vr(vW2[i%2]+4*sub,4)}, {vr(vXf+16*i+4*sub,4)}, {C}")
            for ins in fill.get(4 * i + sub, []):
                a(ins)
                if ins.startswith("buffer_store"): nst += 1
            if 4 * i + sub == KST + 3: stamp(a, 2)
    a("s_nop 11")
    for aa in range(2):
        for r in range(8 * aa, 8 * aa + 8):
            a(f"v_mul_f32 v{vQa+r}, s34, v{vQa+r}")
        for ins in unit_pack(aa, vQa) + unit_store(aa, "s59"): a(ins)
    stamp(a, 4)
    a(f"s_branch {Lpub}")
    a.label(Lv)
    a.c("---- waves 4..7: V tile")
    a(f"""
    s_lshl_b32 s34, s58, 5
    v_add_u32 v{vT+2}, s34, v{vT}            ; C
    v_mul_u32_u24 v{vT+3}, 2341, v{vT+2}
    v_lshrrev_b32 v{vT+3}, 16, v{vT+3}       ; head
    v_mul_u32_u24 v{vT+4}, 28, v{vT+3}
    v_sub_u32 v{vT+6}, v{vT+2}, v{vT+4}      ; d
    v_lshl_add_u32 v{vT+4}, v{vT+1}, 5, v{vT+6}
    v_lshlrev_b32 v{vT+4}, 4, v{vT+4}
    v_lshl_add_u32 v{vAd}, v{vT+3}, 18, v{vT+4}
    v_cmp_eq_u32 vcc, 0, v{vT+6}
    v_mov_b32 v{vT+5}, 0x3f803f80
    s_nop 0
    v_cndmask_b32 v{vD+8}, 0, v{vT+5}, vcc
    v_cndmask_b32 v{vD+9}, 0, v{vT+5}, vcc
    v_cndmask_b32 v{vD+10}, 0, v{vT+5}, vcc
    v_cndmask_b32 v{vD+11}, 0, v{vT+5}, vcc
    v_cmp_gt_u32 vcc, 4, v{vT+6}
    s_nop 1
    v_cndmask_b32 v{vAd+1}, v{vT+7}, v{vAd}, vcc
    """)
    vpad = [f"buffer_store_dwordx4 {vr(vD+8,4)}, v{vAd+1}, {WS}, s54 offen offset:{o+448} {SC}" for o in (2048, 3072)]
    if "wqown" in OPT:
        Lpf = a.newlabel("L_pf")
        a(f"""
        s_and_b32 s34, s{S_TH}, 7
        s_mul_i32 s34, s34, {56*2688}
        s_add_u32 s34, s34, s{sCol}
        v_and_b32 v{vT+8}, 15, v1
        v_min_u32 v{vT+8}, 13, v{vT+8}
        v_mad_u32_u24 v{vT+8}, s{S_T}, 14, v{vT+8}
        v_mul_u32_u24 v{vT+8}, 2688, v{vT+8}
        """)
        pf = [f"buffer_load_dword v{vT+9}, v{vT+8}, s[{S_W}:{S_W+3}], s34 offen"]
    else:
        pf = []
    kloop(False, {-1: pf, 4: [tagload]})
    a(f"s_waitcnt vmcnt({7 - QG[0]})")
    a("s_barrier")
    a("s_nop 9")
    for t in range(8):
        a(f"v_cvt_pk_bf16_f32 v{vD+t}, v{vAcc+2*t}, v{vAcc+2*t+1}")
    VST = optint("vst", 1)
    nv = 0
    for k in range(1, len(QG) + 1):
        if k == VST:
            for i in range(2):
                a(f"buffer_store_dwordx4 {vr(vD+4*i,4)}, v{vAd}, {WS}, s54 offen offset:{2048+1024*i} {SC}")
            for ins in vpad: a(ins)
            stamp(a, 2)
            nv = 4
        if k < len(QG):
            a(f"s_waitcnt vmcnt({nv + 7 - QG[k]})")
            a("s_barrier")
    a.label(Lpub)
    a("s_waitcnt vmcnt(0)")
    nonce_wait()
    a("s_barrier")
    stamp(a, 3)
    Lp, Lpd = a.newlabel("L_poll1"), a.newlabel("L_poll1d")
    a(f"""
    buffer_store_dwordx2 {vr(vN,2)}, v{vF}, {WS}, s57 offen {SC}
    s_cmp_lg_u32 s{S_WV}, 4
    s_cbranch_scc1 {Lsync}
    ; workgroup = (th>>3) + (c == 3 ? th&4 : c&4) + 8*(th&7) + 64*(c&3)
    s_mul_i32 s34, s{S_HEAD}, 28
    s_add_u32 s35, s34, 27
    s_lshr_b32 s34, s34, 6
    s_lshr_b32 s35, s35, 6
    v_mov_b32 v{vT}, s34
    s_mov_b32 exec_lo, 0
    v_mov_b32 v{vT}, s35
    s_mov_b32 exec_lo, -1
    v_cmp_eq_u32 vcc, 3, v{vT}
    s_nop 1
    v_cndmask_b32 v{vT+1}, v{vT}, v1, vcc
    v_and_b32 v{vT+1}, 4, v{vT+1}
    v_and_b32 v{vT}, 3, v{vT}
    v_lshl_add_u32 v{vT}, v{vT}, 6, v{vT+1}
    v_bfe_u32 v{vT+1}, v1, 3, 2
    v_add_u32 v{vT}, v{vT}, v{vT+1}
    v_and_b32 v{vT+1}, 7, v1
    v_lshl_add_u32 v{vT}, v{vT+1}, 3, v{vT}
    v_lshlrev_b32 v{vT}, 7, v{vT}
    s_mov_b32 s35, 0
    """)
    PD = optint("pd", 1)
    SL1 = optint("sl1", 4)
    for k in range(PD - 1):
        a(f"buffer_load_dwordx2 {vr(240+2*k,2)}, v{vT}, {WS}, s{S_FB} offen {SC}")
        a(f"s_sleep {SL1}")
    a.label(Lp)
    for k in range(PD):
        kn = (k + PD - 1) % PD
        a(f"""
        buffer_load_dwordx2 {vr(240+2*kn,2)}, v{vT}, {WS}, s{S_FB} offen {SC}
        s_waitcnt vmcnt({PD-1})
        v_cmp_ne_u64 vcc, {vr(240+2*k,2)}, {vr(vN,2)}
        s_nop 0
        s_cmp_eq_u64 vcc, 0
        s_cbranch_scc1 {Lsync}
        s_sleep {SL1}
        """)
    a(f"""
    s_add_u32 s35, s35, 1
    s_cmp_lt_u32 s35, {SPIN_MAX}
    s_cbranch_scc1 {Lp}
    """)
    a.label(Lsync)
    vL, vL2, vIdx = 3, 4, 5
    vO = 82
    vS = [32, 48, 64]
    vK = [128, 136]
    vV = [144, 152, 160, 168]
    vQ = 98
    vX = 106
    vG3, vOOB, vP2 = 176, 177, 178
    sG, sM0 = 46, 47
    QX = 98304
    a(f"""
    s_lshl_b32 s34, s{S_HALF}, 5
    s_add_u32 s34, s34, s{S_T}
    s_lshl_b32 s34, s34, 12
    s_lshl_b32 s51, s{S_HEAD}, 18
    s_add_u32 s{sG}, s51, s34
    s_lshl_b32 s48, s{S_TILE}, 12
    s_add_u32 s48, s48, s51
    s_lshl_b32 s34, s{S_HALF}, 10
    s_add_u32 s48, s48, s34
    s_add_u32 s48, s48, {WS_Q}
    s_lshl_b32 s35, s{S_T}, 11
    s_add_u32 s34, s34, s35
    s_add_u32 m0, s34, {QX}
    s_lshl_b32 s{sM0}, s{S_WV}, 12
    s_lshl_b32 s34, s{S_HALF}, 12
    s_and_b32 s35, s{S_WV}, 1
    s_lshl_b32 s35, s35, 10
    s_add_u32 s34, s34, s35
    s_bfe_u32 s35, s{S_WV}, 0x10001
    s_lshl_b32 s50, s35, 14
    s_add_u32 s50, s50, s34
    s_lshl_b32 s35, s35, 17
    s_add_u32 s51, s51, s35
    s_add_u32 s51, s51, s34
    s_barrier
    """)
    stamp(a, 5)
    def load_q():
        a(f"buffer_load_dwordx4 {vr(vQ,4)}, v{vL16}, {WS}, s48 offen {SC}")
        a(f"buffer_load_dwordx4 {vr(vQ+4,4)}, v{vL16}, {WS}, s48 offen offset:1024 {SC}")
    def kvdma(piece):
        a(f"buffer_load_dwordx4 v{vL16}, {WS}, s{sG} offen offset:{piece*1024} {SC} lds")
    def maxchain(regs, t):
        regs = list(regs)
        a(f"v_max3_u32 v{t}, v{regs[0]}, v{regs[1]}, v{regs[2]}")
        rest = regs[3:]
        while len(rest) >= 2:
            a(f"v_max3_u32 v{t}, v{t}, v{rest[0]}, v{rest[1]}")
            rest = rest[2:]
        if rest:
            a(f"v_max_u32 v{t}, v{t}, v{rest[0]}")
    slowpaths = []
    def validate(regs, reload, t):
        Lr, Lb = a.newlabel("L_retry"), a.newlabel("L_back")
        maxchain(regs, t)
        a(f"v_cmp_eq_u32 vcc, -1, v{t}")
        a("s_nop 0")
        a("s_cmp_lg_u64 vcc, 0")
        a(f"s_cbranch_scc1 {Lr}")
        a.label(Lb)
        def emit():
            Ll = a.newlabel("L_rl")
            a.label(Lr)
            a("s_mov_b32 s35, 0")
            a.label(Ll)
            reload()
            a("s_add_u32 s35, s35, 1")
            a("s_waitcnt vmcnt(0)")
            maxchain(regs, t)
            a(f"v_cmp_eq_u32 vcc, -1, v{t}")
            a(f"s_cmp_ge_u32 s35, {SPIN_MAX}")
            a(f"s_cbranch_scc1 {Lb}")
            a("s_cmp_lg_u64 vcc, 0")
            a(f"s_cbranch_scc1 {Ll}")
            a(f"s_branch {Lb}")
        slowpaths.append(emit)
    a(f"""
    buffer_load_dwordx4 v{vL16}, {WS}, s48 offen {SC} lds
    s_mov_b32 m0, s50
    s_add_u32 s35, s51, 8192
    buffer_load_dwordx4 v{vL16}, {WS}, s51 offen {SC} lds
    s_barrier
    buffer_load_dwordx4 v{vL16}, {WS}, s51 offen offset:2048 {SC} lds
    s_add_u32 m0, s50, 8192
    s_nop 0
    buffer_load_dwordx4 v{vL16}, {WS}, s35 offen {SC} lds
    buffer_load_dwordx4 v{vL16}, {WS}, s35 offen offset:2048 {SC} lds
    """)
    def stage_dma(st):
        a(f"s_add_u32 m0, s{sM0}, {st*32768}")
        a(f"s_add_u32 s{sG}, s{sG}, 16384")
        for f in range(4): kvdma(f)
    NE = 0
    for st in range(1, 1 + NE):
        a("s_barrier")
        stage_dma(st)
    a(f"""
    s_lshl_b32 s34, s{S_HALF}, 14
    v_add_u32 v{vL}, s34, v{vL16}
    v_add_u32 v{vL2}, 0x10000, v{vL}
    v_mov_b32 v{vIdx}, 0xdddddddd
    ; wo DMA addresses (phase 3 prefetch)
    v_lshrrev_b32 v{vT}, 3, v0            ; 8w + r
    v_lshrrev_b32 v{vT+1}, 3, v1
    v_and_b32 v{vT+1}, 6, v{vT+1}
    v_and_b32 v{vT+2}, 7, v1
    v_xor_b32 v{vT+1}, v{vT+1}, v{vT+2}
    v_mul_u32_u24 v{vG3}, 896, v{vT}
    v_lshl_add_u32 v{vG3}, v{vT+1}, 4, v{vG3}
    v_mov_b32 v{vOOB}, {OOB}
    s_lshr_b32 s49, s2, 5
    s_min_u32 s49, s49, 6
    s_lshl_b32 s49, s49, 7                ; wo col block byte offset
    s_lshl_b32 s54, s{S_WV}, 10
    s_add_u32 s57, s57, {WS_F2-WS_F1}
    s_mov_b32 s{S_FB}, {WS_F2}
    ; phase 3 token half, and the flags of its O producers: workgroup = (head>>1) + 8*qb + 128*(head&1), head = 8*half + (l&7)
    s_and_b32 s34, s2, 7
    s_lshl_b32 s34, s34, 2
    s_bfe_u32 s35, s2, 0x20003
    s_add_u32 s{S_TH}, s34, s35
    s_lshr_b32 s34, s{S_TH}, 1
    s_lshl_b32 s34, s34, 3
    s_lshl_b32 s35, s{S_HALF}, 2
    s_add_u32 s34, s34, s35
    v_bfe_u32 v{vT}, v1, 1, 2
    v_add_u32 v{vT}, s34, v{vT}
    v_and_b32 v{vT+1}, 1, v1
    v_lshl_add_u32 v{vT}, v{vT+1}, 7, v{vT}
    v_lshlrev_b32 v{vP2}, 7, v{vT}
    """)
    for r in range(16):
        a(f"v_mov_b32 v{vO+r}, 0")
    a(f"s_lshl_b32 s34, s{S_T}, 11")
    a(f"s_add_u32 s34, s34, {QX}")
    a(f"v_add_u32 v{vX}, s34, v{vL16}")
    a(f"s_waitcnt vmcnt({3 + 4 * NE})")
    stamp(a, 6)
    a("s_barrier")
    stamp(a, 8)
    def ldsaddr(u, off):
        slot = (u // 4) % 3
        o = slot * 32768 + (u % 4) * 4096 + off
        return (vL, o) if o < 65536 else (vL2, o - 65536)
    def rd(dst, u, off):
        r, o = ldsaddr(u, off)
        a(f"ds_read_b128 {vr(dst,4)}, v{r} offset:{o}")
    def rdK(u, f): rd(vK[u % 2] + 4 * f, u, f * 1024)
    def rdV(u, f): rd(vV[u % 4] + 4 * f, u, 2048 + f * 1024)
    def QK(u, i, K=None):
        C = "0" if i == 0 else vr(vS[u % 3], 16)
        K = vK[u % 2] if K is None else K
        a(f"v_mfma_f32_32x32x16_bf16 {vr(vS[u%3],16)}, {vr(K+4*i,4)}, {vr(vQ+4*i,4)}, {C}")
    def PV(u, i):
        a(f"v_smfmac_f32_32x32x32_bf16 {vr(vO,16)}, {vr(vV[u%4]+4*i,4)}, {vr(vS[u%3]+8*i,8)}, v{vIdx}")
    def E(u, r0, r1):
        for r in range(r0, r1):
            a(f"v_exp_f32 v{vS[u%3]+r}, v{vS[u%3]+r}")
    a(f"""
    ds_read_b128 {vr(vQ,4)}, v{vX}
    ds_read_b128 {vr(vV[2],4)}, v{vL16}
    ds_read_b128 {vr(vQ+4,4)}, v{vX} offset:1024
    ds_read_b128 {vr(vV[2]+4,4)}, v{vL16} offset:1024
    """)
    rdK(0, 0); rdK(0, 1); rdK(1, 0); rdK(1, 1)
    a("s_waitcnt lgkmcnt(6)")
    QK(2, 0, vV[2])
    a("s_waitcnt lgkmcnt(4)")
    QK(2, 1, vV[2])
    a("s_waitcnt lgkmcnt(3)")
    QK(0, 0)
    stage_dma(1)
    a("s_nop 3")
    S = vS[2]
    a(f"v_max3_f32 v{vT}, v{S}, v{S+1}, v{S+2}")
    a(f"v_max3_f32 v{vT+1}, v{S+3}, v{S+4}, v{S+5}")
    for r in (6, 10):
        a(f"v_max3_f32 v{vT}, v{vT}, v{S+r}, v{S+r+1}")
        a(f"v_max3_f32 v{vT+1}, v{vT+1}, v{S+r+2}, v{S+r+3}")
    a(f"v_max3_f32 v{vT}, v{vT}, v{S+14}, v{S+15}")
    a(f"""
    v_max_f32 v{vT}, v{vT}, v{vT+1}
    v_mov_b32 v{vT+1}, v{vT}
    s_nop 1
    v_permlane32_swap_b32 v{vT}, v{vT+1}
    v_max_f32 v{vT}, v{vT}, v{vT+1}
    s_mov_b32 exec_lo, 0
    v_cvt_pk_bf16_f32 v{vQ+6}, -v{vT}, 0
    s_mov_b32 exec_lo, -1
    s_waitcnt lgkmcnt(0)
    """)
    QK(0, 1)
    a("s_waitcnt vmcnt(4)")
    a("s_barrier")
    rdV(0, 0); rdV(0, 1); rdV(1, 0); rdV(1, 1); rdK(2, 0); rdK(2, 1)
    a("s_nop 1")
    stamp(a, 9)
    F2AT, P2AT = optint("f2at", 28), optint("p2at", 31)
    OCAT = optint("ocat", 6)
    assert OCAT <= 16 and F2AT >= 25
    plan = {t: ([], []) for t in range(32)}
    plan[0] = ([(2, 0)], [(2, 1)]); plan[1] = ([(2, 2)], [(2, 3)])
    plan[2] = ([(3, 0)], [(3, 1)]); plan[3] = ([], [(3, 2)]); plan[4] = ([], [(3, 3)])
    for t in range(5, 21): plan[t] = ([], [((t - 1) // 4 + 3, (t - 1) % 4)])
    seq = [("s", 1)] * 4
    def vm(ins, tag):
        a(ins); seq.append(tag)
    def pieces(L):
        for st, p in L:
            kvdma(p); seq.append(("s", st))
    for t in range(32):
        first = [st for st, p in plan[t][0] + plan[t][1] if p == 0]
        if t + 1 < 32: QK(t + 1, 0)
        if first:
            a(f"s_add_u32 s{sG}, s{sG}, 16384")
        elif 21 <= t <= 27:
            a(f"s_add_u32 s34, s49, {(t-21)*57344}")
        if t + 2 < 32: rdV(t + 2, 0)
        E(t, 0, 4)
        if t + 1 < 32: QK(t + 1, 1)
        if first:
            a(f"s_add_u32 m0, s{sM0}, {(first[0] % 3) * 32768}")
        elif 21 <= t <= 28:
            a(f"s_add_u32 m0, s54, {98304 + (t-21)*8192}")
        if t + 2 < 32: rdV(t + 2, 1)
        E(t, 4, 8)
        if t >= 1: PV(t - 1, 1)
        if t % 4 == 1 and t <= 25:
            last = max(k for k, tg in enumerate(seq) if tg == ("s", (t + 3) // 4))
            a(f"s_waitcnt vmcnt({len(seq) - 1 - last}) lgkmcnt(0)")
            a("s_barrier")
        a(f"s_setprio {3 - ((t - 1) % 4) if t < 25 else 3 - (t - 25) // 2}")
        pieces(plan[t][0])
        if t + 3 < 32: rdK(t + 3, 0)
        E(t, 8, 12)
        if t == 0:
            a("s_waitcnt lgkmcnt(5)")
        PV(t, 0)
        a("s_waitcnt lgkmcnt(3)" if t + 3 < 32 else "s_waitcnt lgkmcnt(0)")
        pieces(plan[t][1])
        if 21 <= t <= 27:
            vm(f"buffer_load_dwordx4 v{vG3}, s[{S_WO}:{S_WO+3}], s34 offen lds", "wo")
        elif t == 28:
            vm(f"buffer_load_dwordx4 v{vOOB}, s[{S_WO}:{S_WO+3}], 0 offen lds", "wo")
        if t == P2AT:
            vm(f"buffer_load_dwordx2 {vr(vSen,2)}, v{vP2}, {WS}, s{S_FB} offen {SC}", "x")
        if t + 3 < 32:
            rdK(t + 3, 1)
        if t == OCAT: vm(oclear, "x")
        if t == F2AT: vm(f"buffer_store_dwordx2 {vr(vN,2)}, v{vF}, {WS}, s57 offen {SC}", "x")
        E(t, 12, 16)
    NWO = len(seq) - 1 - max(k for k, tg in enumerate(seq) if tg == "wo")
    a("s_nop 1")
    PV(31, 1)
    stamp(a, 10)
    a.c("---- combine the two kv halves in slot 0 (stage 6 data is dead)")
    LB, LJ, Lslow, Lst = a.newlabel("L_halfB"), a.newlabel("L_join"), a.newlabel("L_slow"), a.newlabel("L_store")
    a(f"""
    s_mul_i32 s34, s{S_WV}, 2304
    s_xor_b32 s35, s{S_WV}, 4
    s_mul_i32 s35, s35, 2304
    v_add_u32 v{vT}, s34, v{vL16}
    v_add_u32 v{vT+1}, s35, v{vL16}
    v_lshl_add_u32 v{vT+2}, v1, 2, s34     ; own l word
    v_or_b32 v{vT+3}, 32, v1
    v_lshl_add_u32 v{vT+4}, v{vT+3}, 2, s35
    v_lshl_add_u32 v{vT+3}, v{vT+3}, 2, s34
    s_nop 0
    s_cmp_lg_u32 s{S_HALF}, 0
    s_cbranch_scc1 {LB}
    ds_write_b128 v{vT}, {vr(vO+8,4)}
    ds_write_b128 v{vT}, {vr(vO+12,4)} offset:1024
    ds_write_b32 v{vT+2}, v{vO+12} offset:2048
    s_branch {LJ}
    {LB}:
    ds_write_b128 v{vT}, {vr(vO,4)}
    ds_write_b128 v{vT}, {vr(vO+4,4)} offset:1024
    ds_write_b32 v{vT+2}, v{vO+12} offset:2048
    s_nop 1
    """)
    for r in range(8):
        a(f"v_mov_b32 v{vO+r}, v{vO+8+r}")
    a(f"""
    {LJ}:
    s_waitcnt vmcnt({NWO}) lgkmcnt(0)
    s_barrier
    {f"buffer_load_dwordx2 {vr(vSen+2,2)}, v{vP2}, {WS}, s{S_FB} offen {SC}" if "p2b" in OPT else ""}
    ds_read_b32 v{vX+8}, v{vT+3} offset:2048
    ds_read_b32 v{vX+9}, v{vT+4} offset:2048
    ds_read_b128 {vr(vX,4)}, v{vT+1}
    ds_read_b128 {vr(vX+4,4)}, v{vT+1} offset:1024
    s_waitcnt lgkmcnt(2)
    v_add_f32 v{vX+8}, v{vX+8}, v{vX+9}
    v_rcp_f32 v{vX+9}, v{vX+8}
    s_mov_b32 s34, 0x2b800000
    s_mov_b32 s35, 0x53800000
    s_waitcnt lgkmcnt(0)
    """)
    for r in range(8):
        a(f"v_add_f32 v{vO+r}, v{vO+r}, v{vX+r}")
    for r in range(8):
        a(f"v_fmac_f32 v{vX+8}, 0, v{vO+r}")
    a(f"""
    v_cmp_nle_f32 vcc, s34, v{vX+8}
    v_cmp_nge_f32 s[58:59], s35, v{vX+8}
    s_nop 0
    s_or_b64 vcc, vcc, s[58:59]
    s_cbranch_scc1 {Lslow}
    {Lst}:
    s_mov_b32 s35, 0xfffffffe
    """)
    for r in range(8):
        a(f"v_mul_f32 v{vO+r}, v{vO+r}, v{vX+9}")
    for t in range(4):
        a(f"v_cvt_pk_bf16_f32 v{vX+t}, v{vO+2*t}, v{vO+2*t+1}")
    for t in range(4):
        a(f"v_min_u32 v{vX+t}, s35, v{vX+t}")
    Lnz = a.newlabel("L_nz")
    a(f"""
    s_cmp_eq_u32 s{S_HALF}, 0
    s_cbranch_scc1 {Lnz}
    s_mov_b32 exec_lo, 0
    v_mov_b32 v{vX+2}, 0
    v_mov_b32 v{vX+3}, 0
    s_mov_b32 exec_lo, -1
    {Lnz}:
    buffer_store_dwordx4 {vr(vX,4)}, v{vL16}, {WS}, s{S_OA} offen {SC}
    s_cmp_ge_u32 s2, 224
    s_cbranch_scc1 {"L_fin" if STAMPS else done}
    """)
    stamp(a, 11)
    vOg = 3
    vA = 8
    vAc3 = 32
    vOf = 48
    vWo = 128
    WOB_L = 98304
    a(f"""
    v_mov_b32 v2, v{vP2}
    v_lshrrev_b32 v{vT}, 4, v1            ; g
    v_and_b32 v{vT+1}, 15, v1
    v_bfe_u32 v{vT+2}, v1, 2, 2           ; r'
    v_bfe_u32 v{vT+3}, v1, 4, 1           ; g&1
    v_lshrrev_b32 v{vT+4}, 5, v1          ; g>>1
    v_lshl_add_u32 v{vT+5}, v{vT+3}, 2, v{vT+2}
    v_lshl_add_u32 v{vT+5}, v{vT+4}, 4, v{vT+5}   ; row
    v_lshrrev_b32 v{vT+6}, 1, v{vT+2}
    v_lshl_add_u32 v{vT+6}, v{vT+3}, 1, v{vT+6}   ; s0
    v_lshlrev_b32 v{vT+6}, 5, v{vT+6}
    v_lshl_add_u32 v{vT+5}, v{vT+5}, 7, v{vT+6}
    v_and_b32 v{vT+6}, 3, v1
    v_lshl_add_u32 v{vT+5}, v{vT+6}, 3, v{vT+5}
    s_mul_i32 s34, s{S_HALF}, {8*28*128}
    s_add_u32 s34, s34, {WOB_L}
    v_add_u32 v{vA}, s34, v{vT+5}
    v_xor_b32 v{vA+1}, 32, v{vA}
    v_xor_b32 v{vA+2}, 64, v{vA}
    v_xor_b32 v{vA+3}, 0x60, v{vA}
    """)
    def wr(hh):
        for ct in range(4):
            for u in range(2):
                a(f"ds_read_b64_tr_b16 {vr(vWo+16*hh+4*ct+2*u,2)}, v{vA+(ct^(2*(hh&1)))} offset:{(28*hh+8*u)*128}")
    NW1 = optint("nw1", 4)
    for hh in range(NW1):
        wr(hh)
        a("s_waitcnt lgkmcnt(4)")
    XB3 = 20480
    Lf2r, Lf2b = a.newlabel("L_f2r"), a.newlabel("L_f2b")
    a(f"""
    v_lshlrev_b32 v{vOg}, 9, v{vT}
    v_lshl_add_u32 v{vOg}, v{vT+1}, 4, v{vOg}
    s_lshl_b32 s34, s{S_TH}, 1
    s_lshr_b32 s35, s{S_T}, 1
    s_add_u32 s34, s34, s35
    s_lshl_b32 s34, s34, 15
    s_lshl_b32 s35, s{S_HALF}, 14
    s_add_u32 s48, s34, s35
    s_and_b32 s34, s{S_T}, 1
    s_lshl_b32 s34, s34, 8
    s_add_u32 s48, s48, s34
    s_add_u32 s48, s48, {WS_O}
    s_add_u32 s46, s48, 4096
    s_add_u32 s47, s48, 8192
    s_add_u32 s51, s48, 12288
    v_and_b32 v{vT+4}, 3, v1
    v_lshlrev_b32 v{vT+5}, 1, v1
    v_and_b32 v{vT+5}, 8, v{vT+5}
    v_lshrrev_b32 v{vT+6}, 1, v1
    v_and_b32 v{vT+6}, 4, v{vT+6}
    v_or3_b32 v{vT+4}, v{vT+4}, v{vT+5}, v{vT+6}
    v_mul_u32_u24 v{vT+4}, 272, v{vT+4}
    v_lshl_add_u32 v{vT+4}, v{vT}, 4, v{vT+4}
    s_mul_i32 s34, s{S_WV}, 4352
    v_add_u32 v{vT+2}, s34, v{vT+4}
    v_lshrrev_b32 v{vT+5}, 3, v0
    v_and_b32 v{vT+6}, 7, v0
    v_mul_u32_u24 v{vT+3}, 272, v{vT+5}
    v_lshl_add_u32 v{vT+3}, v{vT+6}, 5, v{vT+3}
    v_mul_u32_u24 v{vT+4}, 896, v{vT+5}
    v_lshl_add_u32 v{vT+4}, v{vT+6}, 4, v{vT+4}
    s_mul_i32 s50, s{S_TH}, 57344
    s_add_u32 s50, s50, s49
    s_waitcnt vmcnt({2 if "p2b" in OPT else 1})
    v_cmp_ne_u64 vcc, {vr(vSen,2)}, {vr(vN,2)}
    s_nop 0
    s_cmp_lg_u64 vcc, 0
    s_cbranch_scc1 {Lf2r}
    {Lf2b}:
    s_mov_b32 s35, 0
    """)
    def f2retry():
        Ll = a.newlabel("L_f2l")
        P2B = f"s_waitcnt vmcnt(1)\nv_cmp_ne_u64 vcc, {vr(vSen+2,2)}, {vr(vN,2)}\ns_nop 0\ns_cmp_eq_u64 vcc, 0\ns_cbranch_scc1 {Lf2b}" if "p2b" in OPT else ""
        a(f"""
        {Lf2r}:
        s_mov_b32 s35, 0
        {P2B}
        {Ll}:
        s_sleep {optint("sl2", 2)}
        buffer_load_dwordx2 {vr(vSen,2)}, v2, {WS}, s{S_FB} offen {SC}
        s_add_u32 s35, s35, 1
        s_waitcnt vmcnt(0)
        v_cmp_ne_u64 vcc, {vr(vSen,2)}, {vr(vN,2)}
        s_cmp_ge_u32 s35, {SPIN_MAX}
        s_cbranch_scc1 {Lf2b}
        s_cmp_lg_u64 vcc, 0
        s_cbranch_scc1 {Ll}
        s_branch {Lf2b}
        """)
    slowpaths.append(f2retry)
    stamp(a, 12)
    def oload(hh):
        so = ["s48", "s46", "s47", "s51"][hh // 2]
        a(f"buffer_load_dwordx4 {vr(vOf+4*hh,4)}, v{vOg}, {WS}, {so} offen offset:{(hh%2)*2048} {SC}")
    def ocheck(hh, first):
        o4 = vOf + 4 * hh
        Lacc, Lskip = a.newlabel("L_oa"), a.newlabel("L_os")
        if not first:
            a(f"s_bitcmp0_b32 s34, {hh}")
            a(f"s_cbranch_scc1 {Lskip}")
            a(f"s_bitcmp0_b32 s56, {hh}")
            a(f"s_cbranch_scc1 {Lacc}")
        a(f"""
        v_max3_u32 v{vT+5}, v{o4}, v{o4+1}, v{o4+2}
        v_max_u32 v{vT+5}, v{vT+5}, v{o4+3}
        v_cmp_eq_u32 vcc, -1, v{vT+5}
        s_nop 0
        s_cmp_lg_u64 vcc, 0
        s_cbranch_scc1 {Lskip}
        s_bitset0_b32 s56, {hh}
        {Lacc}:
        """)
        if hh:
            a(f"s_and_b32 s58, s56, {(1 << hh) - 1}")
            a(f"s_cbranch_scc1 {Lskip}")
        a(f"s_bitset0_b32 s34, {hh}")
        for ct in range(4):
            C = "0" if hh == 0 else vr(vAc3 + 4 * ct, 4)
            a(f"v_mfma_f32_16x16x32_bf16 {vr(vAc3+4*ct,4)}, {vr(vWo+16*hh+4*ct,4)}, {vr(vOf+4*hh,4)}, {C}")
        a.label(Lskip)
    for hh in range(8): oload(hh)
    for hh in range(NW1, 8):
        wr(hh)
        a("s_waitcnt lgkmcnt(4)")
    Lo, Lo2, Lod = a.newlabel("L_o"), a.newlabel("L_o2"), a.newlabel("L_od")
    a(f"s_branch {Lo2}")
    a.label(Lo)
    for hh in range(8): oload(hh)
    a.label(Lo2)
    for hh in range(8):
        a(f"s_waitcnt vmcnt({7-hh}) lgkmcnt(0)")
        for ct in range(4):
            C = "0" if hh == 0 else vr(vAc3 + 4 * ct, 4)
            a(f"v_mfma_f32_16x16x32_bf16 {vr(vAc3+4*ct,4)}, {vr(vWo+16*hh+4*ct,4)}, {vr(vOf+4*hh,4)}, {C}")
        o4 = vOf + 4 * hh
        if hh == 0:
            a(f"v_max3_u32 v{vT+5}, v{o4}, v{o4+1}, v{o4+2}")
            a(f"v_max_u32 v{vT+5}, v{vT+5}, v{o4+3}")
        else:
            a(f"v_max3_u32 v{vT+5}, v{vT+5}, v{o4}, v{o4+1}")
            a(f"v_max3_u32 v{vT+5}, v{vT+5}, v{o4+2}, v{o4+3}")
    a(f"""
    v_cmp_eq_u32 vcc, -1, v{vT+5}
    s_add_u32 s35, s35, 1
    s_cmp_ge_u32 s35, {SPIN_MAX}
    s_cbranch_scc1 {Lod}
    s_cmp_lg_u64 vcc, 0
    s_cbranch_scc1 {Lo}
    {Lod}:
    """)
    stamp(a, 13)
    if STAMPS: a("s_mov_b32 s94, s35")
    a("s_nop 1")
    for ct in range(4):
        a(f"ds_write_b128 v{vT+2}, {vr(vAc3+4*ct,4)} offset:{XB3+64*ct}")
    a(f"""
    s_waitcnt lgkmcnt(0)
    s_barrier
    ds_read_b128 {vr(vX,4)}, v{vT+3} offset:{XB3}
    ds_read_b128 {vr(vX+8,4)}, v{vT+3} offset:{XB3+17408}
    ds_read_b128 {vr(vX+4,4)}, v{vT+3} offset:{XB3+16}
    ds_read_b128 {vr(vX+12,4)}, v{vT+3} offset:{XB3+17408+16}
    s_waitcnt lgkmcnt(2)
    """)
    for r in range(4):
        a(f"v_add_f32 v{vX+r}, v{vX+r}, v{vX+8+r}")
    a("s_waitcnt lgkmcnt(0)")
    for r in range(4, 8):
        a(f"v_add_f32 v{vX+r}, v{vX+r}, v{vX+8+r}")
    for t in range(4):
        a(f"v_cvt_pk_bf16_f32 v{vX+8+t}, v{vX+2*t}, v{vX+2*t+1}")
    a(f"buffer_store_dwordx4 {vr(vX+8,4)}, v{vT+4}, s[{S_OUT}:{S_OUT+3}], s50 offen {OSC}")
    if STAMPS:
        a("s_waitcnt vmcnt(0)")
        stamp(a, 14)
        a.label("L_fin")
        a("s_memrealtime s[96:97]")
        a("s_waitcnt lgkmcnt(0)")
        for i in range(15):
            a(f"v_mov_b32 v{8+i}, s{64+2*i}")
        if "cyc" in OPT: a("s_sub_u32 s94, s44, s42")
        a("v_mov_b32 v23, s94")
        a("v_mov_b32 v24, s98")
        a("v_mov_b32 v25, s96")
        a("v_mov_b32 v26, 0")
        a("v_mov_b32 v27, 0")
        a(f"""
        s_lshl_b32 s34, s2, 3
        s_add_u32 s34, s34, s{S_WV}
        s_lshl_b32 s34, s34, 7
        s_add_u32 s34, s34, {WS_ST}
        s_mov_b64 exec, 1
        buffer_store_dwordx4 v[8:11], v{vZ}, {WS}, s34 offen
        buffer_store_dwordx4 v[12:15], v{vZ}, {WS}, s34 offen offset:16
        buffer_store_dwordx4 v[16:19], v{vZ}, {WS}, s34 offen offset:32
        buffer_store_dwordx4 v[20:23], v{vZ}, {WS}, s34 offen offset:48
        buffer_store_dwordx4 v[24:27], v{vZ}, {WS}, s34 offen offset:64
        """)
    a.label(done)
    a("s_endpgm")
    for e in slowpaths: e()
    a.label(Lspare)
    a(f"""
    s_cmp_lg_u32 s2, 196
    s_cbranch_scc1 {Lnn}
    ; one spare workgroup publishes this launch's hand-off tag in d_debug
    s_or_b32 s62, s62, 1
    v_mov_b32 v{vN}, s62
    v_mov_b32 v{vN+1}, s63
    buffer_store_dwordx2 {vr(vN,2)}, v{vF}, {DBG}, 0 offen {SC}
    s_waitcnt vmcnt(0)
    {Lnn}:
    {tagload}
    s_branch {Lpub}
    """)
    a.label(Lslow)
    L1, L2, Lh = a.newlabel("L_s1"), a.newlabel("L_s2"), a.newlabel("L_sh")
    sCnt = 48
    a(f"""
    s_mov_b32 exec_lo, 0
    v_mov_b32 v{vQ+6}, 0
    v_mov_b32 v{vQ+7}, 0
    s_mov_b32 exec_lo, -1
    v_mov_b32 v{vT}, 0xff800000
    s_lshl_b32 s{sG}, s{S_HEAD}, 18
    s_mov_b32 s{sCnt}, 0
    {L1}:
    buffer_load_dwordx4 {vr(vK[0],4)}, v{vL16}, {WS}, s{sG} offen {SC}
    buffer_load_dwordx4 {vr(vK[0]+4,4)}, v{vL16}, {WS}, s{sG} offen offset:1024 {SC}
    s_waitcnt vmcnt(0)
    """)
    QK(0, 0); QK(0, 1)
    a("s_nop 15")
    for r in range(0, 16, 2):
        a(f"v_max3_f32 v{vT}, v{vT}, v{vS[0]+r}, v{vS[0]+r+1}")
    a(f"""
    s_add_u32 s{sG}, s{sG}, 4096
    s_add_u32 s{sCnt}, s{sCnt}, 1
    s_cmp_lt_u32 s{sCnt}, 64
    s_cbranch_scc1 {L1}
    v_mov_b32 v{vT+1}, v{vT}
    s_nop 1
    v_permlane32_swap_b32 v{vT}, v{vT+1}
    s_nop 1
    v_max_f32 v{vT}, v{vT}, v{vT+1}
    v_and_b32 v{vT+1}, 0xffff0000, v{vT}       ; hi
    v_sub_f32 v{vT+2}, v{vT}, v{vT+1}
    v_and_b32 v{vT+3}, 0xffff0000, v{vT+2}     ; mid
    v_sub_f32 v{vT+2}, v{vT+2}, v{vT+3}        ; lo
    s_mov_b32 exec_lo, 0
    v_cvt_pk_bf16_f32 v{vQ+6}, -v{vT+1}, -v{vT+3}
    v_cvt_pk_bf16_f32 v{vQ+7}, -v{vT+2}, 0
    s_mov_b32 exec_lo, -1
    """)
    for r in range(16):
        a(f"v_mov_b32 v{vO+r}, 0")
    a(f"""
    s_lshl_b32 s{sG}, s{S_HEAD}, 18
    s_mov_b32 s{sCnt}, 0
    {L2}:
    buffer_load_dwordx4 {vr(vK[0],4)}, v{vL16}, {WS}, s{sG} offen {SC}
    buffer_load_dwordx4 {vr(vK[0]+4,4)}, v{vL16}, {WS}, s{sG} offen offset:1024 {SC}
    buffer_load_dwordx4 {vr(vV[0],4)}, v{vL16}, {WS}, s{sG} offen offset:2048 {SC}
    buffer_load_dwordx4 {vr(vV[0]+4,4)}, v{vL16}, {WS}, s{sG} offen offset:3072 {SC}
    s_waitcnt vmcnt(0)
    """)
    QK(0, 0); QK(0, 1)
    a("s_nop 15")
    E(0, 0, 16)
    a("s_nop 1")
    PV(0, 0); PV(0, 1)
    a(f"""
    s_nop 7
    s_add_u32 s{sG}, s{sG}, 4096
    s_add_u32 s{sCnt}, s{sCnt}, 1
    s_cmp_lt_u32 s{sCnt}, 64
    s_cbranch_scc1 {L2}
    s_nop 15
    v_mov_b32 v{vX+8}, v{vO+12}
    v_mov_b32 v{vX+9}, v{vO+12}
    s_nop 1
    v_permlane32_swap_b32 v{vX+8}, v{vX+9}
    s_nop 1
    v_rcp_f32 v{vX+9}, v{vX+9}
    s_cmp_eq_u32 s{S_HALF}, 0
    s_cbranch_scc1 {Lh}
    """)
    for r in range(8):
        a(f"v_mov_b32 v{vO+r}, v{vO+8+r}")
    a(f"""
    {Lh}:
    s_nop 1
    s_branch {Lst}
    """)
    a.label("L_end")
    a.raw('.section .rodata,"a"')
    a.raw(".p2align 6")
    a.raw(kernel_desc(NAME, 256, 102).rstrip("\n"))
    return a.text()

if __name__ == "__main__":
    out = sys.argv[1] if len(sys.argv) > 1 else "standalone__softmax_full_mha__prompt.s"
    OPT.update(sys.argv[2:])
    STAMPS = "stamps" in OPT
    open(out, "w").write(build())
```

```python
import sys, struct, math
from asmlib import *

WS_KV = 0
WS_Q = 0x400000
WS_O = 0x800000
WS_F1 = 0xa00000
WS_F2 = 0xa40000
WS_ST = 0xc00000
WS_BYTES = 0xd00000
OOB = 0x40000000
XB, WB, WOB, OUTB = 1835008, 1204224, 401408, 1835008
QSCALE = struct.unpack("<I", struct.pack("<f", math.log2(math.e) / math.sqrt(28.0)))[0]
SPIN_MAX = 1 << 18

S_X, S_W, S_WS, S_WO, S_OUT, S_DBG = 8, 12, 16, 20, 24, 4
S_QB, S_WV, S_HEAD, S_ROT = 28, 31, 32, 33
S_TH, S_TILE, S_C, S_HALF, S_T = 52, 53, 55, 60, 61
S_M0 = 36
S_OA, S_FB = 40, 41
SC = "sc1"
OPT = set()
STAMPS = False
NAME = "standalone__softmax_full_mha__prompt_kernel"
WS = f"s[{S_WS}:{S_WS+3}]"
DBG = f"s[{S_DBG}:{S_DBG+3}]"

def stamp(a, i):
    if STAMPS:
        a(f"s_memrealtime s[{64+2*i}:{65+2*i}]")

def optint(name, default):
    for o in OPT:
        if o.startswith(name + "="):
            return int(o.split("=")[1])
    return default

def build():
    a = Asm()
    HEADER = open("standalone__softmax_full_mha__prompt.s.ref").read().split("; Override launch")[0]
    a.raw(HEADER.rstrip("\n"))
    a.raw("; @launch grid=(256,1,1) block=(512,1,1) lds=163840")
    a.raw("""; One fused launch, 256 workgroups x 8 waves (one per CU):
;  phase 1  Q/K/V projection: 224 workgroups, tile = 64 tokens x {K,V,Q} 64-column blocks, LDS-DMA staging; results are
;           written to d_ws in MFMA-fragment order (write-through), then one flag line per workgroup.
;           check (row-sum range, finite O) falls back to an exact two-pass path with the true row max.
; Hand-off flags carry a per-launch tag that one workgroup publishes in d_debug.""")
    a.raw('.amdgcn_target "amdgcn-amd-amdhsa--gfx950"\n.text')
    a.raw(f".globl {NAME}\n.p2align 8\n.type {NAME},@function\n{NAME}:")
    if STAMPS:
        a("s_memrealtime s[98:99]")
    done = "L_done"
    OSC = "sc0 sc1" if "oplain" not in OPT else ""
    vXg, vWg = 2, 3
    vWa = 4
    vF = 6
    vZ = 7
    vXa = 8
    vT = 16
    vAcc = 32
    vWf = 48
    vD = 64
    vAd = 76
    vN = 80
    vWqa = 122
    vL16 = 123
    vSen = 124
    vXf = 128
    sC, sXo, sWo, sCol, sM, sXbase = 46, 47, 48, 49, 50, 51
    SLOT = 24576
    WQB = 98304
    Lspare, Lsync = a.newlabel("L_spare"), a.newlabel("L_sync1")
    if "rep" not in OPT and "nofull" not in OPT:
        VFSET = f"""v_lshrrev_b32 v{vT+1}, 5, v0
        v_and_b32 v{vT+2}, 15, v1
        v_lshlrev_b32 v{vT+2}, 3, v{vT+2}
        v_and_b32 v{vT+3}, 16, v1
        v_lshl_add_u32 v{vT+2}, v{vT+3}, 11, v{vT+2}
        v_cmp_eq_u32 vcc, 14, v{vT+1}"""
    elif "rep" in OPT:
        VFSET = f"""v_lshrrev_b32 v{vT+1}, 6, v0
        v_and_b32 v{vT+2}, 15, v1
        v_lshlrev_b32 v{vT+2}, 3, v{vT+2}
        v_and_b32 v{vT+3}, 48, v1
        v_lshl_add_u32 v{vT+2}, v{vT+3}, 11, v{vT+2}
        v_cmp_eq_u32 vcc, 7, v{vT+1}"""
    else:
        VFSET = f"""v_lshrrev_b32 v{vT+1}, 1, v0
        v_lshlrev_b32 v{vT+2}, 15, v1
        v_cmp_eq_u32 vcc, 0xe0, v{vT+1}"""
    a(f"""
    s_cmp_ge_u32 s2, 256
    s_cbranch_scc1 {done}
    s_load_dwordx4 s[36:39], s[0:1], 0
    s_load_dwordx4 s[40:43], s[0:1], 16
    s_load_dwordx4 {DBG}, s[0:1], 32
    s_memrealtime s[62:63]
    v_lshrrev_b32 v{vT}, 6, v0
    v_and_b32 v1, 63, v0
    s_and_b32 s34, s2, 3                  ; tg
    s_bfe_u32 s35, s2, 0x30003            ; r5 & 7
    v_readfirstlane_b32 s{S_WV}, v{vT}
    s_lshl_b32 s{S_TH}, s34, 3
    s_add_u32 s{S_TH}, s{S_TH}, s35
    s_lshr_b32 s{S_C}, s2, 6              ; cl
    s_lshl_b32 s{sC}, s{S_C}, 1
    s_add_u32 s{sC}, s{sC}, s35
    s_cmp_ge_u32 s{sC}, 7
    s_cselect_b32 s35, 7, 0
    s_sub_u32 s{sC}, s{sC}, s35
    s_and_b32 s35, s2, 4
    s_lshr_b32 s34, s2, 3
    s_xor_b32 s34, s34, s2
    s_and_b32 s34, s34, 4
    s_cmp_eq_u32 s{S_C}, 3
    s_cselect_b32 s35, s34, s35
    s_add_u32 s{S_C}, s{S_C}, s35
    s_mov_b32 s{S_X+2}, {XB}
    s_mov_b32 s{S_X+3}, 0x00020000
    s_mov_b32 s{S_W+2}, {WB}
    s_mov_b32 s{S_W+3}, 0x00020000
    s_cmp_lg_u32 s{S_C}, 7
    s_cbranch_scc1 L_work
    ; spare workgroup: pull the kernel's own code into this XCD's L2
    s_getpc_b64 s[44:45]
    L_pc:
    s_sub_u32 s44, s44, L_pc-{NAME}
    s_subb_u32 s45, s45, 0
    s_mov_b32 s46, L_end-{NAME}
    s_mov_b32 s47, 0x00020000
    v_lshlrev_b32 v{vT+10}, 7, v0
    buffer_load_dword v{vT+11}, v{vT+10}, s[44:47], 0 offen
    s_and_b32 s34, s{S_TH}, 3
    s_and_b32 s35, s2, 4
    s_cmp_eq_u32 s34, 3
    s_cselect_b32 s35, 0, s35
    s_add_u32 s34, s34, s35
    s_lshl_b32 s34, s34, 7
    v_mul_u32_u24 v{vT+10}, 2688, v0
    s_waitcnt lgkmcnt(0)
    s_mov_b32 s{S_W}, s38
    s_mov_b32 s{S_W+1}, s39
    {"" if "wqown" in OPT else f"buffer_load_dword v{vT+11}, v{vT+10}, s[{S_W}:{S_W+3}], s34 offen"}
    s_branch L_sp1
    L_work:
    v_lshrrev_b32 v{vT+2}, 3, v0          ; 8w + r
    v_and_b32 v{vT+1}, 7, v1              ; pos
    v_bfe_u32 v{vT+3}, v0, 4, 3           ; swz = ((8w+r)>>1)&7
    v_xor_b32 v{vT+3}, v{vT+3}, v{vT+1}
    v_mul_u32_u24 v{vXg}, 896, v{vT+2}
    v_lshl_add_u32 v{vXg}, v{vT+3}, 4, v{vXg}
    v_lshrrev_b32 v{vT+3}, 2, v1
    v_and_b32 v{vT+3}, 4, v{vT+3}         ; ((r>>1)&1)*4
    v_xor_b32 v{vT+3}, v{vT+3}, v{vT+1}
    v_mul_u32_u24 v{vWg}, 2688, v{vT+2}
    v_lshl_add_u32 v{vWg}, v{vT+3}, 4, v{vWg}
    s_mul_i32 s{sXbase}, s{S_TH}, 57344
    s_lshl_b32 s{sCol}, s{S_C}, 7
    s_lshl_b32 s{sM}, s{S_WV}, 10
    s_waitcnt lgkmcnt(0)
    s_mov_b32 s{S_X}, s36
    s_mov_b32 s{S_X+1}, s37
    s_mov_b32 s{S_W}, s38
    s_mov_b32 s{S_W+1}, s39
    """)
    def adv():
        a(f"""
        s_add_u32 s{sC}, s{sC}, 1
        s_cmp_eq_u32 s{sC}, 7
        s_cselect_b32 s{sC}, 0, s{sC}
        """)
    def issue_chunk(i):
        sl = (i % 4) * SLOT
        a(f"""
        s_lshl_b32 s{sXo}, s{sC}, 7
        s_add_u32 s{sXo}, s{sXo}, s{sXbase}
        s_add_u32 m0, s{sM}, {sl}
        s_mul_i32 s{sWo}, s{sC}, 172032
        buffer_load_dwordx4 v{vXg}, s[{S_X}:{S_X+3}], s{sXo} offen lds
        s_add_u32 m0, s{sM}, {sl+8192-896}
        s_add_u32 s{sWo}, s{sWo}, s{sCol}
        buffer_load_dwordx4 v{vWg}, s[{S_W}:{S_W+3}], s{sWo} offen offset:896 lds
        s_add_u32 m0, s{sM}, {sl+16384-1792}
        s_add_u32 s{sC}, s{sC}, 1
        buffer_load_dwordx4 v{vWg}, s[{S_W}:{S_W+3}], s{sWo} offen offset:1792 lds
        s_cmp_eq_u32 s{sC}, 7
        s_cselect_b32 s{sC}, 0, s{sC}
        """)
    def issue_wq(i):
        a(f"""
        s_mul_i32 s{sWo}, s{sC}, 172032
        s_add_u32 m0, s{sM}, {WQB+i*8192}
        s_add_u32 s{sWo}, s{sWo}, s{sCol}
        buffer_load_dwordx4 v{vWg}, s[{S_W}:{S_W+3}], s{sWo} offen lds
        """)
        adv()
    def issue_chunk2(i):
        sl = (i % 4) * SLOT
        a(f"""
        s_lshl_b32 s{sXo}, s{sC}, 7
        s_add_u32 s{sXo}, s{sXo}, s{sXbase}
        s_add_u32 m0, s{sM}, {sl}
        s_mul_i32 s{sWo}, s{sC}, 172032
        buffer_load_dwordx4 v{vXg}, s[{S_X}:{S_X+3}], s{sXo} offen lds
        s_add_u32 m0, s{sM}, {(sl-4096) & 0xffffffff}
        s_add_u32 s{sWo}, s{sWo}, s{sCol}
        buffer_load_dwordx4 v{vXg2}, s[{S_X}:{S_X+3}], s{sXo} offen lds
        s_add_u32 m0, s{sM}, {sl+8192-896}
        s_add_u32 s{sC}, s{sC}, 1
        buffer_load_dwordx4 v{vWg}, s[{S_W}:{S_W+3}], s{sWo} offen offset:896 lds
        s_add_u32 m0, s{sM}, {sl+4096-896}
        s_nop 0
        buffer_load_dwordx4 v{vWg2}, s[{S_W}:{S_W+3}], s{sWo} offen offset:896 lds
        s_add_u32 m0, s{sM}, {sl+16384-1792}
        s_nop 0
        buffer_load_dwordx4 v{vWg}, s[{S_W}:{S_W+3}], s{sWo} offen offset:1792 lds
        s_add_u32 m0, s{sM}, {sl+12288-1792}
        s_cmp_eq_u32 s{sC}, 7
        buffer_load_dwordx4 v{vWg2}, s[{S_W}:{S_W+3}], s{sWo} offen offset:1792 lds
        s_cselect_b32 s{sC}, 0, s{sC}
        """)
    def issue_wq2(i):
        a(f"""
        s_mul_i32 s{sWo}, s{sC}, 172032
        s_add_u32 m0, s{sM}, {WQB+i*8192}
        s_add_u32 s{sWo}, s{sWo}, s{sCol}
        buffer_load_dwordx4 v{vWg}, s[{S_W}:{S_W+3}], s{sWo} offen lds
        s_add_u32 m0, s{sM}, {WQB+i*8192-4096}
        s_add_u32 s{sC}, s{sC}, 1
        buffer_load_dwordx4 v{vWg2}, s[{S_W}:{S_W+3}], s{sWo} offen lds
        s_cmp_eq_u32 s{sC}, 7
        s_cselect_b32 s{sC}, 0, s{sC}
        """)
    vXg2, vWg2 = 240, 241
    SPLIT = False
    Lsp1, Lnn = "L_sp1", a.newlabel("L_nonon")
    stamp(a, 0)
    PRE = optint("pre", 2)
    EARLY = False
    for i in range(PRE): issue_chunk(i)
    a(f"""
    {Lsp1}:
    s_mov_b32 s{S_WS}, s{S_DBG+2}
    s_mov_b32 s{S_WS+1}, s{S_DBG+3}
    s_mov_b32 s{S_DBG+2}, 256
    s_mov_b32 s{S_DBG+3}, 0x00020000
    s_mov_b32 s{S_WS+2}, {WS_BYTES}
    s_mov_b32 s{S_WS+3}, 0x00020000
    s_mov_b32 s{S_WO}, s40
    s_mov_b32 s{S_WO+1}, s41
    s_mov_b32 s{S_OUT}, s42
    s_mov_b32 s{S_OUT+1}, s43
    s_mov_b32 s{S_WO+2}, {WOB}
    s_mov_b32 s{S_WO+3}, 0x00020000
    s_mov_b32 s{S_OUT+2}, {OUTB}
    s_mov_b32 s{S_OUT+3}, 0x00020000
    v_mov_b32 v{vZ}, 0
    s_bfe_u32 s{S_QB}, s2, 0x40003
    s_and_b32 s34, s2, 7
    s_lshl_b32 s34, s34, 1
    s_lshr_b32 s35, s2, 7
    s_add_u32 s{S_HEAD}, s34, s35         ;          head = 2*(b&7) + (b>>7)
    s_and_b32 s{S_T}, s{S_WV}, 3
    s_lshr_b32 s{S_HALF}, s{S_WV}, 2
    s_lshl_b32 s34, s{S_QB}, 2
    s_add_u32 s{S_TILE}, s34, s{S_T}
    s_lshl_b32 s34, s{S_TILE}, 15
    s_lshl_b32 s35, s{S_HEAD}, 11
    s_add_u32 s{S_OA}, s34, s35
    s_lshl_b32 s34, s{S_HALF}, 10
    s_add_u32 s{S_OA}, s{S_OA}, s34
    s_add_u32 s{S_OA}, s{S_OA}, {WS_O}
    s_mov_b32 s{S_FB}, {WS_F1}
    s_lshl_b32 s57, s2, 7
    s_add_u32 s57, s57, {WS_F1}
    v_lshlrev_b32 v{vL16}, 4, v1
    v_mov_b32 v{vT}, {OOB}
    {VFSET}
    v_mov_b32 v{vSen}, -1
    v_mov_b32 v{vSen+1}, -1
    v_mov_b32 v{vSen+2}, -1
    v_mov_b32 v{vSen+3}, -1
    v_cndmask_b32 v{vF}, v{vT}, v{vT+2}, vcc
    s_cmp_eq_u32 s{S_C}, 7
    s_cbranch_scc1 {Lspare}
    v_and_b32 v{vT}, 31, v1               ; tok
    v_lshrrev_b32 v{vT+1}, 5, v1          ; h
    s_bfe_u32 s56, s{S_WV}, 0x10001       ; Ct = (w>>1)&1
    s_lshl_b32 s34, s{S_C}, 1
    s_add_u32 s58, s56, s34               ; Ctg (0..13)
    s_and_b32 s34, s{S_WV}, 1
    s_lshl_b32 s34, s34, 12
    s_lshl_b32 s54, s{S_TH}, 13
    s_add_u32 s54, s54, s34               ; tile * 4096
    v_bfe_u32 v{vT+2}, v1, 1, 3
    v_xor_b32 v{vT+2}, v{vT+2}, v{vT+1}   ; h ^ swz
    v_lshlrev_b32 v{vT+3}, 7, v{vT}       ; tok*128
    v_lshl_add_u32 v{vT+2}, v{vT+2}, 4, v{vT+3}
    v_add_u32 v{vXa}, s34, v{vT+2}
    v_xor_b32 v{vXa+1}, 32, v{vXa}
    v_xor_b32 v{vXa+2}, 64, v{vXa}
    v_xor_b32 v{vXa+3}, 0x60, v{vXa}
    v_add_u32 v{vXa+4}, {2*SLOT}, v{vXa}
    v_add_u32 v{vXa+5}, {2*SLOT}, v{vXa+1}
    v_add_u32 v{vXa+6}, {2*SLOT}, v{vXa+2}
    v_add_u32 v{vXa+7}, {2*SLOT}, v{vXa+3}
    v_and_b32 v{vT+2}, 3, v1              ; c'
    v_lshrrev_b32 v{vT+3}, 1, v{vT+2}
    v_lshlrev_b32 v{vT+4}, 1, v{vT+2}
    v_and_b32 v{vT+4}, 2, v{vT+4}
    v_or_b32 v{vT+3}, v{vT+3}, v{vT+4}    ; bitswap2(c')
    v_bfe_u32 v{vT+4}, v1, 4, 1           ; a
    v_bfe_u32 v{vT+5}, v1, 2, 2           ; r'
    v_lshl_add_u32 v{vT+6}, v{vT+1}, 3, v{vT+5}   ; 8h + r'
    s_cmp_eq_u32 s{S_HALF}, 0
    s_cselect_b64 vcc, -1, 0
    s_lshl_b32 s34, s56, 3
    v_cndmask_b32 v{vT+7}, v{vT+2}, v{vT+3}, vcc  ; cg
    v_lshl_add_u32 v{vT+7}, v{vT+4}, 2, v{vT+7}
    v_add_u32 v{vT+7}, s34, v{vT+7}
    v_lshlrev_b32 v{vT+8}, 2, v{vT+5}
    v_and_b32 v{vT+8}, 8, v{vT+8}
    v_xor_b32 v{vT+7}, v{vT+7}, v{vT+8}
    v_lshlrev_b32 v{vT+7}, 3, v{vT+7}
    v_lshl_add_u32 v{vWa}, v{vT+6}, 7, v{vT+7}
    v_add_u32 v{vWqa}, {WQB}, v{vWa}
    s_lshl_b32 s35, s{S_HALF}, 13
    s_add_u32 s35, s35, 8192
    v_add_u32 v{vWa}, s35, v{vWa}
    v_add_u32 v{vWa+1}, {2*SLOT}, v{vWa}
    v_mov_b32 v{vT+7}, {OOB}
    """)
    def nonce_wait():
        Lng, Lnw, Lz = a.newlabel("L_ngot"), a.newlabel("L_nwait"), a.newlabel("L_nz")
        a(f"""
        v_readfirstlane_b32 s34, v{vN}
        s_mov_b32 s35, 0
        s_sub_u32 s58, s62, s34
        s_cmp_lt_i32 s58, 1000
        s_cselect_b32 s34, s34, 0
        s_cmp_lg_u32 s34, 0
        s_cbranch_scc1 {Lng}
        {Lnw}:
        s_sleep 4
        buffer_load_dwordx2 {vr(vN,2)}, v{vZ}, {DBG}, 0 offen {SC}
        s_waitcnt vmcnt(0)
        v_readfirstlane_b32 s34, v{vN}
        s_add_u32 s35, s35, 1
        s_cmp_ge_u32 s35, {SPIN_MAX}
        s_cbranch_scc1 {Lng}
        s_cmp_ge_u32 s35, 256
        s_cbranch_scc1 {Lz}
        s_sub_u32 s58, s62, s34
        s_cmp_lt_i32 s58, 1000
        s_cselect_b32 s34, s34, 0
        {Lz}:
        s_cmp_eq_u32 s34, 0
        s_cbranch_scc1 {Lnw}
        {Lng}:
        """)
    NQ1 = optint("nq1", 4)
    CLA = optint("cla", 1)
    if "deep" in OPT:
        SCHED = {0: [("c", 2), ("c", 3)], 1: [("c", 4)], 2: [("c", 5)], 3: [("c", 6)], 4: [("q", q) for q in range(3)], 5: [("q", q) for q in range(3, 6)], 6: [("q", 6)]}
    elif "deep2" in OPT:
        SCHED = {0: [("c", 2)], 1: [("c", 3), ("c", 4)], 2: [("c", 5)], 3: [("c", 6)], 4: [("q", q) for q in range(3)], 5: [("q", q) for q in range(3, 7)]}
    else:
        SCHED = {i: [("c", i + 2)] for i in range(5)}
        SCHED[5] = [("q", q) for q in range(NQ1)]; SCHED[6] = [("q", q) for q in range(NQ1, 7)]
    def kloop(kt, extra):
        issued = [3] * PRE
        seq = []
        for i in range(PRE): seq += [("c", i)] * ((0 if kt else 6) if EARLY else 3)
        for ins in extra.get(-1, []):
            a(ins); seq.append(("x", -1))
        vW2 = [vWf, 82]
        def mm(i, waits):
            for sub in range(4):
                if waits: a(f"s_waitcnt lgkmcnt({3*(3-sub)})")
                X, W = vXf + 16 * i + 4 * sub, vW2[i % 2] + 4 * sub
                A, B = (W, X) if kt else (X, W)
                C = "0" if (i == 0 and sub == 0) else vr(vAcc, 16)
                if "nomm" not in OPT or i == 0: a(f"v_mfma_f32_32x32x16_bf16 {vr(vAcc,16)}, {vr(A,4)}, {vr(B,4)}, {C}")
        for i in range(7):
            mine = [k for k, t in enumerate(seq) if t == ("c", i)]
            a(f"s_waitcnt vmcnt({len(seq) - 1 - max(mine)}) lgkmcnt(0)" if mine else "s_waitcnt lgkmcnt(0)")
            a("s_barrier")
            stamp(a, 1 + i) if i in (0, 6) else None
            if "cyc" in OPT and i in (0, 6): a(f"s_memtime s[{42 if i == 0 else 44}:{43 if i == 0 else 45}]")
            sl = i % 4
            hi = sl >= 2
            so = (sl % 2) * SLOT
            for sub in range(4):
                for u in range(2):
                    a(f"ds_read_b64_tr_b16 {vr(vW2[i%2]+4*sub+2*u,2)}, v{vWa+hi} offset:{so+sub*2048+u*512}")
                a(f"ds_read_b128 {vr(vXf+16*i+4*sub,4)}, v{vXa+sub+4*hi} offset:{so}")
            if "pipe" in OPT and i >= 1: mm(i - 1, False)
            for kind, n in SCHED.get(i, []):
                if kind == "c":
                    issue_chunk(n); seq += [("c", n)] * 3
                else:
                    issue_wq(n); seq.append(("q", n))
            for ins in extra.get(i, []):
                a(ins); seq.append(("x", i))
            if "pipe" not in OPT or i == 6: mm(i, True)
    oclear = f"buffer_store_dwordx4 {vr(vSen,4)}, v{vL16}, {WS}, s{S_OA} offen {SC}"
    tagload = f"buffer_load_dwordx2 {vr(vN,2)}, v{vZ}, {DBG}, 0 offen {SC}"
    Lv = a.newlabel("L_vtype")
    Lpub = a.newlabel("L_pub")
    a(f"""
    s_cmp_lg_u32 s{S_HALF}, 0
    s_cbranch_scc1 {Lv}
    """)
    a.c("---- waves 0..3: K tile, then Q tile")
    a(f"""
    v_and_b32 v{vT+2}, 0x13, v{vT}
    v_lshlrev_b32 v{vT+3}, 1, v{vT}
    v_and_b32 v{vT+3}, 8, v{vT+3}
    v_lshrrev_b32 v{vT+4}, 1, v{vT}
    v_and_b32 v{vT+4}, 4, v{vT+4}
    v_or3_b32 v{vT+2}, v{vT+2}, v{vT+3}, v{vT+4}  ; swap23(tok)
    v_lshlrev_b32 v{vT+2}, 4, v{vT+2}
    v_mov_b32 v{vD+10}, 0x3f803f80
    v_mov_b32 v{vD+11}, 0x3f80
    v_mov_b32 v{vT+14}, 0x3f803f80
    v_mov_b32 v{vT+15}, 0x3f80
    s_add_u32 s59, s54, {WS_Q}
    s_lshl_b32 s34, s58, 2
    """)
    for aa in range(2):
        a(f"""
        v_add_u32 v{vT+3}, s34, v{vT+1}
        v_add_u32 v{vT+3}, {2*aa}, v{vT+3}       ; U
        v_mul_u32_u24 v{vT+4}, 37, v{vT+3}
        v_lshrrev_b32 v{vT+4}, 8, v{vT+4}        ; e
        v_mul_u32_u24 v{vT+5}, 7, v{vT+4}
        v_sub_u32 v{vT+6}, v{vT+3}, v{vT+5}      ; u7
        v_cmp_eq_u32 s[{S_M0+2*aa}:{S_M0+2*aa+1}], 3, v{vT+6}
        v_lshl_add_u32 v{vAd+aa}, v{vT+4}, 19, v{vT+2}
        v_lshrrev_b32 v{vT+5}, 2, v{vT+6}
        v_lshl_add_u32 v{vAd+aa}, v{vT+5}, 18, v{vAd+aa}
        v_and_b32 v{vT+5}, 3, v{vT+6}
        v_lshl_add_u32 v{vAd+aa}, v{vT+5}, 9, v{vAd+aa}
        v_add_u32 v{vT+5}, 0x40000, v{vAd+aa}
        v_cndmask_b32 v{vAd+2+aa}, v{vT+7}, v{vT+5}, s[{S_M0+2*aa}:{S_M0+2*aa+1}]
        """)
    kloop(True, {3: [tagload]})
    def unit_pack(aa, acc):
        L = [f"v_cvt_pk_bf16_f32 v{vD+4*aa+t}, v{acc+8*aa+2*t}, v{acc+8*aa+2*t+1}" for t in range(4)]
        X2 = vD + 8 if aa == 0 else vT + 12
        L += [f"v_mov_b32 v{X2}, v{vD+4*aa+2}", f"v_mov_b32 v{X2+1}, v{vD+4*aa+3}",
              f"v_cndmask_b32 v{vD+4*aa+2}, v{vD+4*aa+2}, v{vD+10}, s[{S_M0+2*aa}:{S_M0+2*aa+1}]",
              f"v_cndmask_b32 v{vD+4*aa+3}, v{vD+4*aa+3}, v{vD+11}, s[{S_M0+2*aa}:{S_M0+2*aa+1}]"]
        return L
    def unit_store(aa, soff):
        X2 = vD + 8 if aa == 0 else vT + 12
        return [f"buffer_store_dwordx4 {vr(vD+4*aa,4)}, v{vAd+aa}, {WS}, {soff} offen {SC}",
                f"buffer_store_dwordx4 {vr(X2,4)}, v{vAd+2+aa}, {WS}, {soff} offen {SC}"]
    QG = [int(c) for c in str(optint("qg", 47))]
    assert QG[-1] == 7
    a(f"s_waitcnt vmcnt({7 - QG[0]})")
    a("s_barrier")
    vW2 = [vWf, 82]
    vQa = 98
    def qrd(i, sub):
        for u in range(2):
            a(f"ds_read_b64_tr_b16 {vr(vW2[i%2]+4*sub+2*u,2)}, v{vWqa} offset:{i*8192+sub*2048+u*512}")
    for sub in range(4): qrd(0, sub)
    KST = optint("kst", 5)
    fill = {}
    pk = unit_pack(0, vAcc) + unit_pack(1, vAcc)
    for m in range(4): fill[m + 1] = pk[4 * m:4 * m + 4]
    ks = unit_store(0, "s54") + unit_store(1, "s54")
    for m in range(4): fill[KST + m] = fill.get(KST + m, []) + [ks[m]]
    fill[20] = [f"v_mov_b32 v{vD+10}, 0", f"v_mov_b32 v{vD+11}, 0", f"v_mov_b32 v{vT+14}, 0", f"v_mov_b32 v{vT+15}, 0", f"s_mov_b32 s34, {QSCALE:#x}"]
    nst = 0
    for i in range(7):
        if i + 1 in QG[:-1]:
            a(f"s_waitcnt vmcnt({nst + 7 - QG[QG.index(i + 1) + 1]})")
            a("s_barrier")
        for sub in range(4):
            if i + 1 < 7:
                qrd(i + 1, sub)
                a("s_waitcnt lgkmcnt(8)")
            else:
                a(f"s_waitcnt lgkmcnt({6-2*sub})")
            C = "0" if (i == 0 and sub == 0) else vr(vQa, 16)
            a(f"v_mfma_f32_32x32x16_bf16 {vr(vQa,16)}, {vr(vW2[i%2]+4*sub,4)}, {vr(vXf+16*i+4*sub,4)}, {C}")
            for ins in fill.get(4 * i + sub, []):
                a(ins)
                if ins.startswith("buffer_store"): nst += 1
            if 4 * i + sub == KST + 3: stamp(a, 2)
    a("s_nop 11")
    for aa in range(2):
        for r in range(8 * aa, 8 * aa + 8, 2):
            a(f"v_pk_mul_f32 {vr(vQa+r,2)}, {vr(vQa+r,2)}, s[34:35] op_sel_hi:[1,0]")
        for ins in unit_pack(aa, vQa) + unit_store(aa, "s59"): a(ins)
    stamp(a, 4)
    a(f"s_branch {Lpub}")
    a.label(Lv)
    a.c("---- waves 4..7: V tile")
    a(f"""
    s_lshl_b32 s34, s58, 5
    v_add_u32 v{vT+2}, s34, v{vT}            ; C
    v_mul_u32_u24 v{vT+3}, 2341, v{vT+2}
    v_lshrrev_b32 v{vT+3}, 16, v{vT+3}       ; head
    v_mul_u32_u24 v{vT+4}, 28, v{vT+3}
    v_sub_u32 v{vT+6}, v{vT+2}, v{vT+4}      ; d
    v_lshl_add_u32 v{vT+4}, v{vT+1}, 5, v{vT+6}
    v_lshlrev_b32 v{vT+4}, 4, v{vT+4}
    v_lshl_add_u32 v{vAd}, v{vT+3}, 18, v{vT+4}
    v_cmp_eq_u32 vcc, 0, v{vT+6}
    v_mov_b32 v{vT+5}, 0x3f803f80
    s_nop 0
    v_cndmask_b32 v{vD+8}, 0, v{vT+5}, vcc
    v_cndmask_b32 v{vD+9}, 0, v{vT+5}, vcc
    v_cndmask_b32 v{vD+10}, 0, v{vT+5}, vcc
    v_cndmask_b32 v{vD+11}, 0, v{vT+5}, vcc
    v_cmp_gt_u32 vcc, 4, v{vT+6}
    s_nop 1
    v_cndmask_b32 v{vAd+1}, v{vT+7}, v{vAd}, vcc
    """)
    vpad = [f"buffer_store_dwordx4 {vr(vD+8,4)}, v{vAd+1}, {WS}, s54 offen offset:{o+448} {SC}" for o in (2048, 3072)]
    if "wqown" in OPT:
        Lpf = a.newlabel("L_pf")
        a(f"""
        s_and_b32 s34, s{S_TH}, 7
        s_mul_i32 s34, s34, {56*2688}
        s_add_u32 s34, s34, s{sCol}
        v_and_b32 v{vT+8}, 15, v1
        v_min_u32 v{vT+8}, 13, v{vT+8}
        v_mad_u32_u24 v{vT+8}, s{S_T}, 14, v{vT+8}
        v_mul_u32_u24 v{vT+8}, 2688, v{vT+8}
        """)
        pf = [f"buffer_load_dword v{vT+9}, v{vT+8}, s[{S_W}:{S_W+3}], s34 offen"]
    else:
        pf = []
    kloop(False, {-1: pf, 3: [tagload]})
    a(f"s_waitcnt vmcnt({7 - QG[0]})")
    a("s_barrier")
    a("s_nop 9")
    for t in range(8):
        a(f"v_cvt_pk_bf16_f32 v{vD+t}, v{vAcc+2*t}, v{vAcc+2*t+1}")
    VST = optint("vst", 1)
    nv = 0
    for k in range(1, len(QG) + 1):
        if k == VST:
            for i in range(2):
                a(f"buffer_store_dwordx4 {vr(vD+4*i,4)}, v{vAd}, {WS}, s54 offen offset:{2048+1024*i} {SC}")
            for ins in vpad: a(ins)
            stamp(a, 2)
            nv = 4
        if k < len(QG):
            a(f"s_waitcnt vmcnt({nv + 7 - QG[k]})")
            a("s_barrier")
    a.label(Lpub)
    a("s_waitcnt vmcnt(0)")
    nonce_wait()
    a("s_barrier")
    stamp(a, 3)
    Lp, Lpd = a.newlabel("L_poll1"), a.newlabel("L_poll1d")
    Lh0, Lh1, Lh2 = a.newlabel("L_h"), a.newlabel("L_h"), a.newlabel("L_h")
    a(f"""
    buffer_store_dwordx2 {vr(vN,2)}, v{vF}, {WS}, s57 offen {SC}
    {"s_barrier" if "ocb" in OPT else ""}
    {oclear if "oc1" in OPT else ""}
    s_cmp_lg_u32 s{S_WV}, 7
    s_cbranch_scc1 {Lsync}
    ; workgroup = (th>>3) + (c == 3 ? th&4 : c&4) + 8*(th&7) + 64*(c&3)
    s_mul_i32 s34, s{S_HEAD}, 28
    s_add_u32 s35, s34, 27
    s_lshr_b32 s34, s34, 6
    s_lshr_b32 s35, s35, 6
    v_mov_b32 v{vT}, s34
    s_mov_b32 exec_lo, 0
    v_mov_b32 v{vT}, s35
    s_mov_b32 exec_lo, -1
    v_cmp_eq_u32 vcc, 3, v{vT}
    s_nop 1
    v_cndmask_b32 v{vT+1}, v{vT}, v1, vcc
    v_and_b32 v{vT+1}, 4, v{vT+1}
    v_and_b32 v{vT}, 3, v{vT}
    v_lshl_add_u32 v{vT}, v{vT}, 6, v{vT+1}
    v_bfe_u32 v{vT+1}, v1, 3, 2
    v_add_u32 v{vT}, v{vT}, v{vT+1}
    v_and_b32 v{vT+1}, 7, v1
    v_lshl_add_u32 v{vT}, v{vT+1}, 3, v{vT}
    v_lshlrev_b32 v{vT}, 7, v{vT}
    s_mov_b32 s35, 0
    s_cmp_lg_u32 s{S_C}, 7
    s_cbranch_scc1 {Lh1}
    ; spare workgroups first wait for a working neighbour's hint line, so that they do not touch the flag lines early
    s_xor_b32 s34, s2, 4
    s_lshl_b32 s34, s34, 7
    s_add_u32 s34, s34, {WS_F1+0x8000}
    {Lh0}:
    s_sleep 4
    buffer_load_dwordx2 {vr(240,2)}, v{vZ}, {WS}, s34 offen {SC}
    s_add_u32 s35, s35, 1
    s_waitcnt vmcnt(0)
    v_cmp_ne_u64 vcc, {vr(240,2)}, {vr(vN,2)}
    s_cmp_ge_u32 s35, {SPIN_MAX}
    s_cbranch_scc1 {Lh2}
    s_cmp_lg_u64 vcc, 0
    s_cbranch_scc1 {Lh0}
    s_branch {Lh2}
    {Lh1}:
    s_waitcnt vmcnt(0)
    s_sleep {optint("sl0", 10)}
    {Lh2}:
    """)
    PD = optint("pd", 1)
    SL1 = optint("sl1", 4)
    TSH = optint("tsh", 4)
    def pollissue(k):
        if "rep" in OPT:
            a(f"""
            s_memrealtime s[58:59]
            s_waitcnt lgkmcnt(0)
            s_bfe_u32 s34, s58, {0x20000 + TSH}
            s_lshl_b32 s34, s34, 15
            s_add_u32 s34, s34, {WS_F1}
            buffer_load_dwordx2 {vr(240+2*k,2)}, v{vT}, {WS}, s34 offen {SC}
            """)
        else:
            a(f"buffer_load_dwordx2 {vr(240+2*k,2)}, v{vT}, {WS}, s{S_FB} offen {SC}")
    for k in range(PD - 1):
        pollissue(k)
        a(f"s_sleep {SL1}")
    a.label(Lp)
    for k in range(PD):
        pollissue((k + PD - 1) % PD)
        a(f"""
        s_waitcnt vmcnt({PD-1})
        v_cmp_ne_u64 vcc, {vr(240+2*k,2)}, {vr(vN,2)}
        s_nop 0
        s_cmp_eq_u64 vcc, 0
        s_cbranch_scc1 {Lsync}
        s_sleep {SL1}
        """)
    a(f"""
    s_add_u32 s35, s35, 1
    s_cmp_lt_u32 s35, {SPIN_MAX}
    s_cbranch_scc1 {Lp}
    """)
    a.label(Lsync)
    vL, vL2, vIdx = 3, 4, 5
    vO = 82
    vS = [32, 48, 64]
    vK = [128, 136]
    vV = [144, 152, 160, 168]
    vQ = 98
    vX = 106
    vG3, vOOB, vP2 = 176, 177, 178
    sG, sM0 = 46, 47
    QX = 98304
    a(f"""
    s_lshl_b32 s34, s{S_HALF}, 5
    s_add_u32 s34, s34, s{S_T}
    s_lshl_b32 s34, s34, 12
    s_lshl_b32 s51, s{S_HEAD}, 18
    s_add_u32 s{sG}, s51, s34
    s_lshl_b32 s48, s{S_TILE}, 12
    s_add_u32 s48, s48, s51
    s_lshl_b32 s34, s{S_HALF}, 10
    s_add_u32 s48, s48, s34
    s_add_u32 s48, s48, {WS_Q}
    s_lshl_b32 s35, s{S_T}, 11
    s_add_u32 s34, s34, s35
    s_add_u32 m0, s34, {QX}
    s_lshl_b32 s{sM0}, s{S_WV}, 12
    s_lshl_b32 s34, s{S_HALF}, 12
    s_and_b32 s35, s{S_WV}, 1
    s_lshl_b32 s35, s35, 10
    s_add_u32 s34, s34, s35
    s_bfe_u32 s35, s{S_WV}, 0x10001
    s_lshl_b32 s50, s35, 14
    s_add_u32 s50, s50, s34
    s_lshl_b32 s35, s35, 17
    s_add_u32 s51, s51, s35
    s_add_u32 s51, s51, s34
    s_barrier
    """)
    stamp(a, 5)
    def load_q():
        a(f"buffer_load_dwordx4 {vr(vQ,4)}, v{vL16}, {WS}, s48 offen {SC}")
        a(f"buffer_load_dwordx4 {vr(vQ+4,4)}, v{vL16}, {WS}, s48 offen offset:1024 {SC}")
    def kvdma(piece):
        a(f"buffer_load_dwordx4 v{vL16}, {WS}, s{sG} offen offset:{piece*1024} {SC} lds")
    def maxchain(regs, t):
        regs = list(regs)
        a(f"v_max3_u32 v{t}, v{regs[0]}, v{regs[1]}, v{regs[2]}")
        rest = regs[3:]
        while len(rest) >= 2:
            a(f"v_max3_u32 v{t}, v{t}, v{rest[0]}, v{rest[1]}")
            rest = rest[2:]
        if rest:
            a(f"v_max_u32 v{t}, v{t}, v{rest[0]}")
    slowpaths = []
    def validate(regs, reload, t):
        Lr, Lb = a.newlabel("L_retry"), a.newlabel("L_back")
        maxchain(regs, t)
        a(f"v_cmp_eq_u32 vcc, -1, v{t}")
        a("s_nop 0")
        a("s_cmp_lg_u64 vcc, 0")
        a(f"s_cbranch_scc1 {Lr}")
        a.label(Lb)
        def emit():
            Ll = a.newlabel("L_rl")
            a.label(Lr)
            a("s_mov_b32 s35, 0")
            a.label(Ll)
            reload()
            a("s_add_u32 s35, s35, 1")
            a("s_waitcnt vmcnt(0)")
            maxchain(regs, t)
            a(f"v_cmp_eq_u32 vcc, -1, v{t}")
            a(f"s_cmp_ge_u32 s35, {SPIN_MAX}")
            a(f"s_cbranch_scc1 {Lb}")
            a("s_cmp_lg_u64 vcc, 0")
            a(f"s_cbranch_scc1 {Ll}")
            a(f"s_branch {Lb}")
        slowpaths.append(emit)
    a(f"""
    buffer_load_dwordx4 v{vL16}, {WS}, s48 offen {SC} lds
    s_mov_b32 m0, s50
    s_add_u32 s35, s51, 8192
    buffer_load_dwordx4 v{vL16}, {WS}, s51 offen {SC} lds
    s_barrier
    buffer_load_dwordx4 v{vL16}, {WS}, s51 offen offset:2048 {SC} lds
    s_add_u32 m0, s50, 8192
    s_nop 0
    buffer_load_dwordx4 v{vL16}, {WS}, s35 offen {SC} lds
    buffer_load_dwordx4 v{vL16}, {WS}, s35 offen offset:2048 {SC} lds
    """)
    def stage_dma(st):
        a(f"s_add_u32 m0, s{sM0}, {st*32768}")
        a(f"s_add_u32 s{sG}, s{sG}, 16384")
        for f in range(4): kvdma(f)
    NE = 0
    if optint("s1", 0) == 2:
        a(f"s_add_u32 m0, s{sM0}, 32768")
        a(f"s_add_u32 s{sG}, s{sG}, 16384")
        kvdma(0); kvdma(1)
    for st in range(1, 1 + NE):
        a("s_barrier")
        stage_dma(st)
    a(f"""
    s_lshl_b32 s34, s{S_HALF}, 14
    v_add_u32 v{vL}, s34, v{vL16}
    v_add_u32 v{vL2}, 0x10000, v{vL}
    v_mov_b32 v{vIdx}, 0xdddddddd
    ; wo DMA addresses (phase 3 prefetch)
    v_lshrrev_b32 v{vT}, 3, v0            ; 8w + r
    v_lshrrev_b32 v{vT+1}, 3, v1
    v_and_b32 v{vT+1}, 6, v{vT+1}
    v_and_b32 v{vT+2}, 7, v1
    v_xor_b32 v{vT+1}, v{vT+1}, v{vT+2}
    v_mul_u32_u24 v{vG3}, 896, v{vT}
    v_lshl_add_u32 v{vG3}, v{vT+1}, 4, v{vG3}
    v_mov_b32 v{vOOB}, {OOB}
    s_lshr_b32 s49, s2, 5
    s_min_u32 s49, s49, 6
    s_lshl_b32 s49, s49, 7                ; wo col block byte offset
    s_lshl_b32 s54, s{S_WV}, 10
    s_add_u32 s57, s57, {WS_F2-WS_F1}
    s_mov_b32 s{S_FB}, {WS_F2}
    ; phase 3 token half, and the flags of its O producers: workgroup = (head>>1) + 8*qb + 128*(head&1), head = 8*half + (l&7)
    s_and_b32 s34, s2, 7
    s_lshl_b32 s34, s34, 2
    s_bfe_u32 s35, s2, 0x20003
    s_add_u32 s{S_TH}, s34, s35
    s_lshr_b32 s34, s{S_TH}, 1
    s_lshl_b32 s34, s34, 3
    s_lshl_b32 s35, s{S_HALF}, 2
    s_add_u32 s34, s34, s35
    v_bfe_u32 v{vT}, v1, 1, 2
    v_add_u32 v{vT}, s34, v{vT}
    v_and_b32 v{vT+1}, 1, v1
    v_lshl_add_u32 v{vT}, v{vT+1}, 7, v{vT}
    v_lshlrev_b32 v{vP2}, 7, v{vT}
    """)
    for r in range(16):
        a(f"v_mov_b32 v{vO+r}, 0")
    a(f"s_lshl_b32 s34, s{S_T}, 11")
    a(f"s_add_u32 s34, s34, {QX}")
    a(f"v_add_u32 v{vX}, s34, v{vL16}")
    a(f"s_waitcnt vmcnt({5 if optint('s1', 0) == 2 else 3})")
    stamp(a, 6)
    a("s_barrier")
    stamp(a, 8)
    def ldsaddr(u, off):
        slot = (u // 4) % 3
        o = slot * 32768 + (u % 4) * 4096 + off
        return (vL, o) if o < 65536 else (vL2, o - 65536)
    def rd(dst, u, off):
        r, o = ldsaddr(u, off)
        a(f"ds_read_b128 {vr(dst,4)}, v{r} offset:{o}")
    def rdK(u, f): rd(vK[u % 2] + 4 * f, u, f * 1024)
    def rdV(u, f): rd(vV[u % 4] + 4 * f, u, 2048 + f * 1024)
    def QK(u, i, K=None):
        C = "0" if i == 0 else vr(vS[u % 3], 16)
        K = vK[u % 2] if K is None else K
        a(f"v_mfma_f32_32x32x16_bf16 {vr(vS[u%3],16)}, {vr(K+4*i,4)}, {vr(vQ+4*i,4)}, {C}")
    def PV(u, i):
        a(f"v_smfmac_f32_32x32x32_bf16 {vr(vO,16)}, {vr(vV[u%4]+4*i,4)}, {vr(vS[u%3]+8*i,8)}, v{vIdx}")
    def E(u, r0, r1):
        for r in range(r0, r1):
            a(f"v_exp_f32 v{vS[u%3]+r}, v{vS[u%3]+r}")
    a(f"""
    ds_read_b128 {vr(vQ,4)}, v{vX}
    ds_read_b128 {vr(vV[2],4)}, v{vL16}
    ds_read_b128 {vr(vQ+4,4)}, v{vX} offset:1024
    ds_read_b128 {vr(vV[2]+4,4)}, v{vL16} offset:1024
    """)
    rdK(0, 0); rdK(0, 1); rdK(1, 0); rdK(1, 1)
    a("s_waitcnt lgkmcnt(6)")
    QK(2, 0, vV[2])
    a("s_waitcnt lgkmcnt(4)")
    QK(2, 1, vV[2])
    a("s_waitcnt lgkmcnt(3)")
    QK(0, 0)
    S1 = optint("s1", 0)
    if S1 == 0:
        stage_dma(1)
        a("s_nop 3")
    elif S1 == 1:
        a("s_nop 9")
    else:
        kvdma(2); kvdma(3)
        a("s_nop 7")
    S = vS[2]
    a(f"v_max3_f32 v{vT}, v{S}, v{S+1}, v{S+2}")
    a(f"v_max3_f32 v{vT+1}, v{S+3}, v{S+4}, v{S+5}")
    for r in (6, 10):
        a(f"v_max3_f32 v{vT}, v{vT}, v{S+r}, v{S+r+1}")
        a(f"v_max3_f32 v{vT+1}, v{vT+1}, v{S+r+2}, v{S+r+3}")
    a(f"v_max3_f32 v{vT}, v{vT}, v{S+14}, v{S+15}")
    a(f"""
    v_max_f32 v{vT}, v{vT}, v{vT+1}
    v_mov_b32 v{vT+1}, v{vT}
    s_nop 1
    v_permlane32_swap_b32 v{vT}, v{vT+1}
    v_max_f32 v{vT}, v{vT}, v{vT+1}
    s_mov_b32 exec_lo, 0
    v_cvt_pk_bf16_f32 v{vQ+6}, -v{vT}, 0
    s_mov_b32 exec_lo, -1
    s_waitcnt lgkmcnt(0)
    """)
    QK(0, 1)
    if S1 == 1: stage_dma(1)
    a("s_waitcnt vmcnt(4)")
    a("s_barrier")
    rdV(0, 0); rdV(0, 1); rdV(1, 0); rdV(1, 1); rdK(2, 0); rdK(2, 1)
    a("s_nop 1")
    stamp(a, 9)
    F2AT, P2AT = optint("f2at", 28), optint("p2at", 31)
    OCAT = optint("ocat", 6)
    assert OCAT <= 16 and F2AT >= 25
    plan = {t: ([], []) for t in range(32)}
    plan[0] = ([(2, 0)], [(2, 1)]); plan[1] = ([(2, 2)], [(2, 3)])
    plan[2] = ([(3, 0)], [(3, 1)]); plan[3] = ([], [(3, 2)]); plan[4] = ([], [(3, 3)])
    for t in range(5, 21): plan[t] = ([], [((t - 1) // 4 + 3, (t - 1) % 4)])
    seq = [("s", 1)] * 4
    def vm(ins, tag):
        a(ins); seq.append(tag)
    def pieces(L):
        for st, p in L:
            kvdma(p); seq.append(("s", st))
    for t in range(32):
        first = [st for st, p in plan[t][0] + plan[t][1] if p == 0]
        if t + 1 < 32: QK(t + 1, 0)
        if first:
            a(f"s_add_u32 s{sG}, s{sG}, 16384")
        elif 21 <= t <= 27:
            a(f"s_add_u32 s34, s49, {(t-21)*57344}")
        if t + 2 < 32: rdV(t + 2, 0)
        E(t, 0, 4)
        if t + 1 < 32: QK(t + 1, 1)
        if first:
            a(f"s_add_u32 m0, s{sM0}, {(first[0] % 3) * 32768}")
        elif 21 <= t <= 28:
            a(f"s_add_u32 m0, s54, {98304 + (t-21)*8192}")
        if t + 2 < 32: rdV(t + 2, 1)
        E(t, 4, 8)
        if t >= 1: PV(t - 1, 1)
        if t % 4 == 1 and t <= 25:
            last = max(k for k, tg in enumerate(seq) if tg == ("s", (t + 3) // 4))
            a(f"s_waitcnt vmcnt({len(seq) - 1 - last}) lgkmcnt(0)")
            a("s_barrier")
        a(f"s_setprio {3 - ((t - 1) % 4) if t < 25 else 3 - (t - 25) // 2}")
        pieces(plan[t][0])
        if t + 3 < 32: rdK(t + 3, 0)
        E(t, 8, 12)
        if t == 0:
            a("s_waitcnt lgkmcnt(5)")
        PV(t, 0)
        a("s_waitcnt lgkmcnt(3)" if t + 3 < 32 else "s_waitcnt lgkmcnt(0)")
        pieces(plan[t][1])
        if 21 <= t <= 27:
            vm(f"buffer_load_dwordx4 v{vG3}, s[{S_WO}:{S_WO+3}], s34 offen lds", "wo")
        elif t == 28:
            vm(f"buffer_load_dwordx4 v{vOOB}, s[{S_WO}:{S_WO+3}], 0 offen lds", "wo")
        if t == P2AT:
            vm(f"buffer_load_dwordx2 {vr(vSen,2)}, v{vP2}, {WS}, s{S_FB} offen {SC}", "x")
        if t + 3 < 32:
            rdK(t + 3, 1)
        if t == OCAT and "oc1" not in OPT: vm(oclear, "x")
        if t == F2AT: vm(f"buffer_store_dwordx2 {vr(vN,2)}, v{vF}, {WS}, s57 offen {SC}", "x")
        E(t, 12, 16)
    NWO = len(seq) - 1 - max(k for k, tg in enumerate(seq) if tg == "wo")
    a("s_nop 1")
    PV(31, 1)
    stamp(a, 10)
    a.c("---- combine the two kv halves in slot 0 (stage 6 data is dead)")
    LB, LJ, Lslow, Lst = a.newlabel("L_halfB"), a.newlabel("L_join"), a.newlabel("L_slow"), a.newlabel("L_store")
    a(f"""
    s_mul_i32 s34, s{S_WV}, 2304
    s_xor_b32 s35, s{S_WV}, 4
    s_mul_i32 s35, s35, 2304
    v_add_u32 v{vT}, s34, v{vL16}
    v_add_u32 v{vT+1}, s35, v{vL16}
    v_lshl_add_u32 v{vT+2}, v1, 2, s34     ; own l word
    v_or_b32 v{vT+3}, 32, v1
    v_lshl_add_u32 v{vT+4}, v{vT+3}, 2, s35
    v_lshl_add_u32 v{vT+3}, v{vT+3}, 2, s34
    s_nop 0
    s_cmp_lg_u32 s{S_HALF}, 0
    s_cbranch_scc1 {LB}
    ds_write_b128 v{vT}, {vr(vO+8,4)}
    ds_write_b128 v{vT}, {vr(vO+12,4)} offset:1024
    ds_write_b32 v{vT+2}, v{vO+12} offset:2048
    s_branch {LJ}
    {LB}:
    ds_write_b128 v{vT}, {vr(vO,4)}
    ds_write_b128 v{vT}, {vr(vO+4,4)} offset:1024
    ds_write_b32 v{vT+2}, v{vO+12} offset:2048
    s_nop 1
    """)
    for r in range(8):
        a(f"v_mov_b32 v{vO+r}, v{vO+8+r}")
    a(f"""
    {LJ}:
    s_waitcnt vmcnt({NWO}) lgkmcnt(0)
    s_barrier
    {f"buffer_load_dwordx2 {vr(vSen+2,2)}, v{vP2}, {WS}, s{S_FB} offen {SC}" if "p2b" in OPT else ""}
    ds_read_b32 v{vX+8}, v{vT+3} offset:2048
    ds_read_b32 v{vX+9}, v{vT+4} offset:2048
    ds_read_b128 {vr(vX,4)}, v{vT+1}
    ds_read_b128 {vr(vX+4,4)}, v{vT+1} offset:1024
    s_waitcnt lgkmcnt(2)
    v_add_f32 v{vX+8}, v{vX+8}, v{vX+9}
    v_rcp_f32 v{vX+9}, v{vX+8}
    s_mov_b32 s34, 0x2b800000
    s_mov_b32 s35, 0x53800000
    s_waitcnt lgkmcnt(0)
    """)
    if "nopk" in OPT:
        for r in range(8):
            a(f"v_add_f32 v{vO+r}, v{vO+r}, v{vX+r}")
        for r in range(8):
            a(f"v_fmac_f32 v{vX+8}, 0, v{vO+r}")
    else:
        for r in range(0, 8, 2):
            a(f"v_pk_add_f32 {vr(vO+r,2)}, {vr(vO+r,2)}, {vr(vX+r,2)}")
        a(f"v_pk_mul_f32 {vr(vX+10,2)}, {vr(vO,2)}, 0")
        for r in range(2, 8, 2):
            a(f"v_pk_fma_f32 {vr(vX+10,2)}, {vr(vO+r,2)}, 0, {vr(vX+10,2)}")
        a(f"v_add_f32 v{vX+10}, v{vX+10}, v{vX+11}")
        a(f"v_add_f32 v{vX+8}, v{vX+8}, v{vX+10}")
    a(f"""
    v_cmp_nle_f32 vcc, s34, v{vX+8}
    v_cmp_nge_f32 s[58:59], s35, v{vX+8}
    s_nop 0
    s_or_b64 vcc, vcc, s[58:59]
    s_cbranch_scc1 {Lslow}
    {Lst}:
    s_mov_b32 s35, 0xfffffffe
    """)
    if "nopk" in OPT:
        for r in range(8):
            a(f"v_mul_f32 v{vO+r}, v{vO+r}, v{vX+9}")
    else:
        for r in range(0, 8, 2):
            a(f"v_pk_mul_f32 {vr(vO+r,2)}, {vr(vO+r,2)}, {vr(vX+8,2)} op_sel:[0,1] op_sel_hi:[1,1]")
    for t in range(4):
        a(f"v_cvt_pk_bf16_f32 v{vX+t}, v{vO+2*t}, v{vO+2*t+1}")
    for t in range(4):
        a(f"v_min_u32 v{vX+t}, s35, v{vX+t}")
    Lnz = a.newlabel("L_nz")
    a(f"""
    s_cmp_eq_u32 s{S_HALF}, 0
    s_cbranch_scc1 {Lnz}
    s_mov_b32 exec_lo, 0
    v_mov_b32 v{vX+2}, 0
    v_mov_b32 v{vX+3}, 0
    s_mov_b32 exec_lo, -1
    {Lnz}:
    buffer_store_dwordx4 {vr(vX,4)}, v{vL16}, {WS}, s{S_OA} offen {SC}
    s_cmp_ge_u32 s2, 224
    s_cbranch_scc1 {"L_fin" if STAMPS else done}
    """)
    stamp(a, 11)
    vOg = 3
    vA = 8
    vAc3 = 32
    vOf = 48
    vWo = 128
    WOB_L = 98304
    a(f"""
    v_mov_b32 v2, v{vP2}
    v_lshrrev_b32 v{vT}, 4, v1            ; g
    v_and_b32 v{vT+1}, 15, v1
    v_bfe_u32 v{vT+2}, v1, 2, 2           ; r'
    v_bfe_u32 v{vT+3}, v1, 4, 1           ; g&1
    v_lshrrev_b32 v{vT+4}, 5, v1          ; g>>1
    v_lshl_add_u32 v{vT+5}, v{vT+3}, 2, v{vT+2}
    v_lshl_add_u32 v{vT+5}, v{vT+4}, 4, v{vT+5}   ; row
    v_lshrrev_b32 v{vT+6}, 1, v{vT+2}
    v_lshl_add_u32 v{vT+6}, v{vT+3}, 1, v{vT+6}   ; s0
    v_lshlrev_b32 v{vT+6}, 5, v{vT+6}
    v_lshl_add_u32 v{vT+5}, v{vT+5}, 7, v{vT+6}
    v_and_b32 v{vT+6}, 3, v1
    v_lshl_add_u32 v{vT+5}, v{vT+6}, 3, v{vT+5}
    s_mul_i32 s34, s{S_HALF}, {8*28*128}
    s_add_u32 s34, s34, {WOB_L}
    v_add_u32 v{vA}, s34, v{vT+5}
    v_xor_b32 v{vA+1}, 32, v{vA}
    v_xor_b32 v{vA+2}, 64, v{vA}
    v_xor_b32 v{vA+3}, 0x60, v{vA}
    """)
    def wr(hh):
        for ct in range(4):
            for u in range(2):
                a(f"ds_read_b64_tr_b16 {vr(vWo+16*hh+4*ct+2*u,2)}, v{vA+(ct^(2*(hh&1)))} offset:{(28*hh+8*u)*128}")
    NW1 = optint("nw1", 4)
    for hh in range(NW1):
        wr(hh)
        a("s_waitcnt lgkmcnt(4)")
    XB3 = 20480
    Lf2r, Lf2b = a.newlabel("L_f2r"), a.newlabel("L_f2b")
    a(f"""
    v_lshlrev_b32 v{vOg}, 9, v{vT}
    v_lshl_add_u32 v{vOg}, v{vT+1}, 4, v{vOg}
    s_lshl_b32 s34, s{S_TH}, 1
    s_lshr_b32 s35, s{S_T}, 1
    s_add_u32 s34, s34, s35
    s_lshl_b32 s34, s34, 15
    s_lshl_b32 s35, s{S_HALF}, 14
    s_add_u32 s48, s34, s35
    s_and_b32 s34, s{S_T}, 1
    s_lshl_b32 s34, s34, 8
    s_add_u32 s48, s48, s34
    s_add_u32 s48, s48, {WS_O}
    s_add_u32 s46, s48, 4096
    s_add_u32 s47, s48, 8192
    s_add_u32 s51, s48, 12288
    v_and_b32 v{vT+4}, 3, v1
    v_lshlrev_b32 v{vT+5}, 1, v1
    v_and_b32 v{vT+5}, 8, v{vT+5}
    v_lshrrev_b32 v{vT+6}, 1, v1
    v_and_b32 v{vT+6}, 4, v{vT+6}
    v_or3_b32 v{vT+4}, v{vT+4}, v{vT+5}, v{vT+6}
    v_mul_u32_u24 v{vT+4}, 272, v{vT+4}
    v_lshl_add_u32 v{vT+4}, v{vT}, 4, v{vT+4}
    s_mul_i32 s34, s{S_WV}, 4352
    v_add_u32 v{vT+2}, s34, v{vT+4}
    v_lshrrev_b32 v{vT+5}, 3, v0
    v_and_b32 v{vT+6}, 7, v0
    v_mul_u32_u24 v{vT+3}, 272, v{vT+5}
    v_lshl_add_u32 v{vT+3}, v{vT+6}, 5, v{vT+3}
    v_mul_u32_u24 v{vT+4}, 896, v{vT+5}
    v_lshl_add_u32 v{vT+4}, v{vT+6}, 4, v{vT+4}
    s_mul_i32 s50, s{S_TH}, 57344
    s_add_u32 s50, s50, s49
    s_waitcnt vmcnt({2 if "p2b" in OPT else 1})
    v_cmp_ne_u64 vcc, {vr(vSen,2)}, {vr(vN,2)}
    s_nop 0
    s_cmp_lg_u64 vcc, 0
    s_cbranch_scc1 {Lf2r}
    {Lf2b}:
    s_mov_b32 s35, 0
    """)
    def f2retry():
        Ll = a.newlabel("L_f2l")
        P2B = f"s_waitcnt vmcnt(1)\nv_cmp_ne_u64 vcc, {vr(vSen+2,2)}, {vr(vN,2)}\ns_nop 0\ns_cmp_eq_u64 vcc, 0\ns_cbranch_scc1 {Lf2b}" if "p2b" in OPT else ""
        a(f"""
        {Lf2r}:
        s_mov_b32 s35, 0
        {P2B}
        {Ll}:
        s_sleep {optint("sl2", 2)}
        buffer_load_dwordx2 {vr(vSen,2)}, v2, {WS}, s{S_FB} offen {SC}
        s_add_u32 s35, s35, 1
        s_waitcnt vmcnt(0)
        v_cmp_ne_u64 vcc, {vr(vSen,2)}, {vr(vN,2)}
        s_cmp_ge_u32 s35, {SPIN_MAX}
        s_cbranch_scc1 {Lf2b}
        s_cmp_lg_u64 vcc, 0
        s_cbranch_scc1 {Ll}
        s_branch {Lf2b}
        """)
    slowpaths.append(f2retry)
    stamp(a, 12)
    def oload(hh):
        so = ["s48", "s46", "s47", "s51"][hh // 2]
        a(f"buffer_load_dwordx4 {vr(vOf+4*hh,4)}, v{vOg}, {WS}, {so} offen offset:{(hh%2)*2048} {SC}")
    def ocheck(hh, first):
        o4 = vOf + 4 * hh
        Lacc, Lskip = a.newlabel("L_oa"), a.newlabel("L_os")
        if not first:
            a(f"s_bitcmp0_b32 s34, {hh}")
            a(f"s_cbranch_scc1 {Lskip}")
            a(f"s_bitcmp0_b32 s56, {hh}")
            a(f"s_cbranch_scc1 {Lacc}")
        a(f"""
        v_max3_u32 v{vT+5}, v{o4}, v{o4+1}, v{o4+2}
        v_max_u32 v{vT+5}, v{vT+5}, v{o4+3}
        v_cmp_eq_u32 vcc, -1, v{vT+5}
        s_nop 0
        s_cmp_lg_u64 vcc, 0
        s_cbranch_scc1 {Lskip}
        s_bitset0_b32 s56, {hh}
        {Lacc}:
        """)
        if hh:
            a(f"s_and_b32 s58, s56, {(1 << hh) - 1}")
            a(f"s_cbranch_scc1 {Lskip}")
        a(f"s_bitset0_b32 s34, {hh}")
        for ct in range(4):
            C = "0" if hh == 0 else vr(vAc3 + 4 * ct, 4)
            a(f"v_mfma_f32_16x16x32_bf16 {vr(vAc3+4*ct,4)}, {vr(vWo+16*hh+4*ct,4)}, {vr(vOf+4*hh,4)}, {C}")
        a.label(Lskip)
    for hh in range(8): oload(hh)
    for hh in range(NW1, 8):
        wr(hh)
        a("s_waitcnt lgkmcnt(4)")
    Lo, Lo2, Lod = a.newlabel("L_o"), a.newlabel("L_o2"), a.newlabel("L_od")
    a(f"s_branch {Lo2}")
    a.label(Lo)
    for hh in range(8): oload(hh)
    a.label(Lo2)
    for hh in range(8):
        a(f"s_waitcnt vmcnt({7-hh}) lgkmcnt(0)")
        for ct in range(4):
            C = "0" if hh == 0 else vr(vAc3 + 4 * ct, 4)
            a(f"v_mfma_f32_16x16x32_bf16 {vr(vAc3+4*ct,4)}, {vr(vWo+16*hh+4*ct,4)}, {vr(vOf+4*hh,4)}, {C}")
        o4 = vOf + 4 * hh
        if hh == 0:
            a(f"v_max3_u32 v{vT+5}, v{o4}, v{o4+1}, v{o4+2}")
            a(f"v_max_u32 v{vT+5}, v{vT+5}, v{o4+3}")
        else:
            a(f"v_max3_u32 v{vT+5}, v{vT+5}, v{o4}, v{o4+1}")
            a(f"v_max3_u32 v{vT+5}, v{vT+5}, v{o4+2}, v{o4+3}")
    a(f"""
    v_cmp_eq_u32 vcc, -1, v{vT+5}
    s_add_u32 s35, s35, 1
    s_cmp_ge_u32 s35, {SPIN_MAX}
    s_cbranch_scc1 {Lod}
    s_cmp_lg_u64 vcc, 0
    s_cbranch_scc1 {Lo}
    {Lod}:
    """)
    stamp(a, 13)
    if STAMPS: a("s_mov_b32 s94, s35")
    a("s_nop 1")
    for ct in range(4):
        a(f"ds_write_b128 v{vT+2}, {vr(vAc3+4*ct,4)} offset:{XB3+64*ct}")
    a(f"""
    s_waitcnt lgkmcnt(0)
    s_barrier
    ds_read_b128 {vr(vX,4)}, v{vT+3} offset:{XB3}
    ds_read_b128 {vr(vX+8,4)}, v{vT+3} offset:{XB3+17408}
    ds_read_b128 {vr(vX+4,4)}, v{vT+3} offset:{XB3+16}
    ds_read_b128 {vr(vX+12,4)}, v{vT+3} offset:{XB3+17408+16}
    s_waitcnt lgkmcnt(2)
    """)
    for r in range(4):
        a(f"v_add_f32 v{vX+r}, v{vX+r}, v{vX+8+r}")
    a("s_waitcnt lgkmcnt(0)")
    for r in range(4, 8):
        a(f"v_add_f32 v{vX+r}, v{vX+r}, v{vX+8+r}")
    for t in range(4):
        a(f"v_cvt_pk_bf16_f32 v{vX+8+t}, v{vX+2*t}, v{vX+2*t+1}")
    a(f"buffer_store_dwordx4 {vr(vX+8,4)}, v{vT+4}, s[{S_OUT}:{S_OUT+3}], s50 offen {OSC}")
    if STAMPS:
        a("s_waitcnt vmcnt(0)")
        stamp(a, 14)
        a.label("L_fin")
        a("s_memrealtime s[96:97]")
        a("s_waitcnt lgkmcnt(0)")
        for i in range(15):
            a(f"v_mov_b32 v{8+i}, s{64+2*i}")
        if "cyc" in OPT: a("s_sub_u32 s94, s44, s42")
        a("v_mov_b32 v23, s94")
        a("v_mov_b32 v24, s98")
        a("v_mov_b32 v25, s96")
        a("v_mov_b32 v26, 0")
        a("v_mov_b32 v27, 0")
        a(f"""
        s_lshl_b32 s34, s2, 3
        s_add_u32 s34, s34, s{S_WV}
        s_lshl_b32 s34, s34, 7
        s_add_u32 s34, s34, {WS_ST}
        s_mov_b64 exec, 1
        buffer_store_dwordx4 v[8:11], v{vZ}, {WS}, s34 offen
        buffer_store_dwordx4 v[12:15], v{vZ}, {WS}, s34 offen offset:16
        buffer_store_dwordx4 v[16:19], v{vZ}, {WS}, s34 offen offset:32
        buffer_store_dwordx4 v[20:23], v{vZ}, {WS}, s34 offen offset:48
        buffer_store_dwordx4 v[24:27], v{vZ}, {WS}, s34 offen offset:64
        """)
    a.label(done)
    a("s_endpgm")
    for e in slowpaths: e()
    a.label(Lspare)
    a(f"""
    s_cmp_lg_u32 s2, 196
    s_cbranch_scc1 {Lnn}
    ; one spare workgroup publishes this launch's hand-off tag in d_debug
    s_or_b32 s62, s62, 1
    v_mov_b32 v{vN}, s62
    v_mov_b32 v{vN+1}, s63
    buffer_store_dwordx2 {vr(vN,2)}, v{vF}, {DBG}, 0 offen {SC}
    s_waitcnt vmcnt(0)
    v_lshlrev_b32 v{vT+10}, 7, v0
    {f"buffer_load_dword v{vT+11}, v{vT+10}, {WS}, s{S_FB} offen sc0 sc1 nt" if "fwarm" in OPT else ""}
    {Lnn}:
    {tagload}
    s_branch {Lpub}
    """)
    a.label(Lslow)
    L1, L2, Lh = a.newlabel("L_s1"), a.newlabel("L_s2"), a.newlabel("L_sh")
    sCnt = 48
    a(f"""
    s_mov_b32 exec_lo, 0
    v_mov_b32 v{vQ+6}, 0
    v_mov_b32 v{vQ+7}, 0
    s_mov_b32 exec_lo, -1
    v_mov_b32 v{vT}, 0xff800000
    s_lshl_b32 s{sG}, s{S_HEAD}, 18
    s_mov_b32 s{sCnt}, 0
    {L1}:
    buffer_load_dwordx4 {vr(vK[0],4)}, v{vL16}, {WS}, s{sG} offen {SC}
    buffer_load_dwordx4 {vr(vK[0]+4,4)}, v{vL16}, {WS}, s{sG} offen offset:1024 {SC}
    s_waitcnt vmcnt(0)
    """)
    QK(0, 0); QK(0, 1)
    a("s_nop 15")
    for r in range(0, 16, 2):
        a(f"v_max3_f32 v{vT}, v{vT}, v{vS[0]+r}, v{vS[0]+r+1}")
    a(f"""
    s_add_u32 s{sG}, s{sG}, 4096
    s_add_u32 s{sCnt}, s{sCnt}, 1
    s_cmp_lt_u32 s{sCnt}, 64
    s_cbranch_scc1 {L1}
    v_mov_b32 v{vT+1}, v{vT}
    s_nop 1
    v_permlane32_swap_b32 v{vT}, v{vT+1}
    s_nop 1
    v_max_f32 v{vT}, v{vT}, v{vT+1}
    v_and_b32 v{vT+1}, 0xffff0000, v{vT}       ; hi
    v_sub_f32 v{vT+2}, v{vT}, v{vT+1}
    v_and_b32 v{vT+3}, 0xffff0000, v{vT+2}     ; mid
    v_sub_f32 v{vT+2}, v{vT+2}, v{vT+3}        ; lo
    s_mov_b32 exec_lo, 0
    v_cvt_pk_bf16_f32 v{vQ+6}, -v{vT+1}, -v{vT+3}
    v_cvt_pk_bf16_f32 v{vQ+7}, -v{vT+2}, 0
    s_mov_b32 exec_lo, -1
    """)
    for r in range(16):
        a(f"v_mov_b32 v{vO+r}, 0")
    a(f"""
    s_lshl_b32 s{sG}, s{S_HEAD}, 18
    s_mov_b32 s{sCnt}, 0
    {L2}:
    buffer_load_dwordx4 {vr(vK[0],4)}, v{vL16}, {WS}, s{sG} offen {SC}
    buffer_load_dwordx4 {vr(vK[0]+4,4)}, v{vL16}, {WS}, s{sG} offen offset:1024 {SC}
    buffer_load_dwordx4 {vr(vV[0],4)}, v{vL16}, {WS}, s{sG} offen offset:2048 {SC}
    buffer_load_dwordx4 {vr(vV[0]+4,4)}, v{vL16}, {WS}, s{sG} offen offset:3072 {SC}
    s_waitcnt vmcnt(0)
    """)
    QK(0, 0); QK(0, 1)
    a("s_nop 15")
    E(0, 0, 16)
    a("s_nop 1")
    PV(0, 0); PV(0, 1)
    a(f"""
    s_nop 7
    s_add_u32 s{sG}, s{sG}, 4096
    s_add_u32 s{sCnt}, s{sCnt}, 1
    s_cmp_lt_u32 s{sCnt}, 64
    s_cbranch_scc1 {L2}
    s_nop 15
    v_mov_b32 v{vX+8}, v{vO+12}
    v_mov_b32 v{vX+9}, v{vO+12}
    s_nop 1
    v_permlane32_swap_b32 v{vX+8}, v{vX+9}
    s_nop 1
    v_rcp_f32 v{vX+9}, v{vX+9}
    s_cmp_eq_u32 s{S_HALF}, 0
    s_cbranch_scc1 {Lh}
    """)
    for r in range(8):
        a(f"v_mov_b32 v{vO+r}, v{vO+8+r}")
    a(f"""
    {Lh}:
    s_nop 1
    s_branch {Lst}
    """)
    a.label("L_end")
    a.raw('.section .rodata,"a"')
    a.raw(".p2align 6")
    a.raw(kernel_desc(NAME, 256, 102).rstrip("\n"))
    return a.text()

if __name__ == "__main__":
    out = sys.argv[1] if len(sys.argv) > 1 else "standalone__softmax_full_mha__prompt.s"
    OPT.update(sys.argv[2:])
    STAMPS = "stamps" in OPT
    open(out, "w").write(build())
```

```python
import sys, struct, math
from asmlib import *

WS_KV = 0
WS_Q = 0x400000
WS_O = 0x800000
WS_F1 = 0xa00000
WS_F2 = 0xa40000
WS_ST = 0xc00000
WS_BYTES = 0xd00000
OOB = 0x40000000
XB, WB, WOB, OUTB = 1835008, 1204224, 401408, 1835008
QSCALE = struct.unpack("<I", struct.pack("<f", math.log2(math.e) / math.sqrt(28.0)))[0]
SPIN_MAX = 1 << 18

S_X, S_W, S_WS, S_WO, S_OUT, S_DBG = 8, 12, 16, 20, 24, 4
S_QB, S_WV, S_HEAD, S_ROT = 28, 31, 32, 33
S_TH, S_TILE, S_C, S_HALF, S_T = 52, 53, 55, 60, 61
S_M0 = 36
S_OA, S_FB = 40, 41
SC = "sc1"
OPT = set()
STAMPS = False
NAME = "standalone__softmax_full_mha__prompt_kernel"
WS = f"s[{S_WS}:{S_WS+3}]"
DBG = f"s[{S_DBG}:{S_DBG+3}]"

def stamp(a, i):
    if STAMPS:
        a(f"s_memrealtime s[{64+2*i}:{65+2*i}]")

def optint(name, default):
    for o in OPT:
        if o.startswith(name + "="):
            return int(o.split("=")[1])
    return default

def build():
    a = Asm()
    HEADER = open("standalone__softmax_full_mha__prompt.s.ref").read().split("; Override launch")[0]
    a.raw(HEADER.rstrip("\n"))
    a.raw("; @launch grid=(256,1,1) block=(512,1,1) lds=163840")
    a.raw('.amdgcn_target "amdgcn-amd-amdhsa--gfx950"\n.text')
    a.raw(f".globl {NAME}\n.p2align 8\n.type {NAME},@function\n{NAME}:")
    if STAMPS:
        a("s_memrealtime s[98:99]")
    done = "L_done"
    OSC = "sc0 sc1" if "oplain" not in OPT else ""
    vXg, vWg = 2, 3
    vWa = 4
    vF = 6
    vZ = 7
    vXa = 8
    vT = 16
    vAcc = 32
    vWf = 48
    vD = 64
    vAd = 76
    vN = 80
    vWqa = 122
    vL16 = 123
    vSen = 124
    vXf = 128
    sC, sXo, sWo, sCol, sM, sXbase = 46, 47, 48, 49, 50, 51
    SLOT = 24576
    WQB = 98304
    Lspare, Lsync = a.newlabel("L_spare"), a.newlabel("L_sync1")
    if "rep" not in OPT and "nofull" not in OPT:
        VFSET = f"""v_lshrrev_b32 v{vT+1}, 5, v0
        v_and_b32 v{vT+2}, 15, v1
        v_lshlrev_b32 v{vT+2}, 3, v{vT+2}
        v_and_b32 v{vT+3}, 16, v1
        v_lshl_add_u32 v{vT+2}, v{vT+3}, 11, v{vT+2}
        v_cmp_eq_u32 vcc, 14, v{vT+1}"""
    elif "rep" in OPT:
        VFSET = f"""v_lshrrev_b32 v{vT+1}, 6, v0
        v_and_b32 v{vT+2}, 15, v1
        v_lshlrev_b32 v{vT+2}, 3, v{vT+2}
        v_and_b32 v{vT+3}, 48, v1
        v_lshl_add_u32 v{vT+2}, v{vT+3}, 11, v{vT+2}
        v_cmp_eq_u32 vcc, 7, v{vT+1}"""
    else:
        VFSET = f"""v_lshrrev_b32 v{vT+1}, 1, v0
        v_lshlrev_b32 v{vT+2}, 15, v1
        v_cmp_eq_u32 vcc, 0xe0, v{vT+1}"""
    a(f"""
    s_cmp_ge_u32 s2, 256
    s_cbranch_scc1 {done}
    s_load_dwordx4 s[36:39], s[0:1], 0
    s_load_dwordx4 s[40:43], s[0:1], 16
    s_load_dwordx4 {DBG}, s[0:1], 32
    s_memrealtime s[62:63]
    v_lshrrev_b32 v{vT}, 6, v0
    v_and_b32 v1, 63, v0
    s_and_b32 s34, s2, 3                  ; tg
    s_bfe_u32 s35, s2, 0x30003            ; r5 & 7
    v_readfirstlane_b32 s{S_WV}, v{vT}
    s_lshl_b32 s{S_TH}, s34, 3
    s_add_u32 s{S_TH}, s{S_TH}, s35
    s_lshr_b32 s{S_C}, s2, 6              ; cl
    s_lshl_b32 s{sC}, s{S_C}, 1
    s_add_u32 s{sC}, s{sC}, s35
    s_cmp_ge_u32 s{sC}, 7
    s_cselect_b32 s35, 7, 0
    s_sub_u32 s{sC}, s{sC}, s35
    s_and_b32 s35, s2, 4
    s_lshr_b32 s34, s2, 3
    s_xor_b32 s34, s34, s2
    s_and_b32 s34, s34, 4
    s_cmp_eq_u32 s{S_C}, 3
    s_cselect_b32 s35, s34, s35
    s_add_u32 s{S_C}, s{S_C}, s35
    s_mov_b32 s{S_X+2}, {XB}
    s_mov_b32 s{S_X+3}, 0x00020000
    s_mov_b32 s{S_W+2}, {WB}
    s_mov_b32 s{S_W+3}, 0x00020000
    s_cmp_lg_u32 s{S_C}, 7
    s_cbranch_scc1 L_work
    ; spare workgroup: pull the kernel's own code into this XCD's L2
    s_getpc_b64 s[44:45]
    L_pc:
    s_sub_u32 s44, s44, L_pc-{NAME}
    s_subb_u32 s45, s45, 0
    s_mov_b32 s46, L_end-{NAME}
    s_mov_b32 s47, 0x00020000
    v_lshlrev_b32 v{vT+10}, 7, v0
    buffer_load_dword v{vT+11}, v{vT+10}, s[44:47], 0 offen
    s_and_b32 s34, s{S_TH}, 3
    s_and_b32 s35, s2, 4
    s_cmp_eq_u32 s34, 3
    s_cselect_b32 s35, 0, s35
    s_add_u32 s34, s34, s35
    s_lshl_b32 s34, s34, 7
    v_mul_u32_u24 v{vT+10}, 2688, v0
    s_waitcnt lgkmcnt(0)
    s_mov_b32 s{S_W}, s38
    s_mov_b32 s{S_W+1}, s39
    {"" if "wqown" in OPT else f"buffer_load_dword v{vT+11}, v{vT+10}, s[{S_W}:{S_W+3}], s34 offen"}
    s_branch L_sp1
    L_work:
    v_lshrrev_b32 v{vT+2}, 3, v0          ; 8w + r
    v_and_b32 v{vT+1}, 7, v1              ; pos
    v_bfe_u32 v{vT+3}, v0, 4, 3           ; swz = ((8w+r)>>1)&7
    v_xor_b32 v{vT+3}, v{vT+3}, v{vT+1}
    v_mul_u32_u24 v{vXg}, 896, v{vT+2}
    v_lshl_add_u32 v{vXg}, v{vT+3}, 4, v{vXg}
    v_lshrrev_b32 v{vT+3}, 2, v1
    v_and_b32 v{vT+3}, 4, v{vT+3}         ; ((r>>1)&1)*4
    v_xor_b32 v{vT+3}, v{vT+3}, v{vT+1}
    v_mul_u32_u24 v{vWg}, 2688, v{vT+2}
    v_lshl_add_u32 v{vWg}, v{vT+3}, 4, v{vWg}
    s_mul_i32 s{sXbase}, s{S_TH}, 57344
    s_lshl_b32 s{sCol}, s{S_C}, 7
    s_lshl_b32 s{sM}, s{S_WV}, 10
    s_waitcnt lgkmcnt(0)
    s_mov_b32 s{S_X}, s36
    s_mov_b32 s{S_X+1}, s37
    s_mov_b32 s{S_W}, s38
    s_mov_b32 s{S_W+1}, s39
    """)
    def adv():
        a(f"""
        s_add_u32 s{sC}, s{sC}, 1
        s_cmp_eq_u32 s{sC}, 7
        s_cselect_b32 s{sC}, 0, s{sC}
        """)
    def issue_chunk(i):
        sl = (i % 4) * SLOT
        a(f"""
        s_lshl_b32 s{sXo}, s{sC}, 7
        s_add_u32 s{sXo}, s{sXo}, s{sXbase}
        s_add_u32 m0, s{sM}, {sl}
        s_mul_i32 s{sWo}, s{sC}, 172032
        buffer_load_dwordx4 v{vXg}, s[{S_X}:{S_X+3}], s{sXo} offen lds
        s_add_u32 m0, s{sM}, {sl+8192-896}
        s_add_u32 s{sWo}, s{sWo}, s{sCol}
        buffer_load_dwordx4 v{vWg}, s[{S_W}:{S_W+3}], s{sWo} offen offset:896 lds
        s_add_u32 m0, s{sM}, {sl+16384-1792}
        s_add_u32 s{sC}, s{sC}, 1
        buffer_load_dwordx4 v{vWg}, s[{S_W}:{S_W+3}], s{sWo} offen offset:1792 lds
        s_cmp_eq_u32 s{sC}, 7
        s_cselect_b32 s{sC}, 0, s{sC}
        """)
    def issue_wq(i):
        a(f"""
        s_mul_i32 s{sWo}, s{sC}, 172032
        s_add_u32 m0, s{sM}, {WQB+i*8192}
        s_add_u32 s{sWo}, s{sWo}, s{sCol}
        buffer_load_dwordx4 v{vWg}, s[{S_W}:{S_W+3}], s{sWo} offen lds
        """)
        adv()
    def issue_chunk2(i):
        sl = (i % 4) * SLOT
        a(f"""
        s_lshl_b32 s{sXo}, s{sC}, 7
        s_add_u32 s{sXo}, s{sXo}, s{sXbase}
        s_add_u32 m0, s{sM}, {sl}
        s_mul_i32 s{sWo}, s{sC}, 172032
        buffer_load_dwordx4 v{vXg}, s[{S_X}:{S_X+3}], s{sXo} offen lds
        s_add_u32 m0, s{sM}, {(sl-4096) & 0xffffffff}
        s_add_u32 s{sWo}, s{sWo}, s{sCol}
        buffer_load_dwordx4 v{vXg2}, s[{S_X}:{S_X+3}], s{sXo} offen lds
        s_add_u32 m0, s{sM}, {sl+8192-896}
        s_add_u32 s{sC}, s{sC}, 1
        buffer_load_dwordx4 v{vWg}, s[{S_W}:{S_W+3}], s{sWo} offen offset:896 lds
        s_add_u32 m0, s{sM}, {sl+4096-896}
        s_nop 0
        buffer_load_dwordx4 v{vWg2}, s[{S_W}:{S_W+3}], s{sWo} offen offset:896 lds
        s_add_u32 m0, s{sM}, {sl+16384-1792}
        s_nop 0
        buffer_load_dwordx4 v{vWg}, s[{S_W}:{S_W+3}], s{sWo} offen offset:1792 lds
        s_add_u32 m0, s{sM}, {sl+12288-1792}
        s_cmp_eq_u32 s{sC}, 7
        buffer_load_dwordx4 v{vWg2}, s[{S_W}:{S_W+3}], s{sWo} offen offset:1792 lds
        s_cselect_b32 s{sC}, 0, s{sC}
        """)
    def issue_wq2(i):
        a(f"""
        s_mul_i32 s{sWo}, s{sC}, 172032
        s_add_u32 m0, s{sM}, {WQB+i*8192}
        s_add_u32 s{sWo}, s{sWo}, s{sCol}
        buffer_load_dwordx4 v{vWg}, s[{S_W}:{S_W+3}], s{sWo} offen lds
        s_add_u32 m0, s{sM}, {WQB+i*8192-4096}
        s_add_u32 s{sC}, s{sC}, 1
        buffer_load_dwordx4 v{vWg2}, s[{S_W}:{S_W+3}], s{sWo} offen lds
        s_cmp_eq_u32 s{sC}, 7
        s_cselect_b32 s{sC}, 0, s{sC}
        """)
    vXg2, vWg2 = 240, 241
    SPLIT = False
    Lsp1, Lnn = "L_sp1", a.newlabel("L_nonon")
    stamp(a, 0)
    PRE = optint("pre", 2)
    EARLY = False
    for i in range(PRE): issue_chunk(i)
    a(f"""
    {Lsp1}:
    s_mov_b32 s{S_WS}, s{S_DBG+2}
    s_mov_b32 s{S_WS+1}, s{S_DBG+3}
    s_mov_b32 s{S_DBG+2}, 256
    s_mov_b32 s{S_DBG+3}, 0x00020000
    s_mov_b32 s{S_WS+2}, {WS_BYTES}
    s_mov_b32 s{S_WS+3}, 0x00020000
    s_mov_b32 s{S_WO}, s40
    s_mov_b32 s{S_WO+1}, s41
    s_mov_b32 s{S_OUT}, s42
    s_mov_b32 s{S_OUT+1}, s43
    s_mov_b32 s{S_WO+2}, {WOB}
    s_mov_b32 s{S_WO+3}, 0x00020000
    s_mov_b32 s{S_OUT+2}, {OUTB}
    s_mov_b32 s{S_OUT+3}, 0x00020000
    v_mov_b32 v{vZ}, 0
    s_bfe_u32 s{S_QB}, s2, 0x40003
    s_and_b32 s34, s2, 7
    s_lshl_b32 s34, s34, 1
    s_lshr_b32 s35, s2, 7
    s_add_u32 s{S_HEAD}, s34, s35         ;          head = 2*(b&7) + (b>>7)
    s_and_b32 s{S_T}, s{S_WV}, 3
    s_lshr_b32 s{S_HALF}, s{S_WV}, 2
    s_lshl_b32 s34, s{S_QB}, 2
    s_add_u32 s{S_TILE}, s34, s{S_T}
    s_lshl_b32 s34, s{S_TILE}, 15
    s_lshl_b32 s35, s{S_HEAD}, 11
    s_add_u32 s{S_OA}, s34, s35
    s_lshl_b32 s34, s{S_HALF}, 10
    s_add_u32 s{S_OA}, s{S_OA}, s34
    s_add_u32 s{S_OA}, s{S_OA}, {WS_O}
    s_mov_b32 s{S_FB}, {WS_F1}
    s_lshl_b32 s57, s2, 7
    s_add_u32 s57, s57, {WS_F1}
    v_lshlrev_b32 v{vL16}, 4, v1
    v_mov_b32 v{vT}, {OOB}
    {VFSET}
    v_mov_b32 v{vSen}, -1
    v_mov_b32 v{vSen+1}, -1
    v_mov_b32 v{vSen+2}, -1
    v_mov_b32 v{vSen+3}, -1
    v_cndmask_b32 v{vF}, v{vT}, v{vT+2}, vcc
    s_cmp_eq_u32 s{S_C}, 7
    s_cbranch_scc1 {Lspare}
    v_and_b32 v{vT}, 31, v1               ; tok
    v_lshrrev_b32 v{vT+1}, 5, v1          ; h
    s_bfe_u32 s56, s{S_WV}, 0x10001       ; Ct = (w>>1)&1
    s_lshl_b32 s34, s{S_C}, 1
    s_add_u32 s58, s56, s34               ; Ctg (0..13)
    s_and_b32 s34, s{S_WV}, 1
    s_lshl_b32 s34, s34, 12
    s_lshl_b32 s54, s{S_TH}, 13
    s_add_u32 s54, s54, s34               ; tile * 4096
    v_bfe_u32 v{vT+2}, v1, 1, 3
    v_xor_b32 v{vT+2}, v{vT+2}, v{vT+1}   ; h ^ swz
    v_lshlrev_b32 v{vT+3}, 7, v{vT}       ; tok*128
    v_lshl_add_u32 v{vT+2}, v{vT+2}, 4, v{vT+3}
    v_add_u32 v{vXa}, s34, v{vT+2}
    v_xor_b32 v{vXa+1}, 32, v{vXa}
    v_xor_b32 v{vXa+2}, 64, v{vXa}
    v_xor_b32 v{vXa+3}, 0x60, v{vXa}
    v_add_u32 v{vXa+4}, {2*SLOT}, v{vXa}
    v_add_u32 v{vXa+5}, {2*SLOT}, v{vXa+1}
    v_add_u32 v{vXa+6}, {2*SLOT}, v{vXa+2}
    v_add_u32 v{vXa+7}, {2*SLOT}, v{vXa+3}
    v_and_b32 v{vT+2}, 3, v1              ; c'
    v_lshrrev_b32 v{vT+3}, 1, v{vT+2}
    v_lshlrev_b32 v{vT+4}, 1, v{vT+2}
    v_and_b32 v{vT+4}, 2, v{vT+4}
    v_or_b32 v{vT+3}, v{vT+3}, v{vT+4}    ; bitswap2(c')
    v_bfe_u32 v{vT+4}, v1, 4, 1           ; a
    v_bfe_u32 v{vT+5}, v1, 2, 2           ; r'
    v_lshl_add_u32 v{vT+6}, v{vT+1}, 3, v{vT+5}   ; 8h + r'
    s_cmp_eq_u32 s{S_HALF}, 0
    s_cselect_b64 vcc, -1, 0
    s_lshl_b32 s34, s56, 3
    v_cndmask_b32 v{vT+7}, v{vT+2}, v{vT+3}, vcc  ; cg
    v_lshl_add_u32 v{vT+7}, v{vT+4}, 2, v{vT+7}
    v_add_u32 v{vT+7}, s34, v{vT+7}
    v_lshlrev_b32 v{vT+8}, 2, v{vT+5}
    v_and_b32 v{vT+8}, 8, v{vT+8}
    v_xor_b32 v{vT+7}, v{vT+7}, v{vT+8}
    v_lshlrev_b32 v{vT+7}, 3, v{vT+7}
    v_lshl_add_u32 v{vWa}, v{vT+6}, 7, v{vT+7}
    v_add_u32 v{vWqa}, {WQB}, v{vWa}
    s_lshl_b32 s35, s{S_HALF}, 13
    s_add_u32 s35, s35, 8192
    v_add_u32 v{vWa}, s35, v{vWa}
    v_add_u32 v{vWa+1}, {2*SLOT}, v{vWa}
    v_mov_b32 v{vT+7}, {OOB}
    """)
    def nonce_wait():
        Lng, Lnw, Lz = a.newlabel("L_ngot"), a.newlabel("L_nwait"), a.newlabel("L_nz")
        a(f"""
        v_readfirstlane_b32 s34, v{vN}
        s_mov_b32 s35, 0
        s_sub_u32 s58, s62, s34
        s_cmp_lt_i32 s58, 1000
        s_cselect_b32 s34, s34, 0
        s_cmp_lg_u32 s34, 0
        s_cbranch_scc1 {Lng}
        {Lnw}:
        s_sleep 4
        buffer_load_dwordx2 {vr(vN,2)}, v{vZ}, {DBG}, 0 offen {SC}
        s_waitcnt vmcnt(0)
        v_readfirstlane_b32 s34, v{vN}
        s_add_u32 s35, s35, 1
        s_cmp_ge_u32 s35, {SPIN_MAX}
        s_cbranch_scc1 {Lng}
        s_cmp_ge_u32 s35, 256
        s_cbranch_scc1 {Lz}
        s_sub_u32 s58, s62, s34
        s_cmp_lt_i32 s58, 1000
        s_cselect_b32 s34, s34, 0
        {Lz}:
        s_cmp_eq_u32 s34, 0
        s_cbranch_scc1 {Lnw}
        {Lng}:
        """)
    NQ1 = optint("nq1", 4)
    CLA = optint("cla", 1)
    def kloop(kt, extra):
        issued = [3] * PRE
        seq = []
        for i in range(PRE): seq += [("c", i)] * ((0 if kt else 6) if EARLY else 3)
        for ins in extra.get(-1, []):
            a(ins); seq.append(("x", -1))
        vW2 = [vWf, 82]
        def mm(i, waits):
            for sub in range(4):
                if waits: a(f"s_waitcnt lgkmcnt({3*(3-sub)})")
                X, W = vXf + 16 * i + 4 * sub, vW2[i % 2] + 4 * sub
                A, B = (W, X) if kt else (X, W)
                C = "0" if (i == 0 and sub == 0) else vr(vAcc, 16)
                if "nomm" not in OPT or i == 0: a(f"v_mfma_f32_32x32x16_bf16 {vr(vAcc,16)}, {vr(A,4)}, {vr(B,4)}, {C}")
        for i in range(7):
            mine = [k for k, t in enumerate(seq) if t == ("c", i)]
            a(f"s_waitcnt vmcnt({len(seq) - 1 - max(mine)}) lgkmcnt(0)" if mine else "s_waitcnt lgkmcnt(0)")
            a("s_barrier")
            stamp(a, 1 + i) if i in (0, 6) else None
            if "cyc" in OPT and i in (0, 6): a(f"s_memtime s[{42 if i == 0 else 44}:{43 if i == 0 else 45}]")
            sl = i % 4
            hi = sl >= 2
            so = (sl % 2) * SLOT
            for sub in range(4):
                for u in range(2):
                    a(f"ds_read_b64_tr_b16 {vr(vW2[i%2]+4*sub+2*u,2)}, v{vWa+hi} offset:{so+sub*2048+u*512}")
                a(f"ds_read_b128 {vr(vXf+16*i+4*sub,4)}, v{vXa+sub+4*hi} offset:{so}")
            if "pipe" in OPT and i >= 1: mm(i - 1, False)
            if SPLIT and kt:
                pass
            elif i + PRE <= 6:
                (issue_chunk2 if SPLIT else issue_chunk)(i + PRE); seq += [("c", i + PRE)] * (6 if SPLIT else 3)
            elif i + PRE == 7:
                for q in range(NQ1):
                    issue_wq(q); seq += [("q", q)]
            elif i + PRE == 8:
                for q in range(NQ1, 7):
                    issue_wq(q); seq += [("q", q)]
            for ins in extra.get(i, []):
                a(ins); seq.append(("x", i))
            if "pipe" not in OPT or i == 6: mm(i, True)
    oclear = f"buffer_store_dwordx4 {vr(vSen,4)}, v{vL16}, {WS}, s{S_OA} offen {SC}"
    tagload = f"buffer_load_dwordx2 {vr(vN,2)}, v{vZ}, {DBG}, 0 offen {SC}"
    Lv = a.newlabel("L_vtype")
    Lpub = a.newlabel("L_pub")
    a(f"""
    s_cmp_lg_u32 s{S_HALF}, 0
    s_cbranch_scc1 {Lv}
    """)
    a.c("---- waves 0..3: K tile, then Q tile")
    a(f"""
    v_and_b32 v{vT+2}, 0x13, v{vT}
    v_lshlrev_b32 v{vT+3}, 1, v{vT}
    v_and_b32 v{vT+3}, 8, v{vT+3}
    v_lshrrev_b32 v{vT+4}, 1, v{vT}
    v_and_b32 v{vT+4}, 4, v{vT+4}
    v_or3_b32 v{vT+2}, v{vT+2}, v{vT+3}, v{vT+4}  ; swap23(tok)
    v_lshlrev_b32 v{vT+2}, 4, v{vT+2}
    v_mov_b32 v{vD+10}, 0x3f803f80
    v_mov_b32 v{vD+11}, 0x3f80
    v_mov_b32 v{vT+14}, 0x3f803f80
    v_mov_b32 v{vT+15}, 0x3f80
    s_add_u32 s59, s54, {WS_Q}
    s_lshl_b32 s34, s58, 2
    """)
    for aa in range(2):
        a(f"""
        v_add_u32 v{vT+3}, s34, v{vT+1}
        v_add_u32 v{vT+3}, {2*aa}, v{vT+3}       ; U
        v_mul_u32_u24 v{vT+4}, 37, v{vT+3}
        v_lshrrev_b32 v{vT+4}, 8, v{vT+4}        ; e
        v_mul_u32_u24 v{vT+5}, 7, v{vT+4}
        v_sub_u32 v{vT+6}, v{vT+3}, v{vT+5}      ; u7
        v_cmp_eq_u32 s[{S_M0+2*aa}:{S_M0+2*aa+1}], 3, v{vT+6}
        v_lshl_add_u32 v{vAd+aa}, v{vT+4}, 19, v{vT+2}
        v_lshrrev_b32 v{vT+5}, 2, v{vT+6}
        v_lshl_add_u32 v{vAd+aa}, v{vT+5}, 18, v{vAd+aa}
        v_and_b32 v{vT+5}, 3, v{vT+6}
        v_lshl_add_u32 v{vAd+aa}, v{vT+5}, 9, v{vAd+aa}
        v_add_u32 v{vT+5}, 0x40000, v{vAd+aa}
        v_cndmask_b32 v{vAd+2+aa}, v{vT+7}, v{vT+5}, s[{S_M0+2*aa}:{S_M0+2*aa+1}]
        """)
    kloop(True, {4: [tagload]})
    def unit_pack(aa, acc):
        L = [f"v_cvt_pk_bf16_f32 v{vD+4*aa+t}, v{acc+8*aa+2*t}, v{acc+8*aa+2*t+1}" for t in range(4)]
        X2 = vD + 8 if aa == 0 else vT + 12
        L += [f"v_mov_b32 v{X2}, v{vD+4*aa+2}", f"v_mov_b32 v{X2+1}, v{vD+4*aa+3}",
              f"v_cndmask_b32 v{vD+4*aa+2}, v{vD+4*aa+2}, v{vD+10}, s[{S_M0+2*aa}:{S_M0+2*aa+1}]",
              f"v_cndmask_b32 v{vD+4*aa+3}, v{vD+4*aa+3}, v{vD+11}, s[{S_M0+2*aa}:{S_M0+2*aa+1}]"]
        return L
    def unit_store(aa, soff):
        X2 = vD + 8 if aa == 0 else vT + 12
        return [f"buffer_store_dwordx4 {vr(vD+4*aa,4)}, v{vAd+aa}, {WS}, {soff} offen {SC}",
                f"buffer_store_dwordx4 {vr(X2,4)}, v{vAd+2+aa}, {WS}, {soff} offen {SC}"]
    QG = [int(c) for c in str(optint("qg", 47))]
    assert QG[-1] == 7
    a(f"s_waitcnt vmcnt({7 - QG[0]})")
    a("s_barrier")
    vW2 = [vWf, 82]
    vQa = 98
    def qrd(i, sub):
        for u in range(2):
            a(f"ds_read_b64_tr_b16 {vr(vW2[i%2]+4*sub+2*u,2)}, v{vWqa} offset:{i*8192+sub*2048+u*512}")
    for sub in range(4): qrd(0, sub)
    KST = optint("kst", 5)
    fill = {}
    pk = unit_pack(0, vAcc) + unit_pack(1, vAcc)
    for m in range(4): fill[m + 1] = pk[4 * m:4 * m + 4]
    ks = unit_store(0, "s54") + unit_store(1, "s54")
    for m in range(4): fill[KST + m] = fill.get(KST + m, []) + [ks[m]]
    fill[20] = [f"v_mov_b32 v{vD+10}, 0", f"v_mov_b32 v{vD+11}, 0", f"v_mov_b32 v{vT+14}, 0", f"v_mov_b32 v{vT+15}, 0", f"s_mov_b32 s34, {QSCALE:#x}"]
    nst = 0
    for i in range(7):
        if i + 1 in QG[:-1]:
            a(f"s_waitcnt vmcnt({nst + 7 - QG[QG.index(i + 1) + 1]})")
            a("s_barrier")
        for sub in range(4):
            if i + 1 < 7:
                qrd(i + 1, sub)
                a("s_waitcnt lgkmcnt(8)")
            else:
                a(f"s_waitcnt lgkmcnt({6-2*sub})")
            C = "0" if (i == 0 and sub == 0) else vr(vQa, 16)
            a(f"v_mfma_f32_32x32x16_bf16 {vr(vQa,16)}, {vr(vW2[i%2]+4*sub,4)}, {vr(vXf+16*i+4*sub,4)}, {C}")
            for ins in fill.get(4 * i + sub, []):
                a(ins)
                if ins.startswith("buffer_store"): nst += 1
            if 4 * i + sub == KST + 3: stamp(a, 2)
    a("s_nop 11")
    for aa in range(2):
        for r in range(8 * aa, 8 * aa + 8):
            a(f"v_mul_f32 v{vQa+r}, s34, v{vQa+r}")
        for ins in unit_pack(aa, vQa) + unit_store(aa, "s59"): a(ins)
    stamp(a, 4)
    a(f"s_branch {Lpub}")
    a.label(Lv)
    a.c("---- waves 4..7: V tile")
    a(f"""
    s_lshl_b32 s34, s58, 5
    v_add_u32 v{vT+2}, s34, v{vT}            ; C
    v_mul_u32_u24 v{vT+3}, 2341, v{vT+2}
    v_lshrrev_b32 v{vT+3}, 16, v{vT+3}       ; head
    v_mul_u32_u24 v{vT+4}, 28, v{vT+3}
    v_sub_u32 v{vT+6}, v{vT+2}, v{vT+4}      ; d
    v_lshl_add_u32 v{vT+4}, v{vT+1}, 5, v{vT+6}
    v_lshlrev_b32 v{vT+4}, 4, v{vT+4}
    v_lshl_add_u32 v{vAd}, v{vT+3}, 18, v{vT+4}
    v_cmp_eq_u32 vcc, 0, v{vT+6}
    v_mov_b32 v{vT+5}, 0x3f803f80
    s_nop 0
    v_cndmask_b32 v{vD+8}, 0, v{vT+5}, vcc
    v_cndmask_b32 v{vD+9}, 0, v{vT+5}, vcc
    v_cndmask_b32 v{vD+10}, 0, v{vT+5}, vcc
    v_cndmask_b32 v{vD+11}, 0, v{vT+5}, vcc
    v_cmp_gt_u32 vcc, 4, v{vT+6}
    s_nop 1
    v_cndmask_b32 v{vAd+1}, v{vT+7}, v{vAd}, vcc
    """)
    vpad = [f"buffer_store_dwordx4 {vr(vD+8,4)}, v{vAd+1}, {WS}, s54 offen offset:{o+448} {SC}" for o in (2048, 3072)]
    if "wqown" in OPT:
        Lpf = a.newlabel("L_pf")
        a(f"""
        s_and_b32 s34, s{S_TH}, 7
        s_mul_i32 s34, s34, {56*2688}
        s_add_u32 s34, s34, s{sCol}
        v_and_b32 v{vT+8}, 15, v1
        v_min_u32 v{vT+8}, 13, v{vT+8}
        v_mad_u32_u24 v{vT+8}, s{S_T}, 14, v{vT+8}
        v_mul_u32_u24 v{vT+8}, 2688, v{vT+8}
        """)
        pf = [f"buffer_load_dword v{vT+9}, v{vT+8}, s[{S_W}:{S_W+3}], s34 offen"]
    else:
        pf = []
    kloop(False, {-1: pf, 4: [tagload]})
    a(f"s_waitcnt vmcnt({7 - QG[0]})")
    a("s_barrier")
    a("s_nop 9")
    for t in range(8):
        a(f"v_cvt_pk_bf16_f32 v{vD+t}, v{vAcc+2*t}, v{vAcc+2*t+1}")
    VST = optint("vst", 1)
    nv = 0
    for k in range(1, len(QG) + 1):
        if k == VST:
            for i in range(2):
                a(f"buffer_store_dwordx4 {vr(vD+4*i,4)}, v{vAd}, {WS}, s54 offen offset:{2048+1024*i} {SC}")
            for ins in vpad: a(ins)
            stamp(a, 2)
            nv = 4
        if k < len(QG):
            a(f"s_waitcnt vmcnt({nv + 7 - QG[k]})")
            a("s_barrier")
    a.label(Lpub)
    a("s_waitcnt vmcnt(0)")
    nonce_wait()
    a("s_barrier")
    stamp(a, 3)
    Lp, Lpd = a.newlabel("L_poll1"), a.newlabel("L_poll1d")
    Lh0, Lh1, Lh2 = a.newlabel("L_h"), a.newlabel("L_h"), a.newlabel("L_h")
    a(f"""
    buffer_store_dwordx2 {vr(vN,2)}, v{vF}, {WS}, s57 offen {SC}
    s_cmp_lg_u32 s{S_WV}, 4
    s_cbranch_scc1 {Lsync}
    ; workgroup = (th>>3) + (c == 3 ? th&4 : c&4) + 8*(th&7) + 64*(c&3)
    s_mul_i32 s34, s{S_HEAD}, 28
    s_add_u32 s35, s34, 27
    s_lshr_b32 s34, s34, 6
    s_lshr_b32 s35, s35, 6
    v_mov_b32 v{vT}, s34
    s_mov_b32 exec_lo, 0
    v_mov_b32 v{vT}, s35
    s_mov_b32 exec_lo, -1
    v_cmp_eq_u32 vcc, 3, v{vT}
    s_nop 1
    v_cndmask_b32 v{vT+1}, v{vT}, v1, vcc
    v_and_b32 v{vT+1}, 4, v{vT+1}
    v_and_b32 v{vT}, 3, v{vT}
    v_lshl_add_u32 v{vT}, v{vT}, 6, v{vT+1}
    v_bfe_u32 v{vT+1}, v1, 3, 2
    v_add_u32 v{vT}, v{vT}, v{vT+1}
    v_and_b32 v{vT+1}, 7, v1
    v_lshl_add_u32 v{vT}, v{vT+1}, 3, v{vT}
    v_lshlrev_b32 v{vT}, 7, v{vT}
    s_mov_b32 s35, 0
    s_cmp_lg_u32 s{S_C}, 7
    s_cbranch_scc1 {Lh1}
    ; spare workgroups first wait for a working neighbour's hint line, so that they do not touch the flag lines early
    s_xor_b32 s34, s2, 4
    s_lshl_b32 s34, s34, 7
    s_add_u32 s34, s34, {WS_F1+0x8000}
    {Lh0}:
    s_sleep 4
    buffer_load_dwordx2 {vr(240,2)}, v{vZ}, {WS}, s34 offen {SC}
    s_add_u32 s35, s35, 1
    s_waitcnt vmcnt(0)
    v_cmp_ne_u64 vcc, {vr(240,2)}, {vr(vN,2)}
    s_cmp_ge_u32 s35, {SPIN_MAX}
    s_cbranch_scc1 {Lh2}
    s_cmp_lg_u64 vcc, 0
    s_cbranch_scc1 {Lh0}
    s_branch {Lh2}
    {Lh1}:
    s_sleep {optint("sl0", 20)}
    {Lh2}:
    """)
    PD = optint("pd", 1)
    SL1 = optint("sl1", 4)
    TSH = optint("tsh", 4)
    def pollissue(k):
        if "rep" in OPT:
            a(f"""
            s_memrealtime s[58:59]
            s_waitcnt lgkmcnt(0)
            s_bfe_u32 s34, s58, {0x20000 + TSH}
            s_lshl_b32 s34, s34, 15
            s_add_u32 s34, s34, {WS_F1}
            buffer_load_dwordx2 {vr(240+2*k,2)}, v{vT}, {WS}, s34 offen {SC}
            """)
        else:
            a(f"buffer_load_dwordx2 {vr(240+2*k,2)}, v{vT}, {WS}, s{S_FB} offen {SC}")
    for k in range(PD - 1):
        pollissue(k)
        a(f"s_sleep {SL1}")
    a.label(Lp)
    for k in range(PD):
        pollissue((k + PD - 1) % PD)
        a(f"""
        s_waitcnt vmcnt({PD-1})
        v_cmp_ne_u64 vcc, {vr(240+2*k,2)}, {vr(vN,2)}
        s_nop 0
        s_cmp_eq_u64 vcc, 0
        s_cbranch_scc1 {Lsync}
        s_sleep {SL1}
        """)
    a(f"""
    s_add_u32 s35, s35, 1
    s_cmp_lt_u32 s35, {SPIN_MAX}
    s_cbranch_scc1 {Lp}
    """)
    a.label(Lsync)
    vL, vL2, vIdx = 3, 4, 5
    vO = 82
    vS = [32, 48, 64]
    vK = [128, 136]
    vV = [144, 152, 160, 168]
    vQ = 98
    vX = 106
    vG3, vOOB, vP2 = 176, 177, 178
    sG, sM0 = 46, 47
    QX = 98304
    a(f"""
    s_lshl_b32 s34, s{S_HALF}, 5
    s_add_u32 s34, s34, s{S_T}
    s_lshl_b32 s34, s34, 12
    s_lshl_b32 s51, s{S_HEAD}, 18
    s_add_u32 s{sG}, s51, s34
    s_lshl_b32 s48, s{S_TILE}, 12
    s_add_u32 s48, s48, s51
    s_lshl_b32 s34, s{S_HALF}, 10
    s_add_u32 s48, s48, s34
    s_add_u32 s48, s48, {WS_Q}
    s_lshl_b32 s35, s{S_T}, 11
    s_add_u32 s34, s34, s35
    s_add_u32 m0, s34, {QX}
    s_lshl_b32 s{sM0}, s{S_WV}, 12
    s_lshl_b32 s34, s{S_HALF}, 12
    s_and_b32 s35, s{S_WV}, 1
    s_lshl_b32 s35, s35, 10
    s_add_u32 s34, s34, s35
    s_bfe_u32 s35, s{S_WV}, 0x10001
    s_lshl_b32 s50, s35, 14
    s_add_u32 s50, s50, s34
    s_lshl_b32 s35, s35, 17
    s_add_u32 s51, s51, s35
    s_add_u32 s51, s51, s34
    s_barrier
    """)
    stamp(a, 5)
    def load_q():
        a(f"buffer_load_dwordx4 {vr(vQ,4)}, v{vL16}, {WS}, s48 offen {SC}")
        a(f"buffer_load_dwordx4 {vr(vQ+4,4)}, v{vL16}, {WS}, s48 offen offset:1024 {SC}")
    def kvdma(piece):
        a(f"buffer_load_dwordx4 v{vL16}, {WS}, s{sG} offen offset:{piece*1024} {SC} lds")
    def maxchain(regs, t):
        regs = list(regs)
        a(f"v_max3_u32 v{t}, v{regs[0]}, v{regs[1]}, v{regs[2]}")
        rest = regs[3:]
        while len(rest) >= 2:
            a(f"v_max3_u32 v{t}, v{t}, v{rest[0]}, v{rest[1]}")
            rest = rest[2:]
        if rest:
            a(f"v_max_u32 v{t}, v{t}, v{rest[0]}")
    slowpaths = []
    def validate(regs, reload, t):
        Lr, Lb = a.newlabel("L_retry"), a.newlabel("L_back")
        maxchain(regs, t)
        a(f"v_cmp_eq_u32 vcc, -1, v{t}")
        a("s_nop 0")
        a("s_cmp_lg_u64 vcc, 0")
        a(f"s_cbranch_scc1 {Lr}")
        a.label(Lb)
        def emit():
            Ll = a.newlabel("L_rl")
            a.label(Lr)
            a("s_mov_b32 s35, 0")
            a.label(Ll)
            reload()
            a("s_add_u32 s35, s35, 1")
            a("s_waitcnt vmcnt(0)")
            maxchain(regs, t)
            a(f"v_cmp_eq_u32 vcc, -1, v{t}")
            a(f"s_cmp_ge_u32 s35, {SPIN_MAX}")
            a(f"s_cbranch_scc1 {Lb}")
            a("s_cmp_lg_u64 vcc, 0")
            a(f"s_cbranch_scc1 {Ll}")
            a(f"s_branch {Lb}")
        slowpaths.append(emit)
    a(f"""
    buffer_load_dwordx4 v{vL16}, {WS}, s48 offen {SC} lds
    s_mov_b32 m0, s50
    s_add_u32 s35, s51, 8192
    buffer_load_dwordx4 v{vL16}, {WS}, s51 offen {SC} lds
    s_barrier
    buffer_load_dwordx4 v{vL16}, {WS}, s51 offen offset:2048 {SC} lds
    s_add_u32 m0, s50, 8192
    s_nop 0
    buffer_load_dwordx4 v{vL16}, {WS}, s35 offen {SC} lds
    buffer_load_dwordx4 v{vL16}, {WS}, s35 offen offset:2048 {SC} lds
    """)
    def stage_dma(st):
        a(f"s_add_u32 m0, s{sM0}, {st*32768}")
        a(f"s_add_u32 s{sG}, s{sG}, 16384")
        for f in range(4): kvdma(f)
    NE = 0
    for st in range(1, 1 + NE):
        a("s_barrier")
        stage_dma(st)
    a(f"""
    s_lshl_b32 s34, s{S_HALF}, 14
    v_add_u32 v{vL}, s34, v{vL16}
    v_add_u32 v{vL2}, 0x10000, v{vL}
    v_mov_b32 v{vIdx}, 0xdddddddd
    ; wo DMA addresses (phase 3 prefetch)
    v_lshrrev_b32 v{vT}, 3, v0            ; 8w + r
    v_lshrrev_b32 v{vT+1}, 3, v1
    v_and_b32 v{vT+1}, 6, v{vT+1}
    v_and_b32 v{vT+2}, 7, v1
    v_xor_b32 v{vT+1}, v{vT+1}, v{vT+2}
    v_mul_u32_u24 v{vG3}, 896, v{vT}
    v_lshl_add_u32 v{vG3}, v{vT+1}, 4, v{vG3}
    v_mov_b32 v{vOOB}, {OOB}
    s_lshr_b32 s49, s2, 5
    s_min_u32 s49, s49, 6
    s_lshl_b32 s49, s49, 7                ; wo col block byte offset
    s_lshl_b32 s54, s{S_WV}, 10
    s_add_u32 s57, s57, {WS_F2-WS_F1}
    s_mov_b32 s{S_FB}, {WS_F2}
    ; phase 3 token half, and the flags of its O producers: workgroup = (head>>1) + 8*qb + 128*(head&1), head = 8*half + (l&7)
    s_and_b32 s34, s2, 7
    s_lshl_b32 s34, s34, 2
    s_bfe_u32 s35, s2, 0x20003
    s_add_u32 s{S_TH}, s34, s35
    s_lshr_b32 s34, s{S_TH}, 1
    s_lshl_b32 s34, s34, 3
    s_lshl_b32 s35, s{S_HALF}, 2
    s_add_u32 s34, s34, s35
    v_bfe_u32 v{vT}, v1, 1, 2
    v_add_u32 v{vT}, s34, v{vT}
    v_and_b32 v{vT+1}, 1, v1
    v_lshl_add_u32 v{vT}, v{vT+1}, 7, v{vT}
    v_lshlrev_b32 v{vP2}, 7, v{vT}
    """)
    for r in range(16):
        a(f"v_mov_b32 v{vO+r}, 0")
    a(f"s_lshl_b32 s34, s{S_T}, 11")
    a(f"s_add_u32 s34, s34, {QX}")
    a(f"v_add_u32 v{vX}, s34, v{vL16}")
    a(f"s_waitcnt vmcnt({3 + 4 * NE})")
    stamp(a, 6)
    a("s_barrier")
    stamp(a, 8)
    def ldsaddr(u, off):
        slot = (u // 4) % 3
        o = slot * 32768 + (u % 4) * 4096 + off
        return (vL, o) if o < 65536 else (vL2, o - 65536)
    def rd(dst, u, off):
        r, o = ldsaddr(u, off)
        a(f"ds_read_b128 {vr(dst,4)}, v{r} offset:{o}")
    def rdK(u, f): rd(vK[u % 2] + 4 * f, u, f * 1024)
    def rdV(u, f): rd(vV[u % 4] + 4 * f, u, 2048 + f * 1024)
    def QK(u, i, K=None):
        C = "0" if i == 0 else vr(vS[u % 3], 16)
        K = vK[u % 2] if K is None else K
        a(f"v_mfma_f32_32x32x16_bf16 {vr(vS[u%3],16)}, {vr(K+4*i,4)}, {vr(vQ+4*i,4)}, {C}")
    def PV(u, i):
        a(f"v_smfmac_f32_32x32x32_bf16 {vr(vO,16)}, {vr(vV[u%4]+4*i,4)}, {vr(vS[u%3]+8*i,8)}, v{vIdx}")
    def E(u, r0, r1):
        for r in range(r0, r1):
            a(f"v_exp_f32 v{vS[u%3]+r}, v{vS[u%3]+r}")
    a(f"""
    ds_read_b128 {vr(vQ,4)}, v{vX}
    ds_read_b128 {vr(vV[2],4)}, v{vL16}
    ds_read_b128 {vr(vQ+4,4)}, v{vX} offset:1024
    ds_read_b128 {vr(vV[2]+4,4)}, v{vL16} offset:1024
    """)
    rdK(0, 0); rdK(0, 1); rdK(1, 0); rdK(1, 1)
    a("s_waitcnt lgkmcnt(6)")
    QK(2, 0, vV[2])
    a("s_waitcnt lgkmcnt(4)")
    QK(2, 1, vV[2])
    a("s_waitcnt lgkmcnt(3)")
    QK(0, 0)
    stage_dma(1)
    a("s_nop 3")
    S = vS[2]
    a(f"v_max3_f32 v{vT}, v{S}, v{S+1}, v{S+2}")
    a(f"v_max3_f32 v{vT+1}, v{S+3}, v{S+4}, v{S+5}")
    for r in (6, 10):
        a(f"v_max3_f32 v{vT}, v{vT}, v{S+r}, v{S+r+1}")
        a(f"v_max3_f32 v{vT+1}, v{vT+1}, v{S+r+2}, v{S+r+3}")
    a(f"v_max3_f32 v{vT}, v{vT}, v{S+14}, v{S+15}")
    a(f"""
    v_max_f32 v{vT}, v{vT}, v{vT+1}
    v_mov_b32 v{vT+1}, v{vT}
    s_nop 1
    v_permlane32_swap_b32 v{vT}, v{vT+1}
    v_max_f32 v{vT}, v{vT}, v{vT+1}
    s_mov_b32 exec_lo, 0
    v_cvt_pk_bf16_f32 v{vQ+6}, -v{vT}, 0
    s_mov_b32 exec_lo, -1
    s_waitcnt lgkmcnt(0)
    """)
    QK(0, 1)
    a("s_waitcnt vmcnt(4)")
    a("s_barrier")
    rdV(0, 0); rdV(0, 1); rdV(1, 0); rdV(1, 1); rdK(2, 0); rdK(2, 1)
    a("s_nop 1")
    stamp(a, 9)
    F2AT, P2AT = optint("f2at", 28), optint("p2at", 31)
    OCAT = optint("ocat", 6)
    assert OCAT <= 16 and F2AT >= 25
    plan = {t: ([], []) for t in range(32)}
    plan[0] = ([(2, 0)], [(2, 1)]); plan[1] = ([(2, 2)], [(2, 3)])
    plan[2] = ([(3, 0)], [(3, 1)]); plan[3] = ([], [(3, 2)]); plan[4] = ([], [(3, 3)])
    for t in range(5, 21): plan[t] = ([], [((t - 1) // 4 + 3, (t - 1) % 4)])
    seq = [("s", 1)] * 4
    def vm(ins, tag):
        a(ins); seq.append(tag)
    def pieces(L):
        for st, p in L:
            kvdma(p); seq.append(("s", st))
    for t in range(32):
        first = [st for st, p in plan[t][0] + plan[t][1] if p == 0]
        if t + 1 < 32: QK(t + 1, 0)
        if first:
            a(f"s_add_u32 s{sG}, s{sG}, 16384")
        elif 21 <= t <= 27:
            a(f"s_add_u32 s34, s49, {(t-21)*57344}")
        if t + 2 < 32: rdV(t + 2, 0)
        E(t, 0, 4)
        if t + 1 < 32: QK(t + 1, 1)
        if first:
            a(f"s_add_u32 m0, s{sM0}, {(first[0] % 3) * 32768}")
        elif 21 <= t <= 28:
            a(f"s_add_u32 m0, s54, {98304 + (t-21)*8192}")
        if t + 2 < 32: rdV(t + 2, 1)
        E(t, 4, 8)
        if t >= 1: PV(t - 1, 1)
        if t % 4 == 1 and t <= 25:
            last = max(k for k, tg in enumerate(seq) if tg == ("s", (t + 3) // 4))
            a(f"s_waitcnt vmcnt({len(seq) - 1 - last}) lgkmcnt(0)")
            a("s_barrier")
        a(f"s_setprio {3 - ((t - 1) % 4) if t < 25 else 3 - (t - 25) // 2}")
        pieces(plan[t][0])
        if t + 3 < 32: rdK(t + 3, 0)
        E(t, 8, 12)
        if t == 0:
            a("s_waitcnt lgkmcnt(5)")
        PV(t, 0)
        a("s_waitcnt lgkmcnt(3)" if t + 3 < 32 else "s_waitcnt lgkmcnt(0)")
        pieces(plan[t][1])
        if 21 <= t <= 27:
            vm(f"buffer_load_dwordx4 v{vG3}, s[{S_WO}:{S_WO+3}], s34 offen lds", "wo")
        elif t == 28:
            vm(f"buffer_load_dwordx4 v{vOOB}, s[{S_WO}:{S_WO+3}], 0 offen lds", "wo")
        if t == P2AT:
            vm(f"buffer_load_dwordx2 {vr(vSen,2)}, v{vP2}, {WS}, s{S_FB} offen {SC}", "x")
        if t + 3 < 32:
            rdK(t + 3, 1)
        if t == OCAT: vm(oclear, "x")
        if t == F2AT: vm(f"buffer_store_dwordx2 {vr(vN,2)}, v{vF}, {WS}, s57 offen {SC}", "x")
        E(t, 12, 16)
    NWO = len(seq) - 1 - max(k for k, tg in enumerate(seq) if tg == "wo")
    a("s_nop 1")
    PV(31, 1)
    stamp(a, 10)
    a.c("---- combine the two kv halves in slot 0 (stage 6 data is dead)")
    LB, LJ, Lslow, Lst = a.newlabel("L_halfB"), a.newlabel("L_join"), a.newlabel("L_slow"), a.newlabel("L_store")
    a(f"""
    s_mul_i32 s34, s{S_WV}, 2304
    s_xor_b32 s35, s{S_WV}, 4
    s_mul_i32 s35, s35, 2304
    v_add_u32 v{vT}, s34, v{vL16}
    v_add_u32 v{vT+1}, s35, v{vL16}
    v_lshl_add_u32 v{vT+2}, v1, 2, s34     ; own l word
    v_or_b32 v{vT+3}, 32, v1
    v_lshl_add_u32 v{vT+4}, v{vT+3}, 2, s35
    v_lshl_add_u32 v{vT+3}, v{vT+3}, 2, s34
    s_nop 0
    s_cmp_lg_u32 s{S_HALF}, 0
    s_cbranch_scc1 {LB}
    ds_write_b128 v{vT}, {vr(vO+8,4)}
    ds_write_b128 v{vT}, {vr(vO+12,4)} offset:1024
    ds_write_b32 v{vT+2}, v{vO+12} offset:2048
    s_branch {LJ}
    {LB}:
    ds_write_b128 v{vT}, {vr(vO,4)}
    ds_write_b128 v{vT}, {vr(vO+4,4)} offset:1024
    ds_write_b32 v{vT+2}, v{vO+12} offset:2048
    s_nop 1
    """)
    for r in range(8):
        a(f"v_mov_b32 v{vO+r}, v{vO+8+r}")
    a(f"""
    {LJ}:
    s_waitcnt vmcnt({NWO}) lgkmcnt(0)
    s_barrier
    {f"buffer_load_dwordx2 {vr(vSen+2,2)}, v{vP2}, {WS}, s{S_FB} offen {SC}" if "p2b" in OPT else ""}
    ds_read_b32 v{vX+8}, v{vT+3} offset:2048
    ds_read_b32 v{vX+9}, v{vT+4} offset:2048
    ds_read_b128 {vr(vX,4)}, v{vT+1}
    ds_read_b128 {vr(vX+4,4)}, v{vT+1} offset:1024
    s_waitcnt lgkmcnt(2)
    v_add_f32 v{vX+8}, v{vX+8}, v{vX+9}
    v_rcp_f32 v{vX+9}, v{vX+8}
    s_mov_b32 s34, 0x2b800000
    s_mov_b32 s35, 0x53800000
    s_waitcnt lgkmcnt(0)
    """)
    if "nopk" in OPT:
        for r in range(8):
            a(f"v_add_f32 v{vO+r}, v{vO+r}, v{vX+r}")
        for r in range(8):
            a(f"v_fmac_f32 v{vX+8}, 0, v{vO+r}")
    else:
        for r in range(0, 8, 2):
            a(f"v_pk_add_f32 {vr(vO+r,2)}, {vr(vO+r,2)}, {vr(vX+r,2)}")
        a(f"v_pk_mul_f32 {vr(vX+10,2)}, {vr(vO,2)}, 0")
        for r in range(2, 8, 2):
            a(f"v_pk_fma_f32 {vr(vX+10,2)}, {vr(vO+r,2)}, 0, {vr(vX+10,2)}")
        a(f"v_add_f32 v{vX+10}, v{vX+10}, v{vX+11}")
        a(f"v_add_f32 v{vX+8}, v{vX+8}, v{vX+10}")
    a(f"""
    v_cmp_nle_f32 vcc, s34, v{vX+8}
    v_cmp_nge_f32 s[58:59], s35, v{vX+8}
    s_nop 0
    s_or_b64 vcc, vcc, s[58:59]
    s_cbranch_scc1 {Lslow}
    {Lst}:
    s_mov_b32 s35, 0xfffffffe
    """)
    if "nopk" in OPT:
        for r in range(8):
            a(f"v_mul_f32 v{vO+r}, v{vO+r}, v{vX+9}")
    else:
        for r in range(0, 8, 2):
            a(f"v_pk_mul_f32 {vr(vO+r,2)}, {vr(vO+r,2)}, {vr(vX+8,2)} op_sel:[0,1] op_sel_hi:[1,1]")
    for t in range(4):
        a(f"v_cvt_pk_bf16_f32 v{vX+t}, v{vO+2*t}, v{vO+2*t+1}")
    for t in range(4):
        a(f"v_min_u32 v{vX+t}, s35, v{vX+t}")
    Lnz = a.newlabel("L_nz")
    a(f"""
    s_cmp_eq_u32 s{S_HALF}, 0
    s_cbranch_scc1 {Lnz}
    s_mov_b32 exec_lo, 0
    v_mov_b32 v{vX+2}, 0
    v_mov_b32 v{vX+3}, 0
    s_mov_b32 exec_lo, -1
    {Lnz}:
    buffer_store_dwordx4 {vr(vX,4)}, v{vL16}, {WS}, s{S_OA} offen {SC}
    s_cmp_ge_u32 s2, 224
    s_cbranch_scc1 {"L_fin" if STAMPS else done}
    """)
    stamp(a, 11)
    vOg = 3
    vA = 8
    vAc3 = 32
    vOf = 48
    vWo = 128
    WOB_L = 98304
    a(f"""
    v_mov_b32 v2, v{vP2}
    v_lshrrev_b32 v{vT}, 4, v1            ; g
    v_and_b32 v{vT+1}, 15, v1
    v_bfe_u32 v{vT+2}, v1, 2, 2           ; r'
    v_bfe_u32 v{vT+3}, v1, 4, 1           ; g&1
    v_lshrrev_b32 v{vT+4}, 5, v1          ; g>>1
    v_lshl_add_u32 v{vT+5}, v{vT+3}, 2, v{vT+2}
    v_lshl_add_u32 v{vT+5}, v{vT+4}, 4, v{vT+5}   ; row
    v_lshrrev_b32 v{vT+6}, 1, v{vT+2}
    v_lshl_add_u32 v{vT+6}, v{vT+3}, 1, v{vT+6}   ; s0
    v_lshlrev_b32 v{vT+6}, 5, v{vT+6}
    v_lshl_add_u32 v{vT+5}, v{vT+5}, 7, v{vT+6}
    v_and_b32 v{vT+6}, 3, v1
    v_lshl_add_u32 v{vT+5}, v{vT+6}, 3, v{vT+5}
    s_mul_i32 s34, s{S_HALF}, {8*28*128}
    s_add_u32 s34, s34, {WOB_L}
    v_add_u32 v{vA}, s34, v{vT+5}
    v_xor_b32 v{vA+1}, 32, v{vA}
    v_xor_b32 v{vA+2}, 64, v{vA}
    v_xor_b32 v{vA+3}, 0x60, v{vA}
    """)
    def wr(hh):
        for ct in range(4):
            for u in range(2):
                a(f"ds_read_b64_tr_b16 {vr(vWo+16*hh+4*ct+2*u,2)}, v{vA+(ct^(2*(hh&1)))} offset:{(28*hh+8*u)*128}")
    NW1 = optint("nw1", 4)
    for hh in range(NW1):
        wr(hh)
        a("s_waitcnt lgkmcnt(4)")
    XB3 = 20480
    Lf2r, Lf2b = a.newlabel("L_f2r"), a.newlabel("L_f2b")
    a(f"""
    v_lshlrev_b32 v{vOg}, 9, v{vT}
    v_lshl_add_u32 v{vOg}, v{vT+1}, 4, v{vOg}
    s_lshl_b32 s34, s{S_TH}, 1
    s_lshr_b32 s35, s{S_T}, 1
    s_add_u32 s34, s34, s35
    s_lshl_b32 s34, s34, 15
    s_lshl_b32 s35, s{S_HALF}, 14
    s_add_u32 s48, s34, s35
    s_and_b32 s34, s{S_T}, 1
    s_lshl_b32 s34, s34, 8
    s_add_u32 s48, s48, s34
    s_add_u32 s48, s48, {WS_O}
    s_add_u32 s46, s48, 4096
    s_add_u32 s47, s48, 8192
    s_add_u32 s51, s48, 12288
    v_and_b32 v{vT+4}, 3, v1
    v_lshlrev_b32 v{vT+5}, 1, v1
    v_and_b32 v{vT+5}, 8, v{vT+5}
    v_lshrrev_b32 v{vT+6}, 1, v1
    v_and_b32 v{vT+6}, 4, v{vT+6}
    v_or3_b32 v{vT+4}, v{vT+4}, v{vT+5}, v{vT+6}
    v_mul_u32_u24 v{vT+4}, 272, v{vT+4}
    v_lshl_add_u32 v{vT+4}, v{vT}, 4, v{vT+4}
    s_mul_i32 s34, s{S_WV}, 4352
    v_add_u32 v{vT+2}, s34, v{vT+4}
    v_lshrrev_b32 v{vT+5}, 3, v0
    v_and_b32 v{vT+6}, 7, v0
    v_mul_u32_u24 v{vT+3}, 272, v{vT+5}
    v_lshl_add_u32 v{vT+3}, v{vT+6}, 5, v{vT+3}
    v_mul_u32_u24 v{vT+4}, 896, v{vT+5}
    v_lshl_add_u32 v{vT+4}, v{vT+6}, 4, v{vT+4}
    s_mul_i32 s50, s{S_TH}, 57344
    s_add_u32 s50, s50, s49
    s_waitcnt vmcnt({2 if "p2b" in OPT else 1})
    v_cmp_ne_u64 vcc, {vr(vSen,2)}, {vr(vN,2)}
    s_nop 0
    s_cmp_lg_u64 vcc, 0
    s_cbranch_scc1 {Lf2r}
    {Lf2b}:
    s_mov_b32 s35, 0
    """)
    def f2retry():
        Ll = a.newlabel("L_f2l")
        P2B = f"s_waitcnt vmcnt(1)\nv_cmp_ne_u64 vcc, {vr(vSen+2,2)}, {vr(vN,2)}\ns_nop 0\ns_cmp_eq_u64 vcc, 0\ns_cbranch_scc1 {Lf2b}" if "p2b" in OPT else ""
        a(f"""
        {Lf2r}:
        s_mov_b32 s35, 0
        {P2B}
        {Ll}:
        s_sleep {optint("sl2", 2)}
        buffer_load_dwordx2 {vr(vSen,2)}, v2, {WS}, s{S_FB} offen {SC}
        s_add_u32 s35, s35, 1
        s_waitcnt vmcnt(0)
        v_cmp_ne_u64 vcc, {vr(vSen,2)}, {vr(vN,2)}
        s_cmp_ge_u32 s35, {SPIN_MAX}
        s_cbranch_scc1 {Lf2b}
        s_cmp_lg_u64 vcc, 0
        s_cbranch_scc1 {Ll}
        s_branch {Lf2b}
        """)
    slowpaths.append(f2retry)
    stamp(a, 12)
    def oload(hh):
        so = ["s48", "s46", "s47", "s51"][hh // 2]
        a(f"buffer_load_dwordx4 {vr(vOf+4*hh,4)}, v{vOg}, {WS}, {so} offen offset:{(hh%2)*2048} {SC}")
    def ocheck(hh, first):
        o4 = vOf + 4 * hh
        Lacc, Lskip = a.newlabel("L_oa"), a.newlabel("L_os")
        if not first:
            a(f"s_bitcmp0_b32 s34, {hh}")
            a(f"s_cbranch_scc1 {Lskip}")
            a(f"s_bitcmp0_b32 s56, {hh}")
            a(f"s_cbranch_scc1 {Lacc}")
        a(f"""
        v_max3_u32 v{vT+5}, v{o4}, v{o4+1}, v{o4+2}
        v_max_u32 v{vT+5}, v{vT+5}, v{o4+3}
        v_cmp_eq_u32 vcc, -1, v{vT+5}
        s_nop 0
        s_cmp_lg_u64 vcc, 0
        s_cbranch_scc1 {Lskip}
        s_bitset0_b32 s56, {hh}
        {Lacc}:
        """)
        if hh:
            a(f"s_and_b32 s58, s56, {(1 << hh) - 1}")
            a(f"s_cbranch_scc1 {Lskip}")
        a(f"s_bitset0_b32 s34, {hh}")
        for ct in range(4):
            C = "0" if hh == 0 else vr(vAc3 + 4 * ct, 4)
            a(f"v_mfma_f32_16x16x32_bf16 {vr(vAc3+4*ct,4)}, {vr(vWo+16*hh+4*ct,4)}, {vr(vOf+4*hh,4)}, {C}")
        a.label(Lskip)
    for hh in range(8): oload(hh)
    for hh in range(NW1, 8):
        wr(hh)
        a("s_waitcnt lgkmcnt(4)")
    Lo, Lo2, Lod = a.newlabel("L_o"), a.newlabel("L_o2"), a.newlabel("L_od")
    a(f"s_branch {Lo2}")
    a.label(Lo)
    for hh in range(8): oload(hh)
    a.label(Lo2)
    for hh in range(8):
        a(f"s_waitcnt vmcnt({7-hh}) lgkmcnt(0)")
        for ct in range(4):
            C = "0" if hh == 0 else vr(vAc3 + 4 * ct, 4)
            a(f"v_mfma_f32_16x16x32_bf16 {vr(vAc3+4*ct,4)}, {vr(vWo+16*hh+4*ct,4)}, {vr(vOf+4*hh,4)}, {C}")
        o4 = vOf + 4 * hh
        if hh == 0:
            a(f"v_max3_u32 v{vT+5}, v{o4}, v{o4+1}, v{o4+2}")
            a(f"v_max_u32 v{vT+5}, v{vT+5}, v{o4+3}")
        else:
            a(f"v_max3_u32 v{vT+5}, v{vT+5}, v{o4}, v{o4+1}")
            a(f"v_max3_u32 v{vT+5}, v{vT+5}, v{o4+2}, v{o4+3}")
    a(f"""
    v_cmp_eq_u32 vcc, -1, v{vT+5}
    s_add_u32 s35, s35, 1
    s_cmp_ge_u32 s35, {SPIN_MAX}
    s_cbranch_scc1 {Lod}
    s_cmp_lg_u64 vcc, 0
    s_cbranch_scc1 {Lo}
    {Lod}:
    """)
    stamp(a, 13)
    if STAMPS: a("s_mov_b32 s94, s35")
    a("s_nop 1")
    for ct in range(4):
        a(f"ds_write_b128 v{vT+2}, {vr(vAc3+4*ct,4)} offset:{XB3+64*ct}")
    a(f"""
    s_waitcnt lgkmcnt(0)
    s_barrier
    ds_read_b128 {vr(vX,4)}, v{vT+3} offset:{XB3}
    ds_read_b128 {vr(vX+8,4)}, v{vT+3} offset:{XB3+17408}
    ds_read_b128 {vr(vX+4,4)}, v{vT+3} offset:{XB3+16}
    ds_read_b128 {vr(vX+12,4)}, v{vT+3} offset:{XB3+17408+16}
    s_waitcnt lgkmcnt(2)
    """)
    for r in range(4):
        a(f"v_add_f32 v{vX+r}, v{vX+r}, v{vX+8+r}")
    a("s_waitcnt lgkmcnt(0)")
    for r in range(4, 8):
        a(f"v_add_f32 v{vX+r}, v{vX+r}, v{vX+8+r}")
    for t in range(4):
        a(f"v_cvt_pk_bf16_f32 v{vX+8+t}, v{vX+2*t}, v{vX+2*t+1}")
    a(f"buffer_store_dwordx4 {vr(vX+8,4)}, v{vT+4}, s[{S_OUT}:{S_OUT+3}], s50 offen {OSC}")
    if STAMPS:
        a("s_waitcnt vmcnt(0)")
        stamp(a, 14)
        a.label("L_fin")
        a("s_memrealtime s[96:97]")
        a("s_waitcnt lgkmcnt(0)")
        for i in range(15):
            a(f"v_mov_b32 v{8+i}, s{64+2*i}")
        if "cyc" in OPT: a("s_sub_u32 s94, s44, s42")
        a("v_mov_b32 v23, s94")
        a("v_mov_b32 v24, s98")
        a("v_mov_b32 v25, s96")
        a("v_mov_b32 v26, 0")
        a("v_mov_b32 v27, 0")
        a(f"""
        s_lshl_b32 s34, s2, 3
        s_add_u32 s34, s34, s{S_WV}
        s_lshl_b32 s34, s34, 7
        s_add_u32 s34, s34, {WS_ST}
        s_mov_b64 exec, 1
        buffer_store_dwordx4 v[8:11], v{vZ}, {WS}, s34 offen
        buffer_store_dwordx4 v[12:15], v{vZ}, {WS}, s34 offen offset:16
        buffer_store_dwordx4 v[16:19], v{vZ}, {WS}, s34 offen offset:32
        buffer_store_dwordx4 v[20:23], v{vZ}, {WS}, s34 offen offset:48
        buffer_store_dwordx4 v[24:27], v{vZ}, {WS}, s34 offen offset:64
        """)
    a.label(done)
    a("s_endpgm")
    for e in slowpaths: e()
    a.label(Lspare)
    a(f"""
    s_cmp_lg_u32 s2, 196
    s_cbranch_scc1 {Lnn}
    ; one spare workgroup publishes this launch's hand-off tag in d_debug
    s_or_b32 s62, s62, 1
    v_mov_b32 v{vN}, s62
    v_mov_b32 v{vN+1}, s63
    buffer_store_dwordx2 {vr(vN,2)}, v{vF}, {DBG}, 0 offen {SC}
    s_waitcnt vmcnt(0)
    v_lshlrev_b32 v{vT+10}, 7, v0
    {f"buffer_load_dword v{vT+11}, v{vT+10}, {WS}, s{S_FB} offen sc0 sc1 nt" if "fwarm" in OPT else ""}
    {Lnn}:
    {tagload}
    s_branch {Lpub}
    """)
    a.label(Lslow)
    L1, L2, Lh = a.newlabel("L_s1"), a.newlabel("L_s2"), a.newlabel("L_sh")
    sCnt = 48
    a(f"""
    s_mov_b32 exec_lo, 0
    v_mov_b32 v{vQ+6}, 0
    v_mov_b32 v{vQ+7}, 0
    s_mov_b32 exec_lo, -1
    v_mov_b32 v{vT}, 0xff800000
    s_lshl_b32 s{sG}, s{S_HEAD}, 18
    s_mov_b32 s{sCnt}, 0
    {L1}:
    buffer_load_dwordx4 {vr(vK[0],4)}, v{vL16}, {WS}, s{sG} offen {SC}
    buffer_load_dwordx4 {vr(vK[0]+4,4)}, v{vL16}, {WS}, s{sG} offen offset:1024 {SC}
    s_waitcnt vmcnt(0)
    """)
    QK(0, 0); QK(0, 1)
    a("s_nop 15")
    for r in range(0, 16, 2):
        a(f"v_max3_f32 v{vT}, v{vT}, v{vS[0]+r}, v{vS[0]+r+1}")
    a(f"""
    s_add_u32 s{sG}, s{sG}, 4096
    s_add_u32 s{sCnt}, s{sCnt}, 1
    s_cmp_lt_u32 s{sCnt}, 64
    s_cbranch_scc1 {L1}
    v_mov_b32 v{vT+1}, v{vT}
    s_nop 1
    v_permlane32_swap_b32 v{vT}, v{vT+1}
    s_nop 1
    v_max_f32 v{vT}, v{vT}, v{vT+1}
    v_and_b32 v{vT+1}, 0xffff0000, v{vT}       ; hi
    v_sub_f32 v{vT+2}, v{vT}, v{vT+1}
    v_and_b32 v{vT+3}, 0xffff0000, v{vT+2}     ; mid
    v_sub_f32 v{vT+2}, v{vT+2}, v{vT+3}        ; lo
    s_mov_b32 exec_lo, 0
    v_cvt_pk_bf16_f32 v{vQ+6}, -v{vT+1}, -v{vT+3}
    v_cvt_pk_bf16_f32 v{vQ+7}, -v{vT+2}, 0
    s_mov_b32 exec_lo, -1
    """)
    for r in range(16):
        a(f"v_mov_b32 v{vO+r}, 0")
    a(f"""
    s_lshl_b32 s{sG}, s{S_HEAD}, 18
    s_mov_b32 s{sCnt}, 0
    {L2}:
    buffer_load_dwordx4 {vr(vK[0],4)}, v{vL16}, {WS}, s{sG} offen {SC}
    buffer_load_dwordx4 {vr(vK[0]+4,4)}, v{vL16}, {WS}, s{sG} offen offset:1024 {SC}
    buffer_load_dwordx4 {vr(vV[0],4)}, v{vL16}, {WS}, s{sG} offen offset:2048 {SC}
    buffer_load_dwordx4 {vr(vV[0]+4,4)}, v{vL16}, {WS}, s{sG} offen offset:3072 {SC}
    s_waitcnt vmcnt(0)
    """)
    QK(0, 0); QK(0, 1)
    a("s_nop 15")
    E(0, 0, 16)
    a("s_nop 1")
    PV(0, 0); PV(0, 1)
    a(f"""
    s_nop 7
    s_add_u32 s{sG}, s{sG}, 4096
    s_add_u32 s{sCnt}, s{sCnt}, 1
    s_cmp_lt_u32 s{sCnt}, 64
    s_cbranch_scc1 {L2}
    s_nop 15
    v_mov_b32 v{vX+8}, v{vO+12}
    v_mov_b32 v{vX+9}, v{vO+12}
    s_nop 1
    v_permlane32_swap_b32 v{vX+8}, v{vX+9}
    s_nop 1
    v_rcp_f32 v{vX+9}, v{vX+9}
    s_cmp_eq_u32 s{S_HALF}, 0
    s_cbranch_scc1 {Lh}
    """)
    for r in range(8):
        a(f"v_mov_b32 v{vO+r}, v{vO+8+r}")
    a(f"""
    {Lh}:
    s_nop 1
    s_branch {Lst}
    """)
    a.label("L_end")
    a.raw('.section .rodata,"a"')
    a.raw(".p2align 6")
    a.raw(kernel_desc(NAME, 256, 102).rstrip("\n"))
    return a.text()

if __name__ == "__main__":
    out = sys.argv[1] if len(sys.argv) > 1 else "standalone__softmax_full_mha__prompt.s"
    OPT.update(sys.argv[2:])
    STAMPS = "stamps" in OPT
    open(out, "w").write(build())
```

```python
import sys, struct, math
from asmlib import *

WS_KV = 0
WS_Q = 0x400000
WS_O = 0x800000
WS_F1 = 0xa00000
WS_F2 = 0xa40000
WS_ST = 0xc00000
WS_BYTES = 0xd00000
OOB = 0x40000000
XB, WB, WOB, OUTB = 1835008, 1204224, 401408, 1835008
QSCALE = struct.unpack("<I", struct.pack("<f", math.log2(math.e) / math.sqrt(28.0)))[0]
SPIN_MAX = 1 << 18

S_X, S_W, S_WS, S_WO, S_OUT, S_DBG = 8, 12, 16, 20, 24, 4
S_QB, S_WV, S_HEAD, S_ROT = 28, 31, 32, 33
S_TH, S_TILE, S_C, S_HALF, S_T = 52, 53, 55, 60, 61
S_M0 = 36
S_OA, S_FB = 40, 41
SC = "sc1"
OPT = set()
STAMPS = False
NAME = "standalone__softmax_full_mha__prompt_kernel"
WS = f"s[{S_WS}:{S_WS+3}]"
DBG = f"s[{S_DBG}:{S_DBG+3}]"

def stamp(a, i):
    if STAMPS:
        a(f"s_memrealtime s[{64+2*i}:{65+2*i}]")

def optint(name, default):
    for o in OPT:
        if o.startswith(name + "="):
            return int(o.split("=")[1])
    return default

def build():
    a = Asm()
    HEADER = open("standalone__softmax_full_mha__prompt.s.ref").read().split("; Override launch")[0]
    a.raw(HEADER.rstrip("\n"))
    a.raw("; @launch grid=(256,1,1) block=(512,1,1) lds=163840")
    a.raw("""; One fused launch, 256 workgroups x 8 waves (one per CU):
;  phase 1  Q/K/V projection: 224 workgroups, tile = 64 tokens x {K,V,Q} 64-column blocks, LDS-DMA staging; results are
;           written to d_ws in MFMA-fragment order (write-through), then one flag line per workgroup.
;           check (row-sum range, finite O) falls back to an exact two-pass path with the true row max.
; Hand-off flags carry a per-launch tag that one workgroup publishes in d_debug.""")
    a.raw('.amdgcn_target "amdgcn-amd-amdhsa--gfx950"\n.text')
    a.raw(f".globl {NAME}\n.p2align 8\n.type {NAME},@function\n{NAME}:")
    if STAMPS:
        a("s_memrealtime s[98:99]")
    done = "L_done"
    OSC = "sc0 sc1" if "oplain" not in OPT else ""
    vXg, vWg = 2, 3
    vWa = 4
    vF = 6
    vZ = 7
    vXa = 8
    vT = 16
    vAcc = 32
    vWf = 48
    vD = 64
    vAd = 76
    vN = 80
    vWqa = 122
    vL16 = 123
    vSen = 124
    vXf = 128
    sC, sXo, sWo, sCol, sM, sXbase = 46, 47, 48, 49, 50, 51
    SLOT = 24576
    WQB = 98304
    Lspare, Lsync = a.newlabel("L_spare"), a.newlabel("L_sync1")
    if "rep" not in OPT and "nofull" not in OPT:
        VFSET = f"""v_lshrrev_b32 v{vT+1}, 5, v0
        v_and_b32 v{vT+2}, 15, v1
        v_lshlrev_b32 v{vT+2}, 3, v{vT+2}
        v_and_b32 v{vT+3}, 16, v1
        v_lshl_add_u32 v{vT+2}, v{vT+3}, 11, v{vT+2}
        v_cmp_eq_u32 vcc, 14, v{vT+1}"""
    elif "rep" in OPT:
        VFSET = f"""v_lshrrev_b32 v{vT+1}, 6, v0
        v_and_b32 v{vT+2}, 15, v1
        v_lshlrev_b32 v{vT+2}, 3, v{vT+2}
        v_and_b32 v{vT+3}, 48, v1
        v_lshl_add_u32 v{vT+2}, v{vT+3}, 11, v{vT+2}
        v_cmp_eq_u32 vcc, 7, v{vT+1}"""
    else:
        VFSET = f"""v_lshrrev_b32 v{vT+1}, 1, v0
        v_lshlrev_b32 v{vT+2}, 15, v1
        v_cmp_eq_u32 vcc, 0xe0, v{vT+1}"""
    a(f"""
    s_cmp_ge_u32 s2, 256
    s_cbranch_scc1 {done}
    s_load_dwordx4 s[36:39], s[0:1], 0
    s_load_dwordx4 s[40:43], s[0:1], 16
    s_load_dwordx4 {DBG}, s[0:1], 32
    s_memrealtime s[62:63]
    v_lshrrev_b32 v{vT}, 6, v0
    v_and_b32 v1, 63, v0
    s_and_b32 s34, s2, 3                  ; tg
    s_bfe_u32 s35, s2, 0x30003            ; r5 & 7
    v_readfirstlane_b32 s{S_WV}, v{vT}
    s_lshl_b32 s{S_TH}, s34, 3
    s_add_u32 s{S_TH}, s{S_TH}, s35
    s_lshr_b32 s{S_C}, s2, 6              ; cl
    s_lshl_b32 s{sC}, s{S_C}, 1
    s_add_u32 s{sC}, s{sC}, s35
    s_cmp_ge_u32 s{sC}, 7
    s_cselect_b32 s35, 7, 0
    s_sub_u32 s{sC}, s{sC}, s35
    s_and_b32 s35, s2, 4
    s_lshr_b32 s34, s2, 3
    s_xor_b32 s34, s34, s2
    s_and_b32 s34, s34, 4
    s_cmp_eq_u32 s{S_C}, 3
    s_cselect_b32 s35, s34, s35
    s_add_u32 s{S_C}, s{S_C}, s35
    s_mov_b32 s{S_X+2}, {XB}
    s_mov_b32 s{S_X+3}, 0x00020000
    s_mov_b32 s{S_W+2}, {WB}
    s_mov_b32 s{S_W+3}, 0x00020000
    s_cmp_lg_u32 s{S_C}, 7
    s_cbranch_scc1 L_work
    ; spare workgroup: pull the kernel's own code into this XCD's L2
    s_getpc_b64 s[44:45]
    L_pc:
    s_sub_u32 s44, s44, L_pc-{NAME}
    s_subb_u32 s45, s45, 0
    s_mov_b32 s46, L_end-{NAME}
    s_mov_b32 s47, 0x00020000
    v_lshlrev_b32 v{vT+10}, 7, v0
    buffer_load_dword v{vT+11}, v{vT+10}, s[44:47], 0 offen
    s_and_b32 s34, s{S_TH}, 3
    s_and_b32 s35, s2, 4
    s_cmp_eq_u32 s34, 3
    s_cselect_b32 s35, 0, s35
    s_add_u32 s34, s34, s35
    s_lshl_b32 s34, s34, 7
    v_mul_u32_u24 v{vT+10}, 2688, v0
    s_waitcnt lgkmcnt(0)
    s_mov_b32 s{S_W}, s38
    s_mov_b32 s{S_W+1}, s39
    {"s_waitcnt vmcnt(0)" if "wqlate" in OPT else ""}
    {"s_sleep " + str(optint("wqs", 0)) if "wqlate" in OPT else ""}
    {"" if "wqown" in OPT else f"buffer_load_dword v{vT+11}, v{vT+10}, s[{S_W}:{S_W+3}], s34 offen"}
    s_branch L_sp1
    L_work:
    v_lshrrev_b32 v{vT+2}, 3, v0          ; 8w + r
    v_and_b32 v{vT+1}, 7, v1              ; pos
    v_bfe_u32 v{vT+3}, v0, 4, 3           ; swz = ((8w+r)>>1)&7
    v_xor_b32 v{vT+3}, v{vT+3}, v{vT+1}
    v_mul_u32_u24 v{vXg}, 896, v{vT+2}
    v_lshl_add_u32 v{vXg}, v{vT+3}, 4, v{vXg}
    v_lshrrev_b32 v{vT+3}, 2, v1
    v_and_b32 v{vT+3}, 4, v{vT+3}         ; ((r>>1)&1)*4
    v_xor_b32 v{vT+3}, v{vT+3}, v{vT+1}
    v_mul_u32_u24 v{vWg}, 2688, v{vT+2}
    v_lshl_add_u32 v{vWg}, v{vT+3}, 4, v{vWg}
    s_mul_i32 s{sXbase}, s{S_TH}, 57344
    s_lshl_b32 s{sCol}, s{S_C}, 7
    s_lshl_b32 s{sM}, s{S_WV}, 10
    s_waitcnt lgkmcnt(0)
    s_mov_b32 s{S_X}, s36
    s_mov_b32 s{S_X+1}, s37
    s_mov_b32 s{S_W}, s38
    s_mov_b32 s{S_W+1}, s39
    """)
    def adv():
        a(f"""
        s_add_u32 s{sC}, s{sC}, 1
        s_cmp_eq_u32 s{sC}, 7
        s_cselect_b32 s{sC}, 0, s{sC}
        """)
    def issue_chunk(i):
        sl = (i % 4) * SLOT
        a(f"""
        s_lshl_b32 s{sXo}, s{sC}, 7
        s_add_u32 s{sXo}, s{sXo}, s{sXbase}
        s_add_u32 m0, s{sM}, {sl}
        s_mul_i32 s{sWo}, s{sC}, 172032
        buffer_load_dwordx4 v{vXg}, s[{S_X}:{S_X+3}], s{sXo} offen lds
        s_add_u32 m0, s{sM}, {sl+8192-896}
        s_add_u32 s{sWo}, s{sWo}, s{sCol}
        buffer_load_dwordx4 v{vWg}, s[{S_W}:{S_W+3}], s{sWo} offen offset:896 lds
        s_add_u32 m0, s{sM}, {sl+16384-1792}
        s_add_u32 s{sC}, s{sC}, 1
        buffer_load_dwordx4 v{vWg}, s[{S_W}:{S_W+3}], s{sWo} offen offset:1792 lds
        s_cmp_eq_u32 s{sC}, 7
        s_cselect_b32 s{sC}, 0, s{sC}
        """)
    def issue_wq(i):
        a(f"""
        s_mul_i32 s{sWo}, s{sC}, 172032
        s_add_u32 m0, s{sM}, {WQB+i*8192}
        s_add_u32 s{sWo}, s{sWo}, s{sCol}
        buffer_load_dwordx4 v{vWg}, s[{S_W}:{S_W+3}], s{sWo} offen lds
        """)
        adv()
    def issue_chunk2(i):
        sl = (i % 4) * SLOT
        a(f"""
        s_lshl_b32 s{sXo}, s{sC}, 7
        s_add_u32 s{sXo}, s{sXo}, s{sXbase}
        s_add_u32 m0, s{sM}, {sl}
        s_mul_i32 s{sWo}, s{sC}, 172032
        buffer_load_dwordx4 v{vXg}, s[{S_X}:{S_X+3}], s{sXo} offen lds
        s_add_u32 m0, s{sM}, {(sl-4096) & 0xffffffff}
        s_add_u32 s{sWo}, s{sWo}, s{sCol}
        buffer_load_dwordx4 v{vXg2}, s[{S_X}:{S_X+3}], s{sXo} offen lds
        s_add_u32 m0, s{sM}, {sl+8192-896}
        s_add_u32 s{sC}, s{sC}, 1
        buffer_load_dwordx4 v{vWg}, s[{S_W}:{S_W+3}], s{sWo} offen offset:896 lds
        s_add_u32 m0, s{sM}, {sl+4096-896}
        s_nop 0
        buffer_load_dwordx4 v{vWg2}, s[{S_W}:{S_W+3}], s{sWo} offen offset:896 lds
        s_add_u32 m0, s{sM}, {sl+16384-1792}
        s_nop 0
        buffer_load_dwordx4 v{vWg}, s[{S_W}:{S_W+3}], s{sWo} offen offset:1792 lds
        s_add_u32 m0, s{sM}, {sl+12288-1792}
        s_cmp_eq_u32 s{sC}, 7
        buffer_load_dwordx4 v{vWg2}, s[{S_W}:{S_W+3}], s{sWo} offen offset:1792 lds
        s_cselect_b32 s{sC}, 0, s{sC}
        """)
    def issue_wq2(i):
        a(f"""
        s_mul_i32 s{sWo}, s{sC}, 172032
        s_add_u32 m0, s{sM}, {WQB+i*8192}
        s_add_u32 s{sWo}, s{sWo}, s{sCol}
        buffer_load_dwordx4 v{vWg}, s[{S_W}:{S_W+3}], s{sWo} offen lds
        s_add_u32 m0, s{sM}, {WQB+i*8192-4096}
        s_add_u32 s{sC}, s{sC}, 1
        buffer_load_dwordx4 v{vWg2}, s[{S_W}:{S_W+3}], s{sWo} offen lds
        s_cmp_eq_u32 s{sC}, 7
        s_cselect_b32 s{sC}, 0, s{sC}
        """)
    vXg2, vWg2 = 240, 241
    SPLIT = False
    Lsp1, Lnn = "L_sp1", a.newlabel("L_nonon")
    stamp(a, 0)
    PRE = optint("pre", 2)
    EARLY = False
    for i in range(PRE): issue_chunk(i)
    a(f"""
    {Lsp1}:
    s_mov_b32 s{S_WS}, s{S_DBG+2}
    s_mov_b32 s{S_WS+1}, s{S_DBG+3}
    s_mov_b32 s{S_DBG+2}, 256
    s_mov_b32 s{S_DBG+3}, 0x00020000
    s_mov_b32 s{S_WS+2}, {WS_BYTES}
    s_mov_b32 s{S_WS+3}, 0x00020000
    s_mov_b32 s{S_WO}, s40
    s_mov_b32 s{S_WO+1}, s41
    s_mov_b32 s{S_OUT}, s42
    s_mov_b32 s{S_OUT+1}, s43
    s_mov_b32 s{S_WO+2}, {WOB}
    s_mov_b32 s{S_WO+3}, 0x00020000
    s_mov_b32 s{S_OUT+2}, {OUTB}
    s_mov_b32 s{S_OUT+3}, 0x00020000
    v_mov_b32 v{vZ}, 0
    s_bfe_u32 s{S_QB}, s2, 0x40003
    s_and_b32 s34, s2, 7
    s_lshl_b32 s34, s34, 1
    s_lshr_b32 s35, s2, 7
    s_add_u32 s{S_HEAD}, s34, s35         ;          head = 2*(b&7) + (b>>7)
    s_and_b32 s{S_T}, s{S_WV}, 3
    s_lshr_b32 s{S_HALF}, s{S_WV}, 2
    s_lshl_b32 s34, s{S_QB}, 2
    s_add_u32 s{S_TILE}, s34, s{S_T}
    s_lshl_b32 s34, s{S_TILE}, 15
    s_lshl_b32 s35, s{S_HEAD}, 11
    s_add_u32 s{S_OA}, s34, s35
    s_lshl_b32 s34, s{S_HALF}, 10
    s_add_u32 s{S_OA}, s{S_OA}, s34
    s_add_u32 s{S_OA}, s{S_OA}, {WS_O}
    s_mov_b32 s{S_FB}, {WS_F1}
    s_lshl_b32 s57, s2, 7
    s_add_u32 s57, s57, {WS_F1}
    v_lshlrev_b32 v{vL16}, 4, v1
    v_mov_b32 v{vT}, {OOB}
    {VFSET}
    v_mov_b32 v{vSen}, -1
    v_mov_b32 v{vSen+1}, -1
    v_mov_b32 v{vSen+2}, -1
    v_mov_b32 v{vSen+3}, -1
    v_cndmask_b32 v{vF}, v{vT}, v{vT+2}, vcc
    s_cmp_eq_u32 s{S_C}, 7
    s_cbranch_scc1 {Lspare}
    v_and_b32 v{vT}, 31, v1               ; tok
    v_lshrrev_b32 v{vT+1}, 5, v1          ; h
    s_bfe_u32 s56, s{S_WV}, 0x10001       ; Ct = (w>>1)&1
    s_lshl_b32 s34, s{S_C}, 1
    s_add_u32 s58, s56, s34               ; Ctg (0..13)
    s_and_b32 s34, s{S_WV}, 1
    s_lshl_b32 s34, s34, 12
    s_lshl_b32 s54, s{S_TH}, 13
    s_add_u32 s54, s54, s34               ; tile * 4096
    v_bfe_u32 v{vT+2}, v1, 1, 3
    v_xor_b32 v{vT+2}, v{vT+2}, v{vT+1}   ; h ^ swz
    v_lshlrev_b32 v{vT+3}, 7, v{vT}       ; tok*128
    v_lshl_add_u32 v{vT+2}, v{vT+2}, 4, v{vT+3}
    v_add_u32 v{vXa}, s34, v{vT+2}
    v_xor_b32 v{vXa+1}, 32, v{vXa}
    v_xor_b32 v{vXa+2}, 64, v{vXa}
    v_xor_b32 v{vXa+3}, 0x60, v{vXa}
    v_add_u32 v{vXa+4}, {2*SLOT}, v{vXa}
    v_add_u32 v{vXa+5}, {2*SLOT}, v{vXa+1}
    v_add_u32 v{vXa+6}, {2*SLOT}, v{vXa+2}
    v_add_u32 v{vXa+7}, {2*SLOT}, v{vXa+3}
    v_and_b32 v{vT+2}, 3, v1              ; c'
    v_lshrrev_b32 v{vT+3}, 1, v{vT+2}
    v_lshlrev_b32 v{vT+4}, 1, v{vT+2}
    v_and_b32 v{vT+4}, 2, v{vT+4}
    v_or_b32 v{vT+3}, v{vT+3}, v{vT+4}    ; bitswap2(c')
    v_bfe_u32 v{vT+4}, v1, 4, 1           ; a
    v_bfe_u32 v{vT+5}, v1, 2, 2           ; r'
    v_lshl_add_u32 v{vT+6}, v{vT+1}, 3, v{vT+5}   ; 8h + r'
    s_cmp_eq_u32 s{S_HALF}, 0
    s_cselect_b64 vcc, -1, 0
    s_lshl_b32 s34, s56, 3
    v_cndmask_b32 v{vT+7}, v{vT+2}, v{vT+3}, vcc  ; cg
    v_lshl_add_u32 v{vT+7}, v{vT+4}, 2, v{vT+7}
    v_add_u32 v{vT+7}, s34, v{vT+7}
    v_lshlrev_b32 v{vT+8}, 2, v{vT+5}
    v_and_b32 v{vT+8}, 8, v{vT+8}
    v_xor_b32 v{vT+7}, v{vT+7}, v{vT+8}
    v_lshlrev_b32 v{vT+7}, 3, v{vT+7}
    v_lshl_add_u32 v{vWa}, v{vT+6}, 7, v{vT+7}
    v_add_u32 v{vWqa}, {WQB}, v{vWa}
    s_lshl_b32 s35, s{S_HALF}, 13
    s_add_u32 s35, s35, 8192
    v_add_u32 v{vWa}, s35, v{vWa}
    v_add_u32 v{vWa+1}, {2*SLOT}, v{vWa}
    v_mov_b32 v{vT+7}, {OOB}
    """)
    def nonce_wait():
        Lng, Lnw, Lz = a.newlabel("L_ngot"), a.newlabel("L_nwait"), a.newlabel("L_nz")
        a(f"""
        v_readfirstlane_b32 s34, v{vN}
        s_mov_b32 s35, 0
        s_sub_u32 s58, s62, s34
        s_cmp_lt_i32 s58, 1000
        s_cselect_b32 s34, s34, 0
        s_cmp_lg_u32 s34, 0
        s_cbranch_scc1 {Lng}
        {Lnw}:
        s_sleep 4
        buffer_load_dwordx2 {vr(vN,2)}, v{vZ}, {DBG}, 0 offen {SC}
        s_waitcnt vmcnt(0)
        v_readfirstlane_b32 s34, v{vN}
        s_add_u32 s35, s35, 1
        s_cmp_ge_u32 s35, {SPIN_MAX}
        s_cbranch_scc1 {Lng}
        s_cmp_ge_u32 s35, 256
        s_cbranch_scc1 {Lz}
        s_sub_u32 s58, s62, s34
        s_cmp_lt_i32 s58, 1000
        s_cselect_b32 s34, s34, 0
        {Lz}:
        s_cmp_eq_u32 s34, 0
        s_cbranch_scc1 {Lnw}
        {Lng}:
        """)
    NQ1 = optint("nq1", 4)
    CLA = optint("cla", 1)
    if "deep" in OPT:
        SCHED = {0: [("c", 2), ("c", 3)], 1: [("c", 4)], 2: [("c", 5)], 3: [("c", 6)], 4: [("q", q) for q in range(3)], 5: [("q", q) for q in range(3, 6)], 6: [("q", 6)]}
    elif "deep2" in OPT:
        SCHED = {0: [("c", 2)], 1: [("c", 3), ("c", 4)], 2: [("c", 5)], 3: [("c", 6)], 4: [("q", q) for q in range(3)], 5: [("q", q) for q in range(3, 7)]}
    else:
        SCHED = {i: [("c", i + 2)] for i in range(5)}
        SCHED[5] = [("q", q) for q in range(NQ1)]; SCHED[6] = [("q", q) for q in range(NQ1, 7)]
    def kloop(kt, extra):
        issued = [3] * PRE
        seq = []
        for i in range(PRE): seq += [("c", i)] * ((0 if kt else 6) if EARLY else 3)
        for ins in extra.get(-1, []):
            a(ins); seq.append(("x", -1))
        vW2 = [vWf, 82]
        def mm(i, waits):
            for sub in range(4):
                if waits: a(f"s_waitcnt lgkmcnt({3*(3-sub)})")
                X, W = vXf + 16 * i + 4 * sub, vW2[i % 2] + 4 * sub
                A, B = (W, X) if kt else (X, W)
                C = "0" if (i == 0 and sub == 0) else vr(vAcc, 16)
                if "nomm" not in OPT or i == 0: a(f"v_mfma_f32_32x32x16_bf16 {vr(vAcc,16)}, {vr(A,4)}, {vr(B,4)}, {C}")
        for i in range(7):
            mine = [k for k, t in enumerate(seq) if t == ("c", i)]
            a(f"s_waitcnt vmcnt({len(seq) - 1 - max(mine)}) lgkmcnt(0)" if mine else "s_waitcnt lgkmcnt(0)")
            a("s_barrier")
            stamp(a, 1 + i) if i in (0, 6) else None
            if "cyc" in OPT and i in (0, 6): a(f"s_memtime s[{42 if i == 0 else 44}:{43 if i == 0 else 45}]")
            sl = i % 4
            hi = sl >= 2
            so = (sl % 2) * SLOT
            for sub in range(4):
                for u in range(2):
                    a(f"ds_read_b64_tr_b16 {vr(vW2[i%2]+4*sub+2*u,2)}, v{vWa+hi} offset:{so+sub*2048+u*512}")
                a(f"ds_read_b128 {vr(vXf+16*i+4*sub,4)}, v{vXa+sub+4*hi} offset:{so}")
            if "pipe" in OPT and i >= 1: mm(i - 1, False)
            for kind, n in SCHED.get(i, []):
                if kind == "c":
                    issue_chunk(n); seq += [("c", n)] * 3
                else:
                    issue_wq(n); seq.append(("q", n))
            for ins in extra.get(i, []):
                a(ins); seq.append(("x", i))
            if "pipe" not in OPT or i == 6: mm(i, True)
    oclear = f"buffer_store_dwordx4 {vr(vSen,4)}, v{vL16}, {WS}, s{S_OA} offen {SC}"
    tagload = f"buffer_load_dwordx2 {vr(vN,2)}, v{vZ}, {DBG}, 0 offen {SC}"
    Lv = a.newlabel("L_vtype")
    Lpub = a.newlabel("L_pub")
    a(f"""
    s_cmp_lg_u32 s{S_HALF}, 0
    s_cbranch_scc1 {Lv}
    """)
    a.c("---- waves 0..3: K tile, then Q tile")
    a(f"""
    v_and_b32 v{vT+2}, 0x13, v{vT}
    v_lshlrev_b32 v{vT+3}, 1, v{vT}
    v_and_b32 v{vT+3}, 8, v{vT+3}
    v_lshrrev_b32 v{vT+4}, 1, v{vT}
    v_and_b32 v{vT+4}, 4, v{vT+4}
    v_or3_b32 v{vT+2}, v{vT+2}, v{vT+3}, v{vT+4}  ; swap23(tok)
    v_lshlrev_b32 v{vT+2}, 4, v{vT+2}
    v_mov_b32 v{vD+10}, 0x3f803f80
    v_mov_b32 v{vD+11}, 0x3f80
    v_mov_b32 v{vT+14}, 0x3f803f80
    v_mov_b32 v{vT+15}, 0x3f80
    s_add_u32 s59, s54, {WS_Q}
    s_lshl_b32 s34, s58, 2
    """)
    for aa in range(2):
        a(f"""
        v_add_u32 v{vT+3}, s34, v{vT+1}
        v_add_u32 v{vT+3}, {2*aa}, v{vT+3}       ; U
        v_mul_u32_u24 v{vT+4}, 37, v{vT+3}
        v_lshrrev_b32 v{vT+4}, 8, v{vT+4}        ; e
        v_mul_u32_u24 v{vT+5}, 7, v{vT+4}
        v_sub_u32 v{vT+6}, v{vT+3}, v{vT+5}      ; u7
        v_cmp_eq_u32 s[{S_M0+2*aa}:{S_M0+2*aa+1}], 3, v{vT+6}
        v_lshl_add_u32 v{vAd+aa}, v{vT+4}, 19, v{vT+2}
        v_lshrrev_b32 v{vT+5}, 2, v{vT+6}
        v_lshl_add_u32 v{vAd+aa}, v{vT+5}, 18, v{vAd+aa}
        v_and_b32 v{vT+5}, 3, v{vT+6}
        v_lshl_add_u32 v{vAd+aa}, v{vT+5}, 9, v{vAd+aa}
        v_add_u32 v{vT+5}, 0x40000, v{vAd+aa}
        v_cndmask_b32 v{vAd+2+aa}, v{vT+7}, v{vT+5}, s[{S_M0+2*aa}:{S_M0+2*aa+1}]
        """)
    kloop(True, {3: [tagload]})
    def unit_pack(aa, acc):
        L = [f"v_cvt_pk_bf16_f32 v{vD+4*aa+t}, v{acc+8*aa+2*t}, v{acc+8*aa+2*t+1}" for t in range(4)]
        X2 = vD + 8 if aa == 0 else vT + 12
        L += [f"v_mov_b32 v{X2}, v{vD+4*aa+2}", f"v_mov_b32 v{X2+1}, v{vD+4*aa+3}",
              f"v_cndmask_b32 v{vD+4*aa+2}, v{vD+4*aa+2}, v{vD+10}, s[{S_M0+2*aa}:{S_M0+2*aa+1}]",
              f"v_cndmask_b32 v{vD+4*aa+3}, v{vD+4*aa+3}, v{vD+11}, s[{S_M0+2*aa}:{S_M0+2*aa+1}]"]
        return L
    def unit_store(aa, soff):
        X2 = vD + 8 if aa == 0 else vT + 12
        return [f"buffer_store_dwordx4 {vr(vD+4*aa,4)}, v{vAd+aa}, {WS}, {soff} offen {SC}",
                f"buffer_store_dwordx4 {vr(X2,4)}, v{vAd+2+aa}, {WS}, {soff} offen {SC}"]
    QG = [int(c) for c in str(optint("qg", 47))]
    assert QG[-1] == 7
    a(f"s_waitcnt vmcnt({7 - QG[0]})")
    a("s_barrier")
    vW2 = [vWf, 82]
    vQa = 98
    def qrd(i, sub):
        for u in range(2):
            a(f"ds_read_b64_tr_b16 {vr(vW2[i%2]+4*sub+2*u,2)}, v{vWqa} offset:{i*8192+sub*2048+u*512}")
    for sub in range(4): qrd(0, sub)
    KST = optint("kst", 5)
    fill = {}
    pk = unit_pack(0, vAcc) + unit_pack(1, vAcc)
    for m in range(4): fill[m + 1] = pk[4 * m:4 * m + 4]
    ks = unit_store(0, "s54") + unit_store(1, "s54")
    for m in range(4): fill[KST + m] = fill.get(KST + m, []) + [ks[m]]
    fill[20] = [f"v_mov_b32 v{vD+10}, 0", f"v_mov_b32 v{vD+11}, 0", f"v_mov_b32 v{vT+14}, 0", f"v_mov_b32 v{vT+15}, 0", f"s_mov_b32 s34, {QSCALE:#x}"]
    nst = 0
    for i in range(7):
        if i + 1 in QG[:-1]:
            a(f"s_waitcnt vmcnt({nst + 7 - QG[QG.index(i + 1) + 1]})")
            a("s_barrier")
        for sub in range(4):
            if i + 1 < 7:
                qrd(i + 1, sub)
                a("s_waitcnt lgkmcnt(8)")
            else:
                a(f"s_waitcnt lgkmcnt({6-2*sub})")
            C = "0" if (i == 0 and sub == 0) else vr(vQa, 16)
            a(f"v_mfma_f32_32x32x16_bf16 {vr(vQa,16)}, {vr(vW2[i%2]+4*sub,4)}, {vr(vXf+16*i+4*sub,4)}, {C}")
            for ins in fill.get(4 * i + sub, []):
                a(ins)
                if ins.startswith("buffer_store"): nst += 1
            if 4 * i + sub == KST + 3: stamp(a, 2)
    a("s_nop 11")
    for aa in range(2):
        for r in range(8 * aa, 8 * aa + 8, 2):
            a(f"v_pk_mul_f32 {vr(vQa+r,2)}, {vr(vQa+r,2)}, s[34:35] op_sel_hi:[1,0]")
        for ins in unit_pack(aa, vQa) + unit_store(aa, "s59"): a(ins)
    stamp(a, 4)
    a(f"s_branch {Lpub}")
    a.label(Lv)
    a.c("---- waves 4..7: V tile")
    a(f"""
    s_lshl_b32 s34, s58, 5
    v_add_u32 v{vT+2}, s34, v{vT}            ; C
    v_mul_u32_u24 v{vT+3}, 2341, v{vT+2}
    v_lshrrev_b32 v{vT+3}, 16, v{vT+3}       ; head
    v_mul_u32_u24 v{vT+4}, 28, v{vT+3}
    v_sub_u32 v{vT+6}, v{vT+2}, v{vT+4}      ; d
    v_lshl_add_u32 v{vT+4}, v{vT+1}, 5, v{vT+6}
    v_lshlrev_b32 v{vT+4}, 4, v{vT+4}
    v_lshl_add_u32 v{vAd}, v{vT+3}, 18, v{vT+4}
    v_cmp_eq_u32 vcc, 0, v{vT+6}
    v_mov_b32 v{vT+5}, 0x3f803f80
    s_nop 0
    v_cndmask_b32 v{vD+8}, 0, v{vT+5}, vcc
    v_cndmask_b32 v{vD+9}, 0, v{vT+5}, vcc
    v_cndmask_b32 v{vD+10}, 0, v{vT+5}, vcc
    v_cndmask_b32 v{vD+11}, 0, v{vT+5}, vcc
    v_cmp_gt_u32 vcc, 4, v{vT+6}
    s_nop 1
    v_cndmask_b32 v{vAd+1}, v{vT+7}, v{vAd}, vcc
    """)
    vpad = [f"buffer_store_dwordx4 {vr(vD+8,4)}, v{vAd+1}, {WS}, s54 offen offset:{o+448} {SC}" for o in (2048, 3072)]
    if "wqown" in OPT:
        Lpf = a.newlabel("L_pf")
        a(f"""
        s_and_b32 s34, s{S_TH}, 7
        s_mul_i32 s34, s34, {56*2688}
        s_add_u32 s34, s34, s{sCol}
        v_and_b32 v{vT+8}, 15, v1
        v_min_u32 v{vT+8}, 13, v{vT+8}
        v_mad_u32_u24 v{vT+8}, s{S_T}, 14, v{vT+8}
        v_mul_u32_u24 v{vT+8}, 2688, v{vT+8}
        """)
        pf = [f"buffer_load_dword v{vT+9}, v{vT+8}, s[{S_W}:{S_W+3}], s34 offen"]
    else:
        pf = []
    kloop(False, {-1: pf, 3: [tagload]})
    a(f"s_waitcnt vmcnt({7 - QG[0]})")
    a("s_barrier")
    a("s_nop 9")
    for t in range(8):
        a(f"v_cvt_pk_bf16_f32 v{vD+t}, v{vAcc+2*t}, v{vAcc+2*t+1}")
    VST = optint("vst", 1)
    nv = 0
    for k in range(1, len(QG) + 1):
        if k == VST:
            for i in range(2):
                a(f"buffer_store_dwordx4 {vr(vD+4*i,4)}, v{vAd}, {WS}, s54 offen offset:{2048+1024*i} {SC}")
            for ins in vpad: a(ins)
            stamp(a, 2)
            nv = 4
        if k < len(QG):
            a(f"s_waitcnt vmcnt({nv + 7 - QG[k]})")
            a("s_barrier")
    a.label(Lpub)
    a("s_waitcnt vmcnt(0)")
    nonce_wait()
    a("s_barrier")
    stamp(a, 3)
    Lp, Lpd = a.newlabel("L_poll1"), a.newlabel("L_poll1d")
    Lh0, Lh1, Lh2 = a.newlabel("L_h"), a.newlabel("L_h"), a.newlabel("L_h")
    a(f"""
    buffer_store_dwordx2 {vr(vN,2)}, v{vF}, {WS}, s57 offen {SC}
    {"s_barrier" if "ocb" in OPT else ""}
    {oclear if "oc1" in OPT else ""}
    s_cmp_lg_u32 s{S_WV}, 7
    s_cbranch_scc1 {Lsync}
    ; workgroup = (th>>3) + (c == 3 ? th&4 : c&4) + 8*(th&7) + 64*(c&3)
    s_mul_i32 s34, s{S_HEAD}, 28
    s_add_u32 s35, s34, 27
    s_lshr_b32 s34, s34, 6
    s_lshr_b32 s35, s35, 6
    v_mov_b32 v{vT}, s34
    s_mov_b32 exec_lo, 0
    v_mov_b32 v{vT}, s35
    s_mov_b32 exec_lo, -1
    v_cmp_eq_u32 vcc, 3, v{vT}
    s_nop 1
    v_cndmask_b32 v{vT+1}, v{vT}, v1, vcc
    v_and_b32 v{vT+1}, 4, v{vT+1}
    v_and_b32 v{vT}, 3, v{vT}
    v_lshl_add_u32 v{vT}, v{vT}, 6, v{vT+1}
    v_bfe_u32 v{vT+1}, v1, 3, 2
    v_add_u32 v{vT}, v{vT}, v{vT+1}
    v_and_b32 v{vT+1}, 7, v1
    v_lshl_add_u32 v{vT}, v{vT+1}, 3, v{vT}
    v_lshlrev_b32 v{vT}, 7, v{vT}
    s_mov_b32 s35, 0
    s_cmp_lg_u32 s{S_C}, 7
    s_cbranch_scc1 {Lh1}
    ; spare workgroups first wait for a working neighbour's hint line, so that they do not touch the flag lines early
    s_xor_b32 s34, s2, 4
    s_lshl_b32 s34, s34, 7
    s_add_u32 s34, s34, {WS_F1+0x8000}
    {Lh0}:
    s_sleep 4
    buffer_load_dwordx2 {vr(240,2)}, v{vZ}, {WS}, s34 offen {SC}
    s_add_u32 s35, s35, 1
    s_waitcnt vmcnt(0)
    v_cmp_ne_u64 vcc, {vr(240,2)}, {vr(vN,2)}
    s_cmp_ge_u32 s35, {SPIN_MAX}
    s_cbranch_scc1 {Lh2}
    s_cmp_lg_u64 vcc, 0
    s_cbranch_scc1 {Lh0}
    s_branch {Lh2}
    {Lh1}:
    s_waitcnt vmcnt(0)
    s_sleep {optint("sl0", 10)}
    {Lh2}:
    """)
    PD = optint("pd", 1)
    SL1 = optint("sl1", 4)
    TSH = optint("tsh", 4)
    def pollissue(k):
        if "rep" in OPT:
            a(f"""
            s_memrealtime s[58:59]
            s_waitcnt lgkmcnt(0)
            s_bfe_u32 s34, s58, {0x20000 + TSH}
            s_lshl_b32 s34, s34, 15
            s_add_u32 s34, s34, {WS_F1}
            buffer_load_dwordx2 {vr(240+2*k,2)}, v{vT}, {WS}, s34 offen {SC}
            """)
        else:
            a(f"buffer_load_dwordx2 {vr(240+2*k,2)}, v{vT}, {WS}, s{S_FB} offen {SC}")
    for k in range(PD - 1):
        pollissue(k)
        a(f"s_sleep {SL1}")
    a.label(Lp)
    for k in range(PD):
        pollissue((k + PD - 1) % PD)
        a(f"""
        s_waitcnt vmcnt({PD-1})
        v_cmp_ne_u64 vcc, {vr(240+2*k,2)}, {vr(vN,2)}
        s_nop 0
        s_cmp_eq_u64 vcc, 0
        s_cbranch_scc1 {Lsync}
        s_sleep {SL1}
        """)
    a(f"""
    s_add_u32 s35, s35, 1
    s_cmp_lt_u32 s35, {SPIN_MAX}
    s_cbranch_scc1 {Lp}
    """)
    a.label(Lsync)
    vL, vL2, vIdx = 3, 4, 5
    vO = 82
    vS = [32, 48, 64]
    vK = [128, 136]
    vV = [144, 152, 160, 168]
    vQ = 98
    vX = 106
    vG3, vOOB, vP2 = 176, 177, 178
    sG, sM0 = 46, 47
    QX = 98304
    a(f"""
    s_lshl_b32 s34, s{S_HALF}, 5
    s_add_u32 s34, s34, s{S_T}
    s_lshl_b32 s34, s34, 12
    s_lshl_b32 s51, s{S_HEAD}, 18
    s_add_u32 s{sG}, s51, s34
    s_lshl_b32 s48, s{S_TILE}, 12
    s_add_u32 s48, s48, s51
    s_lshl_b32 s34, s{S_HALF}, 10
    s_add_u32 s48, s48, s34
    s_add_u32 s48, s48, {WS_Q}
    s_lshl_b32 s35, s{S_T}, 11
    s_add_u32 s34, s34, s35
    s_add_u32 m0, s34, {QX}
    s_lshl_b32 s{sM0}, s{S_WV}, 12
    s_lshl_b32 s34, s{S_HALF}, 12
    s_and_b32 s35, s{S_WV}, 1
    s_lshl_b32 s35, s35, 10
    s_add_u32 s34, s34, s35
    s_bfe_u32 s35, s{S_WV}, 0x10001
    s_lshl_b32 s50, s35, 14
    s_add_u32 s50, s50, s34
    s_lshl_b32 s35, s35, 17
    s_add_u32 s51, s51, s35
    s_add_u32 s51, s51, s34
    s_barrier
    """)
    stamp(a, 5)
    def load_q():
        a(f"buffer_load_dwordx4 {vr(vQ,4)}, v{vL16}, {WS}, s48 offen {SC}")
        a(f"buffer_load_dwordx4 {vr(vQ+4,4)}, v{vL16}, {WS}, s48 offen offset:1024 {SC}")
    def kvdma(piece):
        a(f"buffer_load_dwordx4 v{vL16}, {WS}, s{sG} offen offset:{piece*1024} {SC} lds")
    def maxchain(regs, t):
        regs = list(regs)
        a(f"v_max3_u32 v{t}, v{regs[0]}, v{regs[1]}, v{regs[2]}")
        rest = regs[3:]
        while len(rest) >= 2:
            a(f"v_max3_u32 v{t}, v{t}, v{rest[0]}, v{rest[1]}")
            rest = rest[2:]
        if rest:
            a(f"v_max_u32 v{t}, v{t}, v{rest[0]}")
    slowpaths = []
    def validate(regs, reload, t):
        Lr, Lb = a.newlabel("L_retry"), a.newlabel("L_back")
        maxchain(regs, t)
        a(f"v_cmp_eq_u32 vcc, -1, v{t}")
        a("s_nop 0")
        a("s_cmp_lg_u64 vcc, 0")
        a(f"s_cbranch_scc1 {Lr}")
        a.label(Lb)
        def emit():
            Ll = a.newlabel("L_rl")
            a.label(Lr)
            a("s_mov_b32 s35, 0")
            a.label(Ll)
            reload()
            a("s_add_u32 s35, s35, 1")
            a("s_waitcnt vmcnt(0)")
            maxchain(regs, t)
            a(f"v_cmp_eq_u32 vcc, -1, v{t}")
            a(f"s_cmp_ge_u32 s35, {SPIN_MAX}")
            a(f"s_cbranch_scc1 {Lb}")
            a("s_cmp_lg_u64 vcc, 0")
            a(f"s_cbranch_scc1 {Ll}")
            a(f"s_branch {Lb}")
        slowpaths.append(emit)
    a(f"""
    buffer_load_dwordx4 v{vL16}, {WS}, s48 offen {SC} lds
    s_mov_b32 m0, s50
    s_add_u32 s35, s51, 8192
    buffer_load_dwordx4 v{vL16}, {WS}, s51 offen {SC} lds
    s_barrier
    buffer_load_dwordx4 v{vL16}, {WS}, s51 offen offset:2048 {SC} lds
    s_add_u32 m0, s50, 8192
    s_nop 0
    buffer_load_dwordx4 v{vL16}, {WS}, s35 offen {SC} lds
    buffer_load_dwordx4 v{vL16}, {WS}, s35 offen offset:2048 {SC} lds
    """)
    def advg():
        a(f"s_add_u32 s{sG}, s{sG}, 16384")
    def stage_dma(st):
        a(f"s_add_u32 m0, s{sM0}, {st*32768}")
        advg()
        for f in range(4): kvdma(f)
    NE = 0
    if optint("s1", 0) == 2:
        a(f"s_add_u32 m0, s{sM0}, 32768")
        advg()
        kvdma(0); kvdma(1)
    for st in range(1, 1 + NE):
        a("s_barrier")
        stage_dma(st)
    a(f"""
    s_lshl_b32 s34, s{S_HALF}, 14
    v_add_u32 v{vL}, s34, v{vL16}
    v_add_u32 v{vL2}, 0x10000, v{vL}
    v_mov_b32 v{vIdx}, 0xdddddddd
    ; wo DMA addresses (phase 3 prefetch)
    v_lshrrev_b32 v{vT}, 3, v0            ; 8w + r
    v_lshrrev_b32 v{vT+1}, 3, v1
    v_and_b32 v{vT+1}, 6, v{vT+1}
    v_and_b32 v{vT+2}, 7, v1
    v_xor_b32 v{vT+1}, v{vT+1}, v{vT+2}
    v_mul_u32_u24 v{vG3}, 896, v{vT}
    v_lshl_add_u32 v{vG3}, v{vT+1}, 4, v{vG3}
    v_mov_b32 v{vOOB}, {OOB}
    s_lshr_b32 s49, s2, 5
    s_min_u32 s49, s49, 6
    s_lshl_b32 s49, s49, 7                ; wo col block byte offset
    s_lshl_b32 s54, s{S_WV}, 10
    s_add_u32 s57, s57, {WS_F2-WS_F1}
    s_mov_b32 s{S_FB}, {WS_F2}
    ; phase 3 token half, and the flags of its O producers: workgroup = (head>>1) + 8*qb + 128*(head&1), head = 8*half + (l&7)
    s_and_b32 s34, s2, 7
    s_lshl_b32 s34, s34, 2
    s_bfe_u32 s35, s2, 0x20003
    s_add_u32 s{S_TH}, s34, s35
    s_lshr_b32 s34, s{S_TH}, 1
    s_lshl_b32 s34, s34, 3
    s_lshl_b32 s35, s{S_HALF}, 2
    s_add_u32 s34, s34, s35
    v_bfe_u32 v{vT}, v1, 1, 2
    v_add_u32 v{vT}, s34, v{vT}
    v_and_b32 v{vT+1}, 1, v1
    v_lshl_add_u32 v{vT}, v{vT+1}, 7, v{vT}
    v_lshlrev_b32 v{vP2}, 7, v{vT}
    """)
    for r in range(16):
        a(f"v_mov_b32 v{vO+r}, 0")
    a(f"s_lshl_b32 s34, s{S_T}, 11")
    a(f"s_add_u32 s34, s34, {QX}")
    a(f"v_add_u32 v{vX}, s34, v{vL16}")
    a(f"s_waitcnt vmcnt({5 if optint('s1', 0) == 2 else 3})")
    stamp(a, 6)
    a("s_barrier")
    stamp(a, 8)
    def ldsaddr(u, off):
        slot = (u // 4) % 3
        o = slot * 32768 + (u % 4) * 4096 + off
        return (vL, o) if o < 65536 else (vL2, o - 65536)
    def rd(dst, u, off):
        r, o = ldsaddr(u, off)
        a(f"ds_read_b128 {vr(dst,4)}, v{r} offset:{o}")
    def rdK(u, f): rd(vK[u % 2] + 4 * f, u, f * 1024)
    def rdV(u, f): rd(vV[u % 4] + 4 * f, u, 2048 + f * 1024)
    def QK(u, i, K=None):
        C = "0" if i == 0 else vr(vS[u % 3], 16)
        K = vK[u % 2] if K is None else K
        a(f"v_mfma_f32_32x32x16_bf16 {vr(vS[u%3],16)}, {vr(K+4*i,4)}, {vr(vQ+4*i,4)}, {C}")
    def PV(u, i):
        a(f"v_smfmac_f32_32x32x32_bf16 {vr(vO,16)}, {vr(vV[u%4]+4*i,4)}, {vr(vS[u%3]+8*i,8)}, v{vIdx}")
    def E(u, r0, r1):
        for r in range(r0, r1):
            a(f"v_exp_f32 v{vS[u%3]+r}, v{vS[u%3]+r}")
    a(f"""
    ds_read_b128 {vr(vQ,4)}, v{vX}
    ds_read_b128 {vr(vV[2],4)}, v{vL16}
    ds_read_b128 {vr(vQ+4,4)}, v{vX} offset:1024
    ds_read_b128 {vr(vV[2]+4,4)}, v{vL16} offset:1024
    """)
    rdK(0, 0); rdK(0, 1); rdK(1, 0); rdK(1, 1)
    a("s_waitcnt lgkmcnt(6)")
    QK(2, 0, vV[2])
    a("s_waitcnt lgkmcnt(4)")
    QK(2, 1, vV[2])
    a("s_waitcnt lgkmcnt(3)")
    QK(0, 0)
    S1 = optint("s1", 0)
    if S1 == 0:
        stage_dma(1)
        a("s_nop 3")
    elif S1 == 1:
        a("s_nop 9")
    else:
        kvdma(2); kvdma(3)
        a("s_nop 7")
    S = vS[2]
    a(f"v_max3_f32 v{vT}, v{S}, v{S+1}, v{S+2}")
    a(f"v_max3_f32 v{vT+1}, v{S+3}, v{S+4}, v{S+5}")
    for r in (6, 10):
        a(f"v_max3_f32 v{vT}, v{vT}, v{S+r}, v{S+r+1}")
        a(f"v_max3_f32 v{vT+1}, v{vT+1}, v{S+r+2}, v{S+r+3}")
    a(f"v_max3_f32 v{vT}, v{vT}, v{S+14}, v{S+15}")
    a(f"""
    v_max_f32 v{vT}, v{vT}, v{vT+1}
    v_mov_b32 v{vT+1}, v{vT}
    s_nop 1
    v_permlane32_swap_b32 v{vT}, v{vT+1}
    v_max_f32 v{vT}, v{vT}, v{vT+1}
    s_mov_b32 exec_lo, 0
    v_cvt_pk_bf16_f32 v{vQ+6}, -v{vT}, 0
    s_mov_b32 exec_lo, -1
    s_waitcnt lgkmcnt(0)
    """)
    QK(0, 1)
    if S1 == 1: stage_dma(1)
    LATEB = "lateb" in OPT
    if not LATEB:
        a("s_waitcnt vmcnt(4)")
        a("s_barrier")
        rdV(0, 0); rdV(0, 1); rdV(1, 0); rdV(1, 1); rdK(2, 0); rdK(2, 1)
        a("s_nop 1")
    stamp(a, 9)
    F2AT, P2AT = optint("f2at", 28), optint("p2at", 31)
    OCAT = optint("ocat", 6)
    assert OCAT <= 16 and F2AT >= 25
    plan = {t: ([], []) for t in range(32)}
    plan[0] = ([(2, 0)], [(2, 1)]); plan[1] = ([(2, 2)], [(2, 3)])
    plan[2] = ([(3, 0)], [(3, 1)]); plan[3] = ([], [(3, 2)]); plan[4] = ([], [(3, 3)])
    for t in range(5, 21): plan[t] = ([], [((t - 1) // 4 + 3, (t - 1) % 4)])
    seq = [("s", 1)] * 4
    def vm(ins, tag):
        a(ins); seq.append(tag)
    def pieces(L):
        for st, p in L:
            kvdma(p); seq.append(("s", st))
    for t in range(32):
        first = [st for st, p in plan[t][0] + plan[t][1] if p == 0]
        if t + 1 < 32: QK(t + 1, 0)
        if first:
            advg()
        elif 21 <= t <= 27:
            a(f"s_add_u32 s34, s49, {(t-21)*57344}")
        if t == 0 and LATEB: a("s_nop 9")
        elif t + 2 < 32: rdV(t + 2, 0)
        E(t, 0, 4)
        if t + 1 < 32: QK(t + 1, 1)
        if first:
            a(f"s_add_u32 m0, s{sM0}, {(first[0] % 3) * 32768}")
        elif 21 <= t <= 28:
            a(f"s_add_u32 m0, s54, {98304 + (t-21)*8192}")
        if t == 0 and LATEB:
            a("s_waitcnt vmcnt(4)")
            a("s_barrier")
            rdV(0, 0); rdV(0, 1); rdV(1, 0); rdV(1, 1); rdK(2, 0); rdK(2, 1); rdV(2, 0)
        if t + 2 < 32: rdV(t + 2, 1)
        E(t, 4, 8)
        if t >= 1: PV(t - 1, 1)
        if t % 4 == 1 and t <= 25:
            last = max(k for k, tg in enumerate(seq) if tg == ("s", (t + 3) // 4))
            a(f"s_waitcnt vmcnt({len(seq) - 1 - last}) lgkmcnt(0)")
            a("s_barrier")
        a(f"s_setprio {3 - ((t - 1) % 4) if t < 25 else 3 - (t - 25) // 2}")
        pieces(plan[t][0])
        if t + 3 < 32: rdK(t + 3, 0)
        E(t, 8, 12)
        if t == 0:
            a("s_waitcnt lgkmcnt(5)")
        PV(t, 0)
        a("s_waitcnt lgkmcnt(3)" if t + 3 < 32 else "s_waitcnt lgkmcnt(0)")
        pieces(plan[t][1])
        if 21 <= t <= 27:
            vm(f"buffer_load_dwordx4 v{vG3}, s[{S_WO}:{S_WO+3}], s34 offen lds", "wo")
        elif t == 28:
            vm(f"buffer_load_dwordx4 v{vOOB}, s[{S_WO}:{S_WO+3}], 0 offen lds", "wo")
        if t == P2AT:
            vm(f"buffer_load_dwordx2 {vr(vSen,2)}, v{vP2}, {WS}, s{S_FB} offen {SC}", "x")
        if t + 3 < 32:
            rdK(t + 3, 1)
        if t == OCAT and "oc1" not in OPT: vm(oclear, "x")
        if t == F2AT: vm(f"buffer_store_dwordx2 {vr(vN,2)}, v{vF}, {WS}, s57 offen {SC}", "x")
        E(t, 12, 16)
    NWO = len(seq) - 1 - max(k for k, tg in enumerate(seq) if tg == "wo")
    a("s_nop 1")
    PV(31, 1)
    stamp(a, 10)
    a.c("---- combine the two kv halves in slot 0 (stage 6 data is dead)")
    LB, LJ, Lslow, Lst = a.newlabel("L_halfB"), a.newlabel("L_join"), a.newlabel("L_slow"), a.newlabel("L_store")
    a(f"""
    s_mul_i32 s34, s{S_WV}, 2304
    s_xor_b32 s35, s{S_WV}, 4
    s_mul_i32 s35, s35, 2304
    v_add_u32 v{vT}, s34, v{vL16}
    v_add_u32 v{vT+1}, s35, v{vL16}
    v_lshl_add_u32 v{vT+2}, v1, 2, s34     ; own l word
    v_or_b32 v{vT+3}, 32, v1
    v_lshl_add_u32 v{vT+4}, v{vT+3}, 2, s35
    v_lshl_add_u32 v{vT+3}, v{vT+3}, 2, s34
    s_nop 0
    s_cmp_lg_u32 s{S_HALF}, 0
    s_cbranch_scc1 {LB}
    ds_write_b128 v{vT}, {vr(vO+8,4)}
    ds_write_b128 v{vT}, {vr(vO+12,4)} offset:1024
    ds_write_b32 v{vT+2}, v{vO+12} offset:2048
    s_branch {LJ}
    {LB}:
    ds_write_b128 v{vT}, {vr(vO,4)}
    ds_write_b128 v{vT}, {vr(vO+4,4)} offset:1024
    ds_write_b32 v{vT+2}, v{vO+12} offset:2048
    s_nop 1
    """)
    for r in range(8):
        a(f"v_mov_b32 v{vO+r}, v{vO+8+r}")
    a(f"""
    {LJ}:
    s_waitcnt vmcnt({NWO}) lgkmcnt(0)
    s_barrier
    {f"buffer_load_dwordx2 {vr(vSen+2,2)}, v{vP2}, {WS}, s{S_FB} offen {SC}" if "p2b" in OPT else ""}
    ds_read_b32 v{vX+8}, v{vT+3} offset:2048
    ds_read_b32 v{vX+9}, v{vT+4} offset:2048
    ds_read_b128 {vr(vX,4)}, v{vT+1}
    ds_read_b128 {vr(vX+4,4)}, v{vT+1} offset:1024
    s_waitcnt lgkmcnt(2)
    v_add_f32 v{vX+8}, v{vX+8}, v{vX+9}
    v_rcp_f32 v{vX+9}, v{vX+8}
    s_mov_b32 s34, 0x2b800000
    s_mov_b32 s35, 0x53800000
    s_waitcnt lgkmcnt(0)
    """)
    if "nopk" in OPT:
        for r in range(8):
            a(f"v_add_f32 v{vO+r}, v{vO+r}, v{vX+r}")
        for r in range(8):
            a(f"v_fmac_f32 v{vX+8}, 0, v{vO+r}")
    else:
        for r in range(0, 8, 2):
            a(f"v_pk_add_f32 {vr(vO+r,2)}, {vr(vO+r,2)}, {vr(vX+r,2)}")
        a(f"v_pk_mul_f32 {vr(vX+10,2)}, {vr(vO,2)}, 0")
        for r in range(2, 8, 2):
            a(f"v_pk_fma_f32 {vr(vX+10,2)}, {vr(vO+r,2)}, 0, {vr(vX+10,2)}")
        a(f"v_add_f32 v{vX+10}, v{vX+10}, v{vX+11}")
        a(f"v_add_f32 v{vX+8}, v{vX+8}, v{vX+10}")
    a(f"""
    v_cmp_nle_f32 vcc, s34, v{vX+8}
    v_cmp_nge_f32 s[58:59], s35, v{vX+8}
    s_nop 0
    s_or_b64 vcc, vcc, s[58:59]
    s_cbranch_scc1 {Lslow}
    {Lst}:
    s_mov_b32 s35, 0xfffffffe
    """)
    if "nopk" in OPT:
        for r in range(8):
            a(f"v_mul_f32 v{vO+r}, v{vO+r}, v{vX+9}")
    else:
        for r in range(0, 8, 2):
            a(f"v_pk_mul_f32 {vr(vO+r,2)}, {vr(vO+r,2)}, {vr(vX+8,2)} op_sel:[0,1] op_sel_hi:[1,1]")
    for t in range(4):
        a(f"v_cvt_pk_bf16_f32 v{vX+t}, v{vO+2*t}, v{vO+2*t+1}")
    for t in range(4):
        a(f"v_min_u32 v{vX+t}, s35, v{vX+t}")
    Lnz = a.newlabel("L_nz")
    a(f"""
    s_cmp_eq_u32 s{S_HALF}, 0
    s_cbranch_scc1 {Lnz}
    s_mov_b32 exec_lo, 0
    v_mov_b32 v{vX+2}, 0
    v_mov_b32 v{vX+3}, 0
    s_mov_b32 exec_lo, -1
    {Lnz}:
    buffer_store_dwordx4 {vr(vX,4)}, v{vL16}, {WS}, s{S_OA} offen {SC}
    s_cmp_ge_u32 s2, 224
    s_cbranch_scc1 {"L_fin" if STAMPS else done}
    """)
    stamp(a, 11)
    vOg = 3
    vA = 8
    vAc3 = 32
    vOf = 48
    vWo = 128
    WOB_L = 98304
    a(f"""
    v_mov_b32 v2, v{vP2}
    v_lshrrev_b32 v{vT}, 4, v1            ; g
    v_and_b32 v{vT+1}, 15, v1
    v_bfe_u32 v{vT+2}, v1, 2, 2           ; r'
    v_bfe_u32 v{vT+3}, v1, 4, 1           ; g&1
    v_lshrrev_b32 v{vT+4}, 5, v1          ; g>>1
    v_lshl_add_u32 v{vT+5}, v{vT+3}, 2, v{vT+2}
    v_lshl_add_u32 v{vT+5}, v{vT+4}, 4, v{vT+5}   ; row
    v_lshrrev_b32 v{vT+6}, 1, v{vT+2}
    v_lshl_add_u32 v{vT+6}, v{vT+3}, 1, v{vT+6}   ; s0
    v_lshlrev_b32 v{vT+6}, 5, v{vT+6}
    v_lshl_add_u32 v{vT+5}, v{vT+5}, 7, v{vT+6}
    v_and_b32 v{vT+6}, 3, v1
    v_lshl_add_u32 v{vT+5}, v{vT+6}, 3, v{vT+5}
    s_mul_i32 s34, s{S_HALF}, {8*28*128}
    s_add_u32 s34, s34, {WOB_L}
    v_add_u32 v{vA}, s34, v{vT+5}
    v_xor_b32 v{vA+1}, 32, v{vA}
    v_xor_b32 v{vA+2}, 64, v{vA}
    v_xor_b32 v{vA+3}, 0x60, v{vA}
    """)
    def wr(hh):
        for ct in range(4):
            for u in range(2):
                a(f"ds_read_b64_tr_b16 {vr(vWo+16*hh+4*ct+2*u,2)}, v{vA+(ct^(2*(hh&1)))} offset:{(28*hh+8*u)*128}")
    NW1 = optint("nw1", 4)
    for hh in range(NW1):
        wr(hh)
        a("s_waitcnt lgkmcnt(4)")
    XB3 = 20480
    Lf2r, Lf2b = a.newlabel("L_f2r"), a.newlabel("L_f2b")
    a(f"""
    v_lshlrev_b32 v{vOg}, 9, v{vT}
    v_lshl_add_u32 v{vOg}, v{vT+1}, 4, v{vOg}
    s_lshl_b32 s34, s{S_TH}, 1
    s_lshr_b32 s35, s{S_T}, 1
    s_add_u32 s34, s34, s35
    s_lshl_b32 s34, s34, 15
    s_lshl_b32 s35, s{S_HALF}, 14
    s_add_u32 s48, s34, s35
    s_and_b32 s34, s{S_T}, 1
    s_lshl_b32 s34, s34, 8
    s_add_u32 s48, s48, s34
    s_add_u32 s48, s48, {WS_O}
    s_add_u32 s46, s48, 4096
    s_add_u32 s47, s48, 8192
    s_add_u32 s51, s48, 12288
    v_and_b32 v{vT+4}, 7, v1
    v_lshlrev_b32 v{vT+5}, 2, v1
    v_and_b32 v{vT+5}, 8, v{vT+5}
    v_or_b32 v{vT+4}, v{vT+4}, v{vT+5}            ; f(slot)
    v_lshrrev_b32 v{vT+5}, 1, v1
    v_and_b32 v{vT+5}, 8, v{vT+5}                 ; (g&1)*8
    v_lshrrev_b32 v{vT+6}, 5, v1                  ; g>>1
    v_or_b32 v{vT+5}, v{vT+5}, v{vT+6}
    v_xor_b32 v{vT+4}, v{vT+4}, v{vT+5}
    v_lshlrev_b32 v{vT+4}, 4, v{vT+4}
    v_lshl_add_u32 v{vT+4}, v{vT+1}, 8, v{vT+4}
    s_lshl_b32 s34, s{S_WV}, 12
    v_add_u32 v{vT+8}, s34, v{vT+4}
    v_xor_b32 v{vT+9}, 32, v{vT+8}
    v_xor_b32 v{vT+10}, 64, v{vT+8}
    v_xor_b32 v{vT+11}, 0x60, v{vT+8}
    v_lshrrev_b32 v{vT+5}, 3, v0
    v_and_b32 v{vT+6}, 7, v0
    v_and_b32 v{vT+2}, 7, v{vT+5}
    v_lshlrev_b32 v{vT+3}, 2, v{vT+5}
    v_and_b32 v{vT+3}, 8, v{vT+3}
    v_or_b32 v{vT+2}, v{vT+2}, v{vT+3}
    v_xor_b32 v{vT+2}, v{vT+2}, v{vT+6}
    v_lshlrev_b32 v{vT+2}, 4, v{vT+2}
    v_lshl_add_u32 v{vT+2}, v{vT+5}, 8, v{vT+2}
    v_xor_b32 v{vT+3}, 0x80, v{vT+2}
    v_and_b32 v{vT+4}, 0x33, v{vT+5}
    v_lshlrev_b32 v{vT+7}, 1, v{vT+5}
    v_and_b32 v{vT+7}, 8, v{vT+7}
    v_lshrrev_b32 v{vT+5}, 1, v{vT+5}
    v_and_b32 v{vT+5}, 4, v{vT+5}
    v_or3_b32 v{vT+4}, v{vT+4}, v{vT+7}, v{vT+5}
    v_mul_u32_u24 v{vT+4}, 896, v{vT+4}
    v_lshl_add_u32 v{vT+4}, v{vT+6}, 4, v{vT+4}
    s_mul_i32 s50, s{S_TH}, 57344
    s_add_u32 s50, s50, s49
    s_waitcnt vmcnt({2 if "p2b" in OPT else 1})
    v_cmp_ne_u64 vcc, {vr(vSen,2)}, {vr(vN,2)}
    s_nop 0
    s_cmp_lg_u64 vcc, 0
    s_cbranch_scc1 {Lf2r}
    {Lf2b}:
    s_mov_b32 s35, 0
    """)
    def f2retry():
        Ll = a.newlabel("L_f2l")
        P2B = f"s_waitcnt vmcnt(1)\nv_cmp_ne_u64 vcc, {vr(vSen+2,2)}, {vr(vN,2)}\ns_nop 0\ns_cmp_eq_u64 vcc, 0\ns_cbranch_scc1 {Lf2b}" if "p2b" in OPT else ""
        a(f"""
        {Lf2r}:
        s_mov_b32 s35, 0
        {P2B}
        {Ll}:
        s_sleep {optint("sl2", 2)}
        buffer_load_dwordx2 {vr(vSen,2)}, v2, {WS}, s{S_FB} offen {SC}
        s_add_u32 s35, s35, 1
        s_waitcnt vmcnt(0)
        v_cmp_ne_u64 vcc, {vr(vSen,2)}, {vr(vN,2)}
        s_cmp_ge_u32 s35, {SPIN_MAX}
        s_cbranch_scc1 {Lf2b}
        s_cmp_lg_u64 vcc, 0
        s_cbranch_scc1 {Ll}
        s_branch {Lf2b}
        """)
    slowpaths.append(f2retry)
    stamp(a, 12)
    def oload(hh):
        so = ["s48", "s46", "s47", "s51"][hh // 2]
        a(f"buffer_load_dwordx4 {vr(vOf+4*hh,4)}, v{vOg}, {WS}, {so} offen offset:{(hh%2)*2048} {SC}")
    def ocheck(hh, first):
        o4 = vOf + 4 * hh
        Lacc, Lskip = a.newlabel("L_oa"), a.newlabel("L_os")
        if not first:
            a(f"s_bitcmp0_b32 s34, {hh}")
            a(f"s_cbranch_scc1 {Lskip}")
            a(f"s_bitcmp0_b32 s56, {hh}")
            a(f"s_cbranch_scc1 {Lacc}")
        a(f"""
        v_max3_u32 v{vT+5}, v{o4}, v{o4+1}, v{o4+2}
        v_max_u32 v{vT+5}, v{vT+5}, v{o4+3}
        v_cmp_eq_u32 vcc, -1, v{vT+5}
        s_nop 0
        s_cmp_lg_u64 vcc, 0
        s_cbranch_scc1 {Lskip}
        s_bitset0_b32 s56, {hh}
        {Lacc}:
        """)
        if hh:
            a(f"s_and_b32 s58, s56, {(1 << hh) - 1}")
            a(f"s_cbranch_scc1 {Lskip}")
        a(f"s_bitset0_b32 s34, {hh}")
        for ct in range(4):
            C = "0" if hh == 0 else vr(vAc3 + 4 * ct, 4)
            a(f"v_mfma_f32_16x16x32_bf16 {vr(vAc3+4*ct,4)}, {vr(vWo+16*hh+4*ct,4)}, {vr(vOf+4*hh,4)}, {C}")
        a.label(Lskip)
    for hh in range(8): oload(hh)
    for hh in range(NW1, 8):
        wr(hh)
        a("s_waitcnt lgkmcnt(4)")
    Lo, Lo2, Lod = a.newlabel("L_o"), a.newlabel("L_o2"), a.newlabel("L_od")
    a(f"s_branch {Lo2}")
    a.label(Lo)
    for hh in range(8): oload(hh)
    a.label(Lo2)
    for hh in range(8):
        a(f"s_waitcnt vmcnt({7-hh}) lgkmcnt(0)")
        for ct in range(4):
            C = "0" if hh == 0 else vr(vAc3 + 4 * ct, 4)
            a(f"v_mfma_f32_16x16x32_bf16 {vr(vAc3+4*ct,4)}, {vr(vWo+16*hh+4*ct,4)}, {vr(vOf+4*hh,4)}, {C}")
        o4 = vOf + 4 * hh
        if hh == 0:
            a(f"v_max3_u32 v{vT+5}, v{o4}, v{o4+1}, v{o4+2}")
            a(f"v_max_u32 v{vT+5}, v{vT+5}, v{o4+3}")
        else:
            a(f"v_max3_u32 v{vT+5}, v{vT+5}, v{o4}, v{o4+1}")
            a(f"v_max3_u32 v{vT+5}, v{vT+5}, v{o4+2}, v{o4+3}")
    a(f"""
    v_cmp_eq_u32 vcc, -1, v{vT+5}
    s_add_u32 s35, s35, 1
    s_cmp_ge_u32 s35, {SPIN_MAX}
    s_cbranch_scc1 {Lod}
    s_cmp_lg_u64 vcc, 0
    s_cbranch_scc1 {Lo}
    {Lod}:
    """)
    stamp(a, 13)
    if STAMPS: a("s_mov_b32 s94, s35")
    a("s_nop 1")
    for ct in range(4):
        a(f"ds_write_b128 v{vT+8+ct}, {vr(vAc3+4*ct,4)} offset:{XB3}")
    a(f"""
    s_waitcnt lgkmcnt(0)
    s_barrier
    ds_read_b128 {vr(vX,4)}, v{vT+2} offset:{XB3}
    ds_read_b128 {vr(vX+8,4)}, v{vT+2} offset:{XB3+16384}
    ds_read_b128 {vr(vX+4,4)}, v{vT+3} offset:{XB3}
    ds_read_b128 {vr(vX+12,4)}, v{vT+3} offset:{XB3+16384}
    s_waitcnt lgkmcnt(2)
    """)
    for r in (0, 2):
        a(f"v_pk_add_f32 {vr(vX+r,2)}, {vr(vX+r,2)}, {vr(vX+8+r,2)}")
    a("s_waitcnt lgkmcnt(0)")
    for r in (4, 6):
        a(f"v_pk_add_f32 {vr(vX+r,2)}, {vr(vX+r,2)}, {vr(vX+8+r,2)}")
    for t in range(4):
        a(f"v_cvt_pk_bf16_f32 v{vX+8+t}, v{vX+2*t}, v{vX+2*t+1}")
    a(f"buffer_store_dwordx4 {vr(vX+8,4)}, v{vT+4}, s[{S_OUT}:{S_OUT+3}], s50 offen {OSC}")
    if STAMPS:
        a("s_waitcnt vmcnt(0)")
        stamp(a, 14)
        a.label("L_fin")
        a("s_memrealtime s[96:97]")
        a("s_waitcnt lgkmcnt(0)")
        for i in range(15):
            a(f"v_mov_b32 v{8+i}, s{64+2*i}")
        if "cyc" in OPT: a("s_sub_u32 s94, s44, s42")
        a("v_mov_b32 v23, s94")
        a("v_mov_b32 v24, s98")
        a("v_mov_b32 v25, s96")
        a("v_mov_b32 v26, 0")
        a("v_mov_b32 v27, 0")
        a(f"""
        s_lshl_b32 s34, s2, 3
        s_add_u32 s34, s34, s{S_WV}
        s_lshl_b32 s34, s34, 7
        s_add_u32 s34, s34, {WS_ST}
        s_mov_b64 exec, 1
        buffer_store_dwordx4 v[8:11], v{vZ}, {WS}, s34 offen
        buffer_store_dwordx4 v[12:15], v{vZ}, {WS}, s34 offen offset:16
        buffer_store_dwordx4 v[16:19], v{vZ}, {WS}, s34 offen offset:32
        buffer_store_dwordx4 v[20:23], v{vZ}, {WS}, s34 offen offset:48
        buffer_store_dwordx4 v[24:27], v{vZ}, {WS}, s34 offen offset:64
        """)
    a.label(done)
    a("s_endpgm")
    for e in slowpaths: e()
    a.label(Lspare)
    a(f"""
    s_cmp_lg_u32 s2, 196
    s_cbranch_scc1 {Lnn}
    ; one spare workgroup publishes this launch's hand-off tag in d_debug
    s_or_b32 s62, s62, 1
    v_mov_b32 v{vN}, s62
    v_mov_b32 v{vN+1}, s63
    buffer_store_dwordx2 {vr(vN,2)}, v{vF}, {DBG}, 0 offen {SC}
    s_waitcnt vmcnt(0)
    v_lshlrev_b32 v{vT+10}, 7, v0
    {f"buffer_load_dword v{vT+11}, v{vT+10}, {WS}, s{S_FB} offen sc0 sc1 nt" if "fwarm" in OPT else ""}
    {Lnn}:
    {tagload}
    s_branch {Lpub}
    """)
    a.label(Lslow)
    L1, L2, Lh = a.newlabel("L_s1"), a.newlabel("L_s2"), a.newlabel("L_sh")
    sCnt = 48
    a(f"""
    s_mov_b32 exec_lo, 0
    v_mov_b32 v{vQ+6}, 0
    v_mov_b32 v{vQ+7}, 0
    s_mov_b32 exec_lo, -1
    v_mov_b32 v{vT}, 0xff800000
    s_lshl_b32 s{sG}, s{S_HEAD}, 18
    s_mov_b32 s{sCnt}, 0
    {L1}:
    buffer_load_dwordx4 {vr(vK[0],4)}, v{vL16}, {WS}, s{sG} offen {SC}
    buffer_load_dwordx4 {vr(vK[0]+4,4)}, v{vL16}, {WS}, s{sG} offen offset:1024 {SC}
    s_waitcnt vmcnt(0)
    """)
    QK(0, 0); QK(0, 1)
    a("s_nop 15")
    for r in range(0, 16, 2):
        a(f"v_max3_f32 v{vT}, v{vT}, v{vS[0]+r}, v{vS[0]+r+1}")
    a(f"""
    s_add_u32 s{sG}, s{sG}, 4096
    s_add_u32 s{sCnt}, s{sCnt}, 1
    s_cmp_lt_u32 s{sCnt}, 64
    s_cbranch_scc1 {L1}
    v_mov_b32 v{vT+1}, v{vT}
    s_nop 1
    v_permlane32_swap_b32 v{vT}, v{vT+1}
    s_nop 1
    v_max_f32 v{vT}, v{vT}, v{vT+1}
    v_and_b32 v{vT+1}, 0xffff0000, v{vT}       ; hi
    v_sub_f32 v{vT+2}, v{vT}, v{vT+1}
    v_and_b32 v{vT+3}, 0xffff0000, v{vT+2}     ; mid
    v_sub_f32 v{vT+2}, v{vT+2}, v{vT+3}        ; lo
    s_mov_b32 exec_lo, 0
    v_cvt_pk_bf16_f32 v{vQ+6}, -v{vT+1}, -v{vT+3}
    v_cvt_pk_bf16_f32 v{vQ+7}, -v{vT+2}, 0
    s_mov_b32 exec_lo, -1
    """)
    for r in range(16):
        a(f"v_mov_b32 v{vO+r}, 0")
    a(f"""
    s_lshl_b32 s{sG}, s{S_HEAD}, 18
    s_mov_b32 s{sCnt}, 0
    {L2}:
    buffer_load_dwordx4 {vr(vK[0],4)}, v{vL16}, {WS}, s{sG} offen {SC}
    buffer_load_dwordx4 {vr(vK[0]+4,4)}, v{vL16}, {WS}, s{sG} offen offset:1024 {SC}
    buffer_load_dwordx4 {vr(vV[0],4)}, v{vL16}, {WS}, s{sG} offen offset:2048 {SC}
    buffer_load_dwordx4 {vr(vV[0]+4,4)}, v{vL16}, {WS}, s{sG} offen offset:3072 {SC}
    s_waitcnt vmcnt(0)
    """)
    QK(0, 0); QK(0, 1)
    a("s_nop 15")
    E(0, 0, 16)
    a("s_nop 1")
    PV(0, 0); PV(0, 1)
    a(f"""
    s_nop 7
    s_add_u32 s{sG}, s{sG}, 4096
    s_add_u32 s{sCnt}, s{sCnt}, 1
    s_cmp_lt_u32 s{sCnt}, 64
    s_cbranch_scc1 {L2}
    s_nop 15
    v_mov_b32 v{vX+8}, v{vO+12}
    v_mov_b32 v{vX+9}, v{vO+12}
    s_nop 1
    v_permlane32_swap_b32 v{vX+8}, v{vX+9}
    s_nop 1
    v_rcp_f32 v{vX+9}, v{vX+9}
    s_cmp_eq_u32 s{S_HALF}, 0
    s_cbranch_scc1 {Lh}
    """)
    for r in range(8):
        a(f"v_mov_b32 v{vO+r}, v{vO+8+r}")
    a(f"""
    {Lh}:
    s_nop 1
    s_branch {Lst}
    """)
    a.label("L_end")
    a.raw('.section .rodata,"a"')
    a.raw(".p2align 6")
    a.raw(kernel_desc(NAME, 256, 102).rstrip("\n"))
    return a.text()

if __name__ == "__main__":
    out = sys.argv[1] if len(sys.argv) > 1 else "standalone__softmax_full_mha__prompt.s"
    OPT.update(sys.argv[2:])
    STAMPS = "stamps" in OPT
    open(out, "w").write(build())
```

```python
import sys, struct, math
from asmlib import *

WS_KV = 0
WS_Q = 0x400000
WS_O = 0x800000
WS_F1 = 0xa00000
WS_F2 = 0xa40000
WS_ST = 0xc00000
WS_BYTES = 0xd00000
OOB = 0x40000000
XB, WB, WOB, OUTB = 1835008, 1204224, 401408, 1835008
QSCALE = struct.unpack("<I", struct.pack("<f", math.log2(math.e) / math.sqrt(28.0)))[0]
SPIN_MAX = 1 << 18

S_X, S_W, S_WS, S_WO, S_OUT, S_DBG = 8, 12, 16, 20, 24, 4
S_QB, S_WV, S_HEAD, S_ROT = 28, 31, 32, 33
S_TH, S_TILE, S_C, S_HALF, S_T = 52, 53, 55, 60, 61
S_M0 = 36
S_OA, S_FB = 40, 41
SC = "sc1"
OPT = set()
STAMPS = False
NAME = "standalone__softmax_full_mha__prompt_kernel"
WS = f"s[{S_WS}:{S_WS+3}]"
DBG = f"s[{S_DBG}:{S_DBG+3}]"

def stamp(a, i):
    if STAMPS:
        a(f"s_memrealtime s[{64+2*i}:{65+2*i}]")

def optint(name, default):
    for o in OPT:
        if o.startswith(name + "="):
            return int(o.split("=")[1])
    return default

def build():
    a = Asm()
    HEADER = open("standalone__softmax_full_mha__prompt.s.ref").read().split("; Override launch")[0]
    a.raw(HEADER.rstrip("\n"))
    a.raw("; @launch grid=(256,1,1) block=(512,1,1) lds=163840")
    a.raw("""; One fused launch, 256 workgroups x 8 waves (one per CU):
;  phase 1  Q/K/V projection: 224 workgroups, tile = 64 tokens x {K,V,Q} 64-column blocks, LDS-DMA staging; results are
;           written to d_ws in MFMA-fragment order (write-through), then one flag line per workgroup.
;           check (row-sum range, finite O) falls back to an exact two-pass path with the true row max.
; Hand-off flags carry a per-launch tag that one workgroup publishes in d_debug.""")
    a.raw('.amdgcn_target "amdgcn-amd-amdhsa--gfx950"\n.text')
    a.raw(f".globl {NAME}\n.p2align 8\n.type {NAME},@function\n{NAME}:")
    if STAMPS:
        a("s_memrealtime s[98:99]")
    done = "L_done"
    OSC = "sc0 sc1" if "oplain" not in OPT else ""
    vXg, vWg = 2, 3
    vWa = 4
    vF = 6
    vZ = 7
    vXa = 8
    vT = 16
    vAcc = 32
    vWf = 48
    vD = 64
    vAd = 76
    vN = 80
    vWqa = 122
    vL16 = 123
    vSen = 124
    vXf = 128
    sC, sXo, sWo, sCol, sM, sXbase = 46, 47, 48, 49, 50, 51
    SLOT = 24576
    WQB = 98304
    Lspare, Lsync = a.newlabel("L_spare"), a.newlabel("L_sync1")
    if "rep" not in OPT and "nofull" not in OPT:
        VFSET = f"""v_lshrrev_b32 v{vT+1}, 5, v0
        v_and_b32 v{vT+2}, 15, v1
        v_lshlrev_b32 v{vT+2}, 3, v{vT+2}
        v_and_b32 v{vT+3}, 16, v1
        v_lshl_add_u32 v{vT+2}, v{vT+3}, 11, v{vT+2}
        v_cmp_eq_u32 vcc, 14, v{vT+1}"""
    elif "rep" in OPT:
        VFSET = f"""v_lshrrev_b32 v{vT+1}, 6, v0
        v_and_b32 v{vT+2}, 15, v1
        v_lshlrev_b32 v{vT+2}, 3, v{vT+2}
        v_and_b32 v{vT+3}, 48, v1
        v_lshl_add_u32 v{vT+2}, v{vT+3}, 11, v{vT+2}
        v_cmp_eq_u32 vcc, 7, v{vT+1}"""
    else:
        VFSET = f"""v_lshrrev_b32 v{vT+1}, 1, v0
        v_lshlrev_b32 v{vT+2}, 15, v1
        v_cmp_eq_u32 vcc, 0xe0, v{vT+1}"""
    a(f"""
    s_cmp_ge_u32 s2, 256
    s_cbranch_scc1 {done}
    s_load_dwordx4 s[36:39], s[0:1], 0
    s_load_dwordx4 s[40:43], s[0:1], 16
    s_load_dwordx4 {DBG}, s[0:1], 32
    s_memrealtime s[62:63]
    v_lshrrev_b32 v{vT}, 6, v0
    v_and_b32 v1, 63, v0
    s_and_b32 s34, s2, 3                  ; tg
    s_bfe_u32 s35, s2, 0x30003            ; r5 & 7
    v_readfirstlane_b32 s{S_WV}, v{vT}
    s_lshl_b32 s{S_TH}, s34, 3
    s_add_u32 s{S_TH}, s{S_TH}, s35
    s_lshr_b32 s{S_C}, s2, 6              ; cl
    s_lshl_b32 s{sC}, s{S_C}, 1
    s_add_u32 s{sC}, s{sC}, s35
    s_cmp_ge_u32 s{sC}, 7
    s_cselect_b32 s35, 7, 0
    s_sub_u32 s{sC}, s{sC}, s35
    s_and_b32 s35, s2, 4
    s_lshr_b32 s34, s2, 3
    s_xor_b32 s34, s34, s2
    s_and_b32 s34, s34, 4
    s_cmp_eq_u32 s{S_C}, 3
    s_cselect_b32 s35, s34, s35
    s_add_u32 s{S_C}, s{S_C}, s35
    s_mov_b32 s{S_X+2}, {XB}
    s_mov_b32 s{S_X+3}, 0x00020000
    s_mov_b32 s{S_W+2}, {WB}
    s_mov_b32 s{S_W+3}, 0x00020000
    s_cmp_lg_u32 s{S_C}, 7
    s_cbranch_scc1 L_work
    ; spare workgroup: pull the kernel's own code into this XCD's L2
    s_getpc_b64 s[44:45]
    L_pc:
    s_sub_u32 s44, s44, L_pc-{NAME}
    s_subb_u32 s45, s45, 0
    s_mov_b32 s46, L_end-{NAME}
    s_mov_b32 s47, 0x00020000
    v_lshlrev_b32 v{vT+10}, 7, v0
    buffer_load_dword v{vT+11}, v{vT+10}, s[44:47], 0 offen
    s_and_b32 s34, s{S_TH}, 3
    s_and_b32 s35, s2, 4
    s_cmp_eq_u32 s34, 3
    s_cselect_b32 s35, 0, s35
    s_add_u32 s34, s34, s35
    s_lshl_b32 s34, s34, 7
    v_mul_u32_u24 v{vT+10}, 2688, v0
    s_waitcnt lgkmcnt(0)
    s_mov_b32 s{S_W}, s38
    s_mov_b32 s{S_W+1}, s39
    {"s_waitcnt vmcnt(0)" if "wqlate" in OPT else ""}
    {"s_sleep " + str(optint("wqs", 0)) if "wqlate" in OPT else ""}
    {"" if "wqown" in OPT else f"buffer_load_dword v{vT+11}, v{vT+10}, s[{S_W}:{S_W+3}], s34 offen"}
    s_branch L_sp1
    L_work:
    v_lshrrev_b32 v{vT+2}, 3, v0          ; 8w + r
    v_and_b32 v{vT+1}, 7, v1              ; pos
    v_bfe_u32 v{vT+3}, v0, 4, 3           ; swz = ((8w+r)>>1)&7
    v_xor_b32 v{vT+3}, v{vT+3}, v{vT+1}
    v_mul_u32_u24 v{vXg}, 896, v{vT+2}
    v_lshl_add_u32 v{vXg}, v{vT+3}, 4, v{vXg}
    v_lshrrev_b32 v{vT+3}, 2, v1
    v_and_b32 v{vT+3}, 4, v{vT+3}         ; ((r>>1)&1)*4
    v_xor_b32 v{vT+3}, v{vT+3}, v{vT+1}
    v_mul_u32_u24 v{vWg}, 2688, v{vT+2}
    v_lshl_add_u32 v{vWg}, v{vT+3}, 4, v{vWg}
    s_mul_i32 s{sXbase}, s{S_TH}, 57344
    s_lshl_b32 s{sCol}, s{S_C}, 7
    s_lshl_b32 s{sM}, s{S_WV}, 10
    s_waitcnt lgkmcnt(0)
    s_mov_b32 s{S_X}, s36
    s_mov_b32 s{S_X+1}, s37
    s_mov_b32 s{S_W}, s38
    s_mov_b32 s{S_W+1}, s39
    """)
    def adv():
        a(f"""
        s_add_u32 s{sC}, s{sC}, 1
        s_cmp_eq_u32 s{sC}, 7
        s_cselect_b32 s{sC}, 0, s{sC}
        """)
    def issue_chunk(i):
        sl = (i % 4) * SLOT
        a(f"""
        s_lshl_b32 s{sXo}, s{sC}, 7
        s_add_u32 s{sXo}, s{sXo}, s{sXbase}
        s_add_u32 m0, s{sM}, {sl}
        s_mul_i32 s{sWo}, s{sC}, 172032
        buffer_load_dwordx4 v{vXg}, s[{S_X}:{S_X+3}], s{sXo} offen lds
        s_add_u32 m0, s{sM}, {sl+8192-896}
        s_add_u32 s{sWo}, s{sWo}, s{sCol}
        buffer_load_dwordx4 v{vWg}, s[{S_W}:{S_W+3}], s{sWo} offen offset:896 lds
        s_add_u32 m0, s{sM}, {sl+16384-1792}
        s_add_u32 s{sC}, s{sC}, 1
        buffer_load_dwordx4 v{vWg}, s[{S_W}:{S_W+3}], s{sWo} offen offset:1792 lds
        s_cmp_eq_u32 s{sC}, 7
        s_cselect_b32 s{sC}, 0, s{sC}
        """)
    def issue_wq(i):
        a(f"""
        s_mul_i32 s{sWo}, s{sC}, 172032
        s_add_u32 m0, s{sM}, {WQB+i*8192}
        s_add_u32 s{sWo}, s{sWo}, s{sCol}
        buffer_load_dwordx4 v{vWg}, s[{S_W}:{S_W+3}], s{sWo} offen lds
        """)
        adv()
    def issue_chunk2(i):
        sl = (i % 4) * SLOT
        a(f"""
        s_lshl_b32 s{sXo}, s{sC}, 7
        s_add_u32 s{sXo}, s{sXo}, s{sXbase}
        s_add_u32 m0, s{sM}, {sl}
        s_mul_i32 s{sWo}, s{sC}, 172032
        buffer_load_dwordx4 v{vXg}, s[{S_X}:{S_X+3}], s{sXo} offen lds
        s_add_u32 m0, s{sM}, {(sl-4096) & 0xffffffff}
        s_add_u32 s{sWo}, s{sWo}, s{sCol}
        buffer_load_dwordx4 v{vXg2}, s[{S_X}:{S_X+3}], s{sXo} offen lds
        s_add_u32 m0, s{sM}, {sl+8192-896}
        s_add_u32 s{sC}, s{sC}, 1
        buffer_load_dwordx4 v{vWg}, s[{S_W}:{S_W+3}], s{sWo} offen offset:896 lds
        s_add_u32 m0, s{sM}, {sl+4096-896}
        s_nop 0
        buffer_load_dwordx4 v{vWg2}, s[{S_W}:{S_W+3}], s{sWo} offen offset:896 lds
        s_add_u32 m0, s{sM}, {sl+16384-1792}
        s_nop 0
        buffer_load_dwordx4 v{vWg}, s[{S_W}:{S_W+3}], s{sWo} offen offset:1792 lds
        s_add_u32 m0, s{sM}, {sl+12288-1792}
        s_cmp_eq_u32 s{sC}, 7
        buffer_load_dwordx4 v{vWg2}, s[{S_W}:{S_W+3}], s{sWo} offen offset:1792 lds
        s_cselect_b32 s{sC}, 0, s{sC}
        """)
    def issue_wq2(i):
        a(f"""
        s_mul_i32 s{sWo}, s{sC}, 172032
        s_add_u32 m0, s{sM}, {WQB+i*8192}
        s_add_u32 s{sWo}, s{sWo}, s{sCol}
        buffer_load_dwordx4 v{vWg}, s[{S_W}:{S_W+3}], s{sWo} offen lds
        s_add_u32 m0, s{sM}, {WQB+i*8192-4096}
        s_add_u32 s{sC}, s{sC}, 1
        buffer_load_dwordx4 v{vWg2}, s[{S_W}:{S_W+3}], s{sWo} offen lds
        s_cmp_eq_u32 s{sC}, 7
        s_cselect_b32 s{sC}, 0, s{sC}
        """)
    vXg2, vWg2 = 240, 241
    SPLIT = False
    Lsp1, Lnn = "L_sp1", a.newlabel("L_nonon")
    stamp(a, 0)
    PRE = optint("pre", 2)
    EARLY = False
    for i in range(PRE): issue_chunk(i)
    a(f"""
    {Lsp1}:
    s_mov_b32 s{S_WS}, s{S_DBG+2}
    s_mov_b32 s{S_WS+1}, s{S_DBG+3}
    s_mov_b32 s{S_DBG+2}, 256
    s_mov_b32 s{S_DBG+3}, 0x00020000
    s_mov_b32 s{S_WS+2}, {WS_BYTES}
    s_mov_b32 s{S_WS+3}, 0x00020000
    s_mov_b32 s{S_WO}, s40
    s_mov_b32 s{S_WO+1}, s41
    s_mov_b32 s{S_OUT}, s42
    s_mov_b32 s{S_OUT+1}, s43
    s_mov_b32 s{S_WO+2}, {WOB}
    s_mov_b32 s{S_WO+3}, 0x00020000
    s_mov_b32 s{S_OUT+2}, {OUTB}
    s_mov_b32 s{S_OUT+3}, 0x00020000
    v_mov_b32 v{vZ}, 0
    s_bfe_u32 s{S_QB}, s2, 0x40003
    s_and_b32 s34, s2, 7
    s_lshl_b32 s34, s34, 1
    s_lshr_b32 s35, s2, 7
    s_add_u32 s{S_HEAD}, s34, s35         ;          head = 2*(b&7) + (b>>7)
    s_and_b32 s{S_T}, s{S_WV}, 3
    s_lshr_b32 s{S_HALF}, s{S_WV}, 2
    s_lshl_b32 s34, s{S_QB}, 2
    s_add_u32 s{S_TILE}, s34, s{S_T}
    s_lshl_b32 s34, s{S_TILE}, 15
    s_lshl_b32 s35, s{S_HEAD}, 11
    s_add_u32 s{S_OA}, s34, s35
    s_lshl_b32 s34, s{S_HALF}, 10
    s_add_u32 s{S_OA}, s{S_OA}, s34
    s_add_u32 s{S_OA}, s{S_OA}, {WS_O}
    s_mov_b32 s{S_FB}, {WS_F1}
    s_lshl_b32 s57, s2, 7
    s_add_u32 s57, s57, {WS_F1}
    v_lshlrev_b32 v{vL16}, 4, v1
    v_mov_b32 v{vT}, {OOB}
    {VFSET}
    v_mov_b32 v{vSen}, -1
    v_mov_b32 v{vSen+1}, -1
    v_mov_b32 v{vSen+2}, -1
    v_mov_b32 v{vSen+3}, -1
    v_cndmask_b32 v{vF}, v{vT}, v{vT+2}, vcc
    s_cmp_eq_u32 s{S_C}, 7
    s_cbranch_scc1 {Lspare}
    v_and_b32 v{vT}, 31, v1               ; tok
    v_lshrrev_b32 v{vT+1}, 5, v1          ; h
    s_bfe_u32 s56, s{S_WV}, 0x10001       ; Ct = (w>>1)&1
    s_lshl_b32 s34, s{S_C}, 1
    s_add_u32 s58, s56, s34               ; Ctg (0..13)
    s_and_b32 s34, s{S_WV}, 1
    s_lshl_b32 s34, s34, 12
    s_lshl_b32 s54, s{S_TH}, 13
    s_add_u32 s54, s54, s34               ; tile * 4096
    v_bfe_u32 v{vT+2}, v1, 1, 3
    v_xor_b32 v{vT+2}, v{vT+2}, v{vT+1}   ; h ^ swz
    v_lshlrev_b32 v{vT+3}, 7, v{vT}       ; tok*128
    v_lshl_add_u32 v{vT+2}, v{vT+2}, 4, v{vT+3}
    v_add_u32 v{vXa}, s34, v{vT+2}
    v_xor_b32 v{vXa+1}, 32, v{vXa}
    v_xor_b32 v{vXa+2}, 64, v{vXa}
    v_xor_b32 v{vXa+3}, 0x60, v{vXa}
    v_add_u32 v{vXa+4}, {2*SLOT}, v{vXa}
    v_add_u32 v{vXa+5}, {2*SLOT}, v{vXa+1}
    v_add_u32 v{vXa+6}, {2*SLOT}, v{vXa+2}
    v_add_u32 v{vXa+7}, {2*SLOT}, v{vXa+3}
    v_and_b32 v{vT+2}, 3, v1              ; c'
    v_lshrrev_b32 v{vT+3}, 1, v{vT+2}
    v_lshlrev_b32 v{vT+4}, 1, v{vT+2}
    v_and_b32 v{vT+4}, 2, v{vT+4}
    v_or_b32 v{vT+3}, v{vT+3}, v{vT+4}    ; bitswap2(c')
    v_bfe_u32 v{vT+4}, v1, 4, 1           ; a
    v_bfe_u32 v{vT+5}, v1, 2, 2           ; r'
    v_lshl_add_u32 v{vT+6}, v{vT+1}, 3, v{vT+5}   ; 8h + r'
    s_cmp_eq_u32 s{S_HALF}, 0
    s_cselect_b64 vcc, -1, 0
    s_lshl_b32 s34, s56, 3
    v_cndmask_b32 v{vT+7}, v{vT+2}, v{vT+3}, vcc  ; cg
    v_lshl_add_u32 v{vT+7}, v{vT+4}, 2, v{vT+7}
    v_add_u32 v{vT+7}, s34, v{vT+7}
    v_lshlrev_b32 v{vT+8}, 2, v{vT+5}
    v_and_b32 v{vT+8}, 8, v{vT+8}
    v_xor_b32 v{vT+7}, v{vT+7}, v{vT+8}
    v_lshlrev_b32 v{vT+7}, 3, v{vT+7}
    v_lshl_add_u32 v{vWa}, v{vT+6}, 7, v{vT+7}
    v_add_u32 v{vWqa}, {WQB}, v{vWa}
    s_lshl_b32 s35, s{S_HALF}, 13
    s_add_u32 s35, s35, 8192
    v_add_u32 v{vWa}, s35, v{vWa}
    v_add_u32 v{vWa+1}, {2*SLOT}, v{vWa}
    v_mov_b32 v{vT+7}, {OOB}
    """)
    def nonce_wait():
        Lng, Lnw, Lz = a.newlabel("L_ngot"), a.newlabel("L_nwait"), a.newlabel("L_nz")
        a(f"""
        v_readfirstlane_b32 s34, v{vN}
        s_mov_b32 s35, 0
        s_sub_u32 s58, s62, s34
        s_cmp_lt_i32 s58, 1000
        s_cselect_b32 s34, s34, 0
        s_cmp_lg_u32 s34, 0
        s_cbranch_scc1 {Lng}
        {Lnw}:
        s_sleep 4
        buffer_load_dwordx2 {vr(vN,2)}, v{vZ}, {DBG}, 0 offen {SC}
        s_waitcnt vmcnt(0)
        v_readfirstlane_b32 s34, v{vN}
        s_add_u32 s35, s35, 1
        s_cmp_ge_u32 s35, {SPIN_MAX}
        s_cbranch_scc1 {Lng}
        s_cmp_ge_u32 s35, 256
        s_cbranch_scc1 {Lz}
        s_sub_u32 s58, s62, s34
        s_cmp_lt_i32 s58, 1000
        s_cselect_b32 s34, s34, 0
        {Lz}:
        s_cmp_eq_u32 s34, 0
        s_cbranch_scc1 {Lnw}
        {Lng}:
        """)
    NQ1 = optint("nq1", 4)
    CLA = optint("cla", 1)
    if "deep" in OPT:
        SCHED = {0: [("c", 2), ("c", 3)], 1: [("c", 4)], 2: [("c", 5)], 3: [("c", 6)], 4: [("q", q) for q in range(3)], 5: [("q", q) for q in range(3, 6)], 6: [("q", 6)]}
    elif "deep2" in OPT:
        SCHED = {0: [("c", 2)], 1: [("c", 3), ("c", 4)], 2: [("c", 5)], 3: [("c", 6)], 4: [("q", q) for q in range(3)], 5: [("q", q) for q in range(3, 7)]}
    else:
        SCHED = {i: [("c", i + 2)] for i in range(5)}
        SCHED[5] = [("q", q) for q in range(NQ1)]; SCHED[6] = [("q", q) for q in range(NQ1, 7)]
    def kloop(kt, extra):
        issued = [3] * PRE
        seq = []
        for i in range(PRE): seq += [("c", i)] * ((0 if kt else 6) if EARLY else 3)
        for ins in extra.get(-1, []):
            a(ins); seq.append(("x", -1))
        vW2 = [vWf, 82]
        def mm(i, waits):
            for sub in range(4):
                if waits: a(f"s_waitcnt lgkmcnt({3*(3-sub)})")
                X, W = vXf + 16 * i + 4 * sub, vW2[i % 2] + 4 * sub
                A, B = (W, X) if kt else (X, W)
                C = "0" if (i == 0 and sub == 0) else vr(vAcc, 16)
                if "nomm" not in OPT or i == 0: a(f"v_mfma_f32_32x32x16_bf16 {vr(vAcc,16)}, {vr(A,4)}, {vr(B,4)}, {C}")
        for i in range(7):
            mine = [k for k, t in enumerate(seq) if t == ("c", i)]
            a(f"s_waitcnt vmcnt({len(seq) - 1 - max(mine)}) lgkmcnt(0)" if mine else "s_waitcnt lgkmcnt(0)")
            a("s_barrier")
            stamp(a, 1 + i) if i in (0, 6) else None
            if "cyc" in OPT and i in (0, 6): a(f"s_memtime s[{42 if i == 0 else 44}:{43 if i == 0 else 45}]")
            sl = i % 4
            hi = sl >= 2
            so = (sl % 2) * SLOT
            for sub in range(4):
                for u in range(2):
                    a(f"ds_read_b64_tr_b16 {vr(vW2[i%2]+4*sub+2*u,2)}, v{vWa+hi} offset:{so+sub*2048+u*512}")
                a(f"ds_read_b128 {vr(vXf+16*i+4*sub,4)}, v{vXa+sub+4*hi} offset:{so}")
            if "pipe" in OPT and i >= 1: mm(i - 1, False)
            for kind, n in SCHED.get(i, []):
                if kind == "c":
                    issue_chunk(n); seq += [("c", n)] * 3
                else:
                    issue_wq(n); seq.append(("q", n))
            for ins in extra.get(i, []):
                a(ins); seq.append(("x", i))
            if "pipe" not in OPT or i == 6: mm(i, True)
    oclear = f"buffer_store_dwordx4 {vr(vSen,4)}, v{vL16}, {WS}, s{S_OA} offen {SC}"
    tagload = f"buffer_load_dwordx2 {vr(vN,2)}, v{vZ}, {DBG}, 0 offen {SC}"
    Lv = a.newlabel("L_vtype")
    Lpub = a.newlabel("L_pub")
    a(f"""
    s_cmp_lg_u32 s{S_HALF}, 0
    s_cbranch_scc1 {Lv}
    """)
    a.c("---- waves 0..3: K tile, then Q tile")
    a(f"""
    v_and_b32 v{vT+2}, 0x13, v{vT}
    v_lshlrev_b32 v{vT+3}, 1, v{vT}
    v_and_b32 v{vT+3}, 8, v{vT+3}
    v_lshrrev_b32 v{vT+4}, 1, v{vT}
    v_and_b32 v{vT+4}, 4, v{vT+4}
    v_or3_b32 v{vT+2}, v{vT+2}, v{vT+3}, v{vT+4}  ; swap23(tok)
    v_lshlrev_b32 v{vT+2}, 4, v{vT+2}
    v_mov_b32 v{vD+10}, 0x3f803f80
    v_mov_b32 v{vD+11}, 0x3f80
    v_mov_b32 v{vT+14}, 0x3f803f80
    v_mov_b32 v{vT+15}, 0x3f80
    s_add_u32 s59, s54, {WS_Q}
    s_lshl_b32 s34, s58, 2
    """)
    for aa in range(2):
        a(f"""
        v_add_u32 v{vT+3}, s34, v{vT+1}
        v_add_u32 v{vT+3}, {2*aa}, v{vT+3}       ; U
        v_mul_u32_u24 v{vT+4}, 37, v{vT+3}
        v_lshrrev_b32 v{vT+4}, 8, v{vT+4}        ; e
        v_mul_u32_u24 v{vT+5}, 7, v{vT+4}
        v_sub_u32 v{vT+6}, v{vT+3}, v{vT+5}      ; u7
        v_cmp_eq_u32 s[{S_M0+2*aa}:{S_M0+2*aa+1}], 3, v{vT+6}
        v_lshl_add_u32 v{vAd+aa}, v{vT+4}, 19, v{vT+2}
        v_lshrrev_b32 v{vT+5}, 2, v{vT+6}
        v_lshl_add_u32 v{vAd+aa}, v{vT+5}, 18, v{vAd+aa}
        v_and_b32 v{vT+5}, 3, v{vT+6}
        v_lshl_add_u32 v{vAd+aa}, v{vT+5}, 9, v{vAd+aa}
        v_add_u32 v{vT+5}, 0x40000, v{vAd+aa}
        v_cndmask_b32 v{vAd+2+aa}, v{vT+7}, v{vT+5}, s[{S_M0+2*aa}:{S_M0+2*aa+1}]
        """)
    kloop(True, {3: [tagload]})
    def unit_pack(aa, acc):
        L = [f"v_cvt_pk_bf16_f32 v{vD+4*aa+t}, v{acc+8*aa+2*t}, v{acc+8*aa+2*t+1}" for t in range(4)]
        X2 = vD + 8 if aa == 0 else vT + 12
        L += [f"v_mov_b32 v{X2}, v{vD+4*aa+2}", f"v_mov_b32 v{X2+1}, v{vD+4*aa+3}",
              f"v_cndmask_b32 v{vD+4*aa+2}, v{vD+4*aa+2}, v{vD+10}, s[{S_M0+2*aa}:{S_M0+2*aa+1}]",
              f"v_cndmask_b32 v{vD+4*aa+3}, v{vD+4*aa+3}, v{vD+11}, s[{S_M0+2*aa}:{S_M0+2*aa+1}]"]
        return L
    def unit_store(aa, soff):
        X2 = vD + 8 if aa == 0 else vT + 12
        return [f"buffer_store_dwordx4 {vr(vD+4*aa,4)}, v{vAd+aa}, {WS}, {soff} offen {SC}",
                f"buffer_store_dwordx4 {vr(X2,4)}, v{vAd+2+aa}, {WS}, {soff} offen {SC}"]
    QG = [int(c) for c in str(optint("qg", 47))]
    assert QG[-1] == 7
    a(f"s_waitcnt vmcnt({7 - QG[0]})")
    a("s_barrier")
    vW2 = [vWf, 82]
    vQa = 98
    def qrd(i, sub):
        for u in range(2):
            a(f"ds_read_b64_tr_b16 {vr(vW2[i%2]+4*sub+2*u,2)}, v{vWqa} offset:{i*8192+sub*2048+u*512}")
    for sub in range(4): qrd(0, sub)
    KST = optint("kst", 5)
    fill = {}
    pk = unit_pack(0, vAcc) + unit_pack(1, vAcc)
    for m in range(4): fill[m + 1] = pk[4 * m:4 * m + 4]
    ks = unit_store(0, "s54") + unit_store(1, "s54")
    for m in range(4): fill[KST + m] = fill.get(KST + m, []) + [ks[m]]
    fill[20] = [f"v_mov_b32 v{vD+10}, 0", f"v_mov_b32 v{vD+11}, 0", f"v_mov_b32 v{vT+14}, 0", f"v_mov_b32 v{vT+15}, 0", f"s_mov_b32 s34, {QSCALE:#x}"]
    nst = 0
    for i in range(7):
        if i + 1 in QG[:-1]:
            a(f"s_waitcnt vmcnt({nst + 7 - QG[QG.index(i + 1) + 1]})")
            a("s_barrier")
        for sub in range(4):
            if i + 1 < 7:
                qrd(i + 1, sub)
                a("s_waitcnt lgkmcnt(8)")
            else:
                a(f"s_waitcnt lgkmcnt({6-2*sub})")
            C = "0" if (i == 0 and sub == 0) else vr(vQa, 16)
            a(f"v_mfma_f32_32x32x16_bf16 {vr(vQa,16)}, {vr(vW2[i%2]+4*sub,4)}, {vr(vXf+16*i+4*sub,4)}, {C}")
            for ins in fill.get(4 * i + sub, []):
                a(ins)
                if ins.startswith("buffer_store"): nst += 1
            if 4 * i + sub == KST + 3: stamp(a, 2)
    a("s_nop 11")
    for aa in range(2):
        for r in range(8 * aa, 8 * aa + 8, 2):
            a(f"v_pk_mul_f32 {vr(vQa+r,2)}, {vr(vQa+r,2)}, s[34:35] op_sel_hi:[1,0]")
        for ins in unit_pack(aa, vQa) + unit_store(aa, "s59"): a(ins)
    stamp(a, 4)
    a(f"s_branch {Lpub}")
    a.label(Lv)
    a.c("---- waves 4..7: V tile")
    a(f"""
    s_lshl_b32 s34, s58, 5
    v_add_u32 v{vT+2}, s34, v{vT}            ; C
    v_mul_u32_u24 v{vT+3}, 2341, v{vT+2}
    v_lshrrev_b32 v{vT+3}, 16, v{vT+3}       ; head
    v_mul_u32_u24 v{vT+4}, 28, v{vT+3}
    v_sub_u32 v{vT+6}, v{vT+2}, v{vT+4}      ; d
    v_lshl_add_u32 v{vT+4}, v{vT+1}, 5, v{vT+6}
    v_lshlrev_b32 v{vT+4}, 4, v{vT+4}
    v_lshl_add_u32 v{vAd}, v{vT+3}, 18, v{vT+4}
    v_cmp_eq_u32 vcc, 0, v{vT+6}
    v_mov_b32 v{vT+5}, 0x3f803f80
    s_nop 0
    v_cndmask_b32 v{vD+8}, 0, v{vT+5}, vcc
    v_cndmask_b32 v{vD+9}, 0, v{vT+5}, vcc
    v_cndmask_b32 v{vD+10}, 0, v{vT+5}, vcc
    v_cndmask_b32 v{vD+11}, 0, v{vT+5}, vcc
    v_cmp_gt_u32 vcc, 4, v{vT+6}
    s_nop 1
    v_cndmask_b32 v{vAd+1}, v{vT+7}, v{vAd}, vcc
    """)
    vpad = [f"buffer_store_dwordx4 {vr(vD+8,4)}, v{vAd+1}, {WS}, s54 offen offset:{o+448} {SC}" for o in (2048, 3072)]
    if "wqown" in OPT:
        Lpf = a.newlabel("L_pf")
        a(f"""
        s_and_b32 s34, s{S_TH}, 7
        s_mul_i32 s34, s34, {56*2688}
        s_add_u32 s34, s34, s{sCol}
        v_and_b32 v{vT+8}, 15, v1
        v_min_u32 v{vT+8}, 13, v{vT+8}
        v_mad_u32_u24 v{vT+8}, s{S_T}, 14, v{vT+8}
        v_mul_u32_u24 v{vT+8}, 2688, v{vT+8}
        """)
        pf = [f"buffer_load_dword v{vT+9}, v{vT+8}, s[{S_W}:{S_W+3}], s34 offen"]
    else:
        pf = []
    kloop(False, {-1: pf, 3: [tagload]})
    a(f"s_waitcnt vmcnt({7 - QG[0]})")
    a("s_barrier")
    a("s_nop 9")
    for t in range(8):
        a(f"v_cvt_pk_bf16_f32 v{vD+t}, v{vAcc+2*t}, v{vAcc+2*t+1}")
    VST = optint("vst", 1)
    nv = 0
    for k in range(1, len(QG) + 1):
        if k == VST:
            for i in range(2):
                a(f"buffer_store_dwordx4 {vr(vD+4*i,4)}, v{vAd}, {WS}, s54 offen offset:{2048+1024*i} {SC}")
            for ins in vpad: a(ins)
            stamp(a, 2)
            nv = 4
        if k < len(QG):
            a(f"s_waitcnt vmcnt({nv + 7 - QG[k]})")
            a("s_barrier")
    a.label(Lpub)
    a("s_waitcnt vmcnt(0)")
    nonce_wait()
    a("s_barrier")
    stamp(a, 3)
    Lp, Lpd = a.newlabel("L_poll1"), a.newlabel("L_poll1d")
    Lh0, Lh1, Lh2 = a.newlabel("L_h"), a.newlabel("L_h"), a.newlabel("L_h")
    a(f"""
    buffer_store_dwordx2 {vr(vN,2)}, v{vF}, {WS}, s57 offen {SC}
    {"s_barrier" if "ocb" in OPT else ""}
    {oclear if "oc1" in OPT else ""}
    s_cmp_lg_u32 s{S_WV}, 7
    s_cbranch_scc1 {Lsync}
    ; workgroup = (th>>3) + (c == 3 ? th&4 : c&4) + 8*(th&7) + 64*(c&3)
    s_mul_i32 s34, s{S_HEAD}, 28
    s_add_u32 s35, s34, 27
    s_lshr_b32 s34, s34, 6
    s_lshr_b32 s35, s35, 6
    v_mov_b32 v{vT}, s34
    s_mov_b32 exec_lo, 0
    v_mov_b32 v{vT}, s35
    s_mov_b32 exec_lo, -1
    v_cmp_eq_u32 vcc, 3, v{vT}
    s_nop 1
    v_cndmask_b32 v{vT+1}, v{vT}, v1, vcc
    v_and_b32 v{vT+1}, 4, v{vT+1}
    v_and_b32 v{vT}, 3, v{vT}
    v_lshl_add_u32 v{vT}, v{vT}, 6, v{vT+1}
    v_bfe_u32 v{vT+1}, v1, 3, 2
    v_add_u32 v{vT}, v{vT}, v{vT+1}
    v_and_b32 v{vT+1}, 7, v1
    v_lshl_add_u32 v{vT}, v{vT+1}, 3, v{vT}
    v_lshlrev_b32 v{vT}, 7, v{vT}
    s_mov_b32 s35, 0
    s_cmp_lg_u32 s{S_C}, 7
    s_cbranch_scc1 {Lh1}
    ; spare workgroups first wait for a working neighbour's hint line, so that they do not touch the flag lines early
    s_xor_b32 s34, s2, 4
    s_lshl_b32 s34, s34, 7
    s_add_u32 s34, s34, {WS_F1+0x8000}
    {Lh0}:
    s_sleep 4
    buffer_load_dwordx2 {vr(240,2)}, v{vZ}, {WS}, s34 offen {SC}
    s_add_u32 s35, s35, 1
    s_waitcnt vmcnt(0)
    v_cmp_ne_u64 vcc, {vr(240,2)}, {vr(vN,2)}
    s_cmp_ge_u32 s35, {SPIN_MAX}
    s_cbranch_scc1 {Lh2}
    s_cmp_lg_u64 vcc, 0
    s_cbranch_scc1 {Lh0}
    s_branch {Lh2}
    {Lh1}:
    s_waitcnt vmcnt(0)
    s_sleep {optint("sl0", 10)}
    {Lh2}:
    """)
    PD = optint("pd", 1)
    SL1 = optint("sl1", 4)
    TSH = optint("tsh", 4)
    def pollissue(k):
        if "rep" in OPT:
            a(f"""
            s_memrealtime s[58:59]
            s_waitcnt lgkmcnt(0)
            s_bfe_u32 s34, s58, {0x20000 + TSH}
            s_lshl_b32 s34, s34, 15
            s_add_u32 s34, s34, {WS_F1}
            buffer_load_dwordx2 {vr(240+2*k,2)}, v{vT}, {WS}, s34 offen {SC}
            """)
        else:
            a(f"buffer_load_dwordx2 {vr(240+2*k,2)}, v{vT}, {WS}, s{S_FB} offen {SC}")
    for k in range(PD - 1):
        pollissue(k)
        a(f"s_sleep {SL1}")
    a.label(Lp)
    for k in range(PD):
        pollissue((k + PD - 1) % PD)
        a(f"""
        s_waitcnt vmcnt({PD-1})
        v_cmp_ne_u64 vcc, {vr(240+2*k,2)}, {vr(vN,2)}
        s_nop 0
        s_cmp_eq_u64 vcc, 0
        s_cbranch_scc1 {Lsync}
        s_sleep {SL1}
        """)
    a(f"""
    s_add_u32 s35, s35, 1
    s_cmp_lt_u32 s35, {SPIN_MAX}
    s_cbranch_scc1 {Lp}
    """)
    a.label(Lsync)
    vL, vL2, vIdx = 3, 4, 5
    vO = 82
    vS = [32, 48, 64]
    vK = [128, 136]
    vV = [144, 152, 160, 168]
    vQ = 98
    vX = 106
    vG3, vOOB, vP2 = 176, 177, 178
    sG, sM0 = 46, 47
    QX = 98304
    WG1 = f"s_cmp_eq_u32 s{S_WV}, 7\ns_cselect_b32 s34, 0, {OOB}\nv_or_b32 v{vP2}, s34, v{vP2}" if "wgate" in OPT else ""
    a(f"""
    s_lshl_b32 s34, s{S_HALF}, 5
    s_add_u32 s34, s34, s{S_T}
    s_lshl_b32 s34, s34, 12
    s_lshl_b32 s51, s{S_HEAD}, 18
    s_add_u32 s{sG}, s51, s34
    s_lshl_b32 s48, s{S_TILE}, 12
    s_add_u32 s48, s48, s51
    s_lshl_b32 s34, s{S_HALF}, 10
    s_add_u32 s48, s48, s34
    s_add_u32 s48, s48, {WS_Q}
    s_lshl_b32 s35, s{S_T}, 11
    s_add_u32 s34, s34, s35
    s_add_u32 m0, s34, {QX}
    s_lshl_b32 s{sM0}, s{S_WV}, 12
    s_lshl_b32 s34, s{S_HALF}, 12
    s_and_b32 s35, s{S_WV}, 1
    s_lshl_b32 s35, s35, 10
    s_add_u32 s34, s34, s35
    s_bfe_u32 s35, s{S_WV}, 0x10001
    s_lshl_b32 s50, s35, 14
    s_add_u32 s50, s50, s34
    s_lshl_b32 s35, s35, 17
    s_add_u32 s51, s51, s35
    s_add_u32 s51, s51, s34
    s_barrier
    """)
    stamp(a, 5)
    def load_q():
        a(f"buffer_load_dwordx4 {vr(vQ,4)}, v{vL16}, {WS}, s48 offen {SC}")
        a(f"buffer_load_dwordx4 {vr(vQ+4,4)}, v{vL16}, {WS}, s48 offen offset:1024 {SC}")
    def kvdma(piece):
        a(f"buffer_load_dwordx4 v{vL16}, {WS}, s{sG} offen offset:{piece*1024} {SC} lds")
    def maxchain(regs, t):
        regs = list(regs)
        a(f"v_max3_u32 v{t}, v{regs[0]}, v{regs[1]}, v{regs[2]}")
        rest = regs[3:]
        while len(rest) >= 2:
            a(f"v_max3_u32 v{t}, v{t}, v{rest[0]}, v{rest[1]}")
            rest = rest[2:]
        if rest:
            a(f"v_max_u32 v{t}, v{t}, v{rest[0]}")
    slowpaths = []
    def validate(regs, reload, t):
        Lr, Lb = a.newlabel("L_retry"), a.newlabel("L_back")
        maxchain(regs, t)
        a(f"v_cmp_eq_u32 vcc, -1, v{t}")
        a("s_nop 0")
        a("s_cmp_lg_u64 vcc, 0")
        a(f"s_cbranch_scc1 {Lr}")
        a.label(Lb)
        def emit():
            Ll = a.newlabel("L_rl")
            a.label(Lr)
            a("s_mov_b32 s35, 0")
            a.label(Ll)
            reload()
            a("s_add_u32 s35, s35, 1")
            a("s_waitcnt vmcnt(0)")
            maxchain(regs, t)
            a(f"v_cmp_eq_u32 vcc, -1, v{t}")
            a(f"s_cmp_ge_u32 s35, {SPIN_MAX}")
            a(f"s_cbranch_scc1 {Lb}")
            a("s_cmp_lg_u64 vcc, 0")
            a(f"s_cbranch_scc1 {Ll}")
            a(f"s_branch {Lb}")
        slowpaths.append(emit)
    a(f"""
    buffer_load_dwordx4 v{vL16}, {WS}, s48 offen {SC} lds
    s_mov_b32 m0, s50
    s_add_u32 s35, s51, 8192
    buffer_load_dwordx4 v{vL16}, {WS}, s51 offen {SC} lds
    s_barrier
    buffer_load_dwordx4 v{vL16}, {WS}, s51 offen offset:2048 {SC} lds
    s_add_u32 m0, s50, 8192
    s_nop 0
    buffer_load_dwordx4 v{vL16}, {WS}, s35 offen {SC} lds
    buffer_load_dwordx4 v{vL16}, {WS}, s35 offen offset:2048 {SC} lds
    """)
    def advg():
        a(f"s_add_u32 s{sG}, s{sG}, 16384")
    def stage_dma(st):
        a(f"s_add_u32 m0, s{sM0}, {st*32768}")
        advg()
        for f in range(4): kvdma(f)
    NE = 0
    if optint("s1", 0) == 2:
        a(f"s_add_u32 m0, s{sM0}, 32768")
        advg()
        kvdma(0); kvdma(1)
    for st in range(1, 1 + NE):
        a("s_barrier")
        stage_dma(st)
    a(f"""
    s_lshl_b32 s34, s{S_HALF}, 14
    v_add_u32 v{vL}, s34, v{vL16}
    v_add_u32 v{vL2}, 0x10000, v{vL}
    v_mov_b32 v{vIdx}, 0xdddddddd
    ; wo DMA addresses (phase 3 prefetch)
    v_lshrrev_b32 v{vT}, 3, v0            ; 8w + r
    v_lshrrev_b32 v{vT+1}, 3, v1
    v_and_b32 v{vT+1}, 6, v{vT+1}
    v_and_b32 v{vT+2}, 7, v1
    v_xor_b32 v{vT+1}, v{vT+1}, v{vT+2}
    v_mul_u32_u24 v{vG3}, 896, v{vT}
    v_lshl_add_u32 v{vG3}, v{vT+1}, 4, v{vG3}
    v_mov_b32 v{vOOB}, {OOB}
    s_lshr_b32 s49, s2, 5
    s_min_u32 s49, s49, 6
    s_lshl_b32 s49, s49, 7                ; wo col block byte offset
    s_lshl_b32 s54, s{S_WV}, 10
    s_add_u32 s57, s57, {WS_F2-WS_F1}
    s_mov_b32 s{S_FB}, {WS_F2}
    ; phase 3 token half, and the flags of its O producers: workgroup = (head>>1) + 8*qb + 128*(head&1), head = 8*half + (l&7)
    s_and_b32 s34, s2, 7
    s_lshl_b32 s34, s34, 2
    s_bfe_u32 s35, s2, 0x20003
    s_add_u32 s{S_TH}, s34, s35
    s_lshr_b32 s34, s{S_TH}, 1
    s_lshl_b32 s34, s34, 3
    s_lshl_b32 s35, s{S_HALF}, 2
    {"" if "wgate" in OPT else "s_add_u32 s34, s34, s35"}
    v_bfe_u32 v{vT}, v1, 1, {3 if "wgate" in OPT else 2}
    v_add_u32 v{vT}, s34, v{vT}
    v_and_b32 v{vT+1}, 1, v1
    v_lshl_add_u32 v{vT}, v{vT+1}, 7, v{vT}
    v_lshlrev_b32 v{vP2}, 7, v{vT}
    {WG1}
    """)
    for r in range(16):
        a(f"v_mov_b32 v{vO+r}, 0")
    a(f"s_lshl_b32 s34, s{S_T}, 11")
    a(f"s_add_u32 s34, s34, {QX}")
    a(f"v_add_u32 v{vX}, s34, v{vL16}")
    a(f"s_waitcnt vmcnt({5 if optint('s1', 0) == 2 else 3})")
    stamp(a, 6)
    a("s_barrier")
    stamp(a, 8)
    def ldsaddr(u, off):
        slot = (u // 4) % 3
        o = slot * 32768 + (u % 4) * 4096 + off
        return (vL, o) if o < 65536 else (vL2, o - 65536)
    def rd(dst, u, off):
        r, o = ldsaddr(u, off)
        a(f"ds_read_b128 {vr(dst,4)}, v{r} offset:{o}")
    def rdK(u, f): rd(vK[u % 2] + 4 * f, u, f * 1024)
    def rdV(u, f): rd(vV[u % 4] + 4 * f, u, 2048 + f * 1024)
    def QK(u, i, K=None):
        C = "0" if i == 0 else vr(vS[u % 3], 16)
        K = vK[u % 2] if K is None else K
        a(f"v_mfma_f32_32x32x16_bf16 {vr(vS[u%3],16)}, {vr(K+4*i,4)}, {vr(vQ+4*i,4)}, {C}")
    def PV(u, i):
        a(f"v_smfmac_f32_32x32x32_bf16 {vr(vO,16)}, {vr(vV[u%4]+4*i,4)}, {vr(vS[u%3]+8*i,8)}, v{vIdx}")
    def E(u, r0, r1):
        for r in range(r0, r1):
            a(f"v_exp_f32 v{vS[u%3]+r}, v{vS[u%3]+r}")
    a(f"""
    ds_read_b128 {vr(vQ,4)}, v{vX}
    ds_read_b128 {vr(vV[2],4)}, v{vL16}
    ds_read_b128 {vr(vQ+4,4)}, v{vX} offset:1024
    ds_read_b128 {vr(vV[2]+4,4)}, v{vL16} offset:1024
    """)
    rdK(0, 0); rdK(0, 1); rdK(1, 0); rdK(1, 1)
    a("s_waitcnt lgkmcnt(6)")
    QK(2, 0, vV[2])
    a("s_waitcnt lgkmcnt(4)")
    QK(2, 1, vV[2])
    a("s_waitcnt lgkmcnt(3)")
    QK(0, 0)
    S1 = optint("s1", 0)
    if S1 == 0:
        stage_dma(1)
        a("s_nop 3")
    elif S1 == 1:
        a("s_nop 9")
    else:
        kvdma(2); kvdma(3)
        a("s_nop 7")
    S = vS[2]
    a(f"v_max3_f32 v{vT}, v{S}, v{S+1}, v{S+2}")
    a(f"v_max3_f32 v{vT+1}, v{S+3}, v{S+4}, v{S+5}")
    for r in (6, 10):
        a(f"v_max3_f32 v{vT}, v{vT}, v{S+r}, v{S+r+1}")
        a(f"v_max3_f32 v{vT+1}, v{vT+1}, v{S+r+2}, v{S+r+3}")
    a(f"v_max3_f32 v{vT}, v{vT}, v{S+14}, v{S+15}")
    a(f"""
    v_max_f32 v{vT}, v{vT}, v{vT+1}
    v_mov_b32 v{vT+1}, v{vT}
    s_nop 1
    v_permlane32_swap_b32 v{vT}, v{vT+1}
    v_max_f32 v{vT}, v{vT}, v{vT+1}
    s_mov_b32 exec_lo, 0
    v_cvt_pk_bf16_f32 v{vQ+6}, -v{vT}, 0
    s_mov_b32 exec_lo, -1
    s_waitcnt lgkmcnt(0)
    """)
    QK(0, 1)
    if S1 == 1: stage_dma(1)
    LATEB = "lateb" in OPT
    if not LATEB:
        a("s_waitcnt vmcnt(4)")
        a("s_barrier")
        rdV(0, 0); rdV(0, 1); rdV(1, 0); rdV(1, 1); rdK(2, 0); rdK(2, 1)
        a("s_nop 1")
    stamp(a, 9)
    F2AT, P2AT = optint("f2at", 28), optint("p2at", 31)
    OCAT = optint("ocat", 6)
    assert OCAT <= 16 and F2AT >= 25
    plan = {t: ([], []) for t in range(32)}
    plan[0] = ([(2, 0)], [(2, 1)]); plan[1] = ([(2, 2)], [(2, 3)])
    plan[2] = ([(3, 0)], [(3, 1)]); plan[3] = ([], [(3, 2)]); plan[4] = ([], [(3, 3)])
    for t in range(5, 21): plan[t] = ([], [((t - 1) // 4 + 3, (t - 1) % 4)])
    seq = [("s", 1)] * 4
    def vm(ins, tag):
        a(ins); seq.append(tag)
    def pieces(L):
        for st, p in L:
            kvdma(p); seq.append(("s", st))
    for t in range(32):
        first = [st for st, p in plan[t][0] + plan[t][1] if p == 0]
        if t + 1 < 32: QK(t + 1, 0)
        if first:
            advg()
        elif 21 <= t <= 27:
            a(f"s_add_u32 s34, s49, {(t-21)*57344}")
        if t == 0 and LATEB: a("s_nop 9")
        elif t + 2 < 32: rdV(t + 2, 0)
        E(t, 0, 4)
        if t + 1 < 32: QK(t + 1, 1)
        if first:
            a(f"s_add_u32 m0, s{sM0}, {(first[0] % 3) * 32768}")
        elif 21 <= t <= 28:
            a(f"s_add_u32 m0, s54, {98304 + (t-21)*8192}")
        if t == 0 and LATEB:
            a("s_waitcnt vmcnt(4)")
            a("s_barrier")
            rdV(0, 0); rdV(0, 1); rdV(1, 0); rdV(1, 1); rdK(2, 0); rdK(2, 1); rdV(2, 0)
        if t + 2 < 32: rdV(t + 2, 1)
        E(t, 4, 8)
        if t >= 1: PV(t - 1, 1)
        if t % 4 == 1 and t <= 25:
            last = max(k for k, tg in enumerate(seq) if tg == ("s", (t + 3) // 4))
            a(f"s_waitcnt vmcnt({len(seq) - 1 - last}) lgkmcnt(0)")
            a("s_barrier")
        a(f"s_setprio {3 - ((t - 1) % 4) if t < 25 else 3 - (t - 25) // 2}")
        pieces(plan[t][0])
        if t + 3 < 32: rdK(t + 3, 0)
        E(t, 8, 12)
        if t == 0:
            a("s_waitcnt lgkmcnt(5)")
        PV(t, 0)
        a("s_waitcnt lgkmcnt(3)" if t + 3 < 32 else "s_waitcnt lgkmcnt(0)")
        pieces(plan[t][1])
        if 21 <= t <= 27:
            vm(f"buffer_load_dwordx4 v{vG3}, s[{S_WO}:{S_WO+3}], s34 offen lds", "wo")
        elif t == 28:
            vm(f"buffer_load_dwordx4 v{vOOB}, s[{S_WO}:{S_WO+3}], 0 offen lds", "wo")
        if t == P2AT:
            vm(f"buffer_load_dwordx2 {vr(vSen,2)}, v{vP2}, {WS}, s{S_FB} offen {SC}", "x")
        if t + 3 < 32:
            rdK(t + 3, 1)
        if t == OCAT and "oc1" not in OPT: vm(oclear, "x")
        if t == F2AT: vm(f"buffer_store_dwordx2 {vr(vN,2)}, v{vF}, {WS}, s57 offen {SC}", "x")
        E(t, 12, 16)
    NWO = len(seq) - 1 - max(k for k, tg in enumerate(seq) if tg == "wo")
    a("s_nop 1")
    PV(31, 1)
    stamp(a, 10)
    a.c("---- combine the two kv halves in slot 0 (stage 6 data is dead)")
    LB, LJ, Lslow, Lst = a.newlabel("L_halfB"), a.newlabel("L_join"), a.newlabel("L_slow"), a.newlabel("L_store")
    a(f"""
    s_mul_i32 s34, s{S_WV}, 2304
    s_xor_b32 s35, s{S_WV}, 4
    s_mul_i32 s35, s35, 2304
    v_add_u32 v{vT}, s34, v{vL16}
    v_add_u32 v{vT+1}, s35, v{vL16}
    v_lshl_add_u32 v{vT+2}, v1, 2, s34     ; own l word
    v_or_b32 v{vT+3}, 32, v1
    v_lshl_add_u32 v{vT+4}, v{vT+3}, 2, s35
    v_lshl_add_u32 v{vT+3}, v{vT+3}, 2, s34
    s_nop 0
    s_cmp_lg_u32 s{S_HALF}, 0
    s_cbranch_scc1 {LB}
    ds_write_b128 v{vT}, {vr(vO+8,4)}
    ds_write_b128 v{vT}, {vr(vO+12,4)} offset:1024
    ds_write_b32 v{vT+2}, v{vO+12} offset:2048
    s_branch {LJ}
    {LB}:
    ds_write_b128 v{vT}, {vr(vO,4)}
    ds_write_b128 v{vT}, {vr(vO+4,4)} offset:1024
    ds_write_b32 v{vT+2}, v{vO+12} offset:2048
    s_nop 1
    """)
    for r in range(8):
        a(f"v_mov_b32 v{vO+r}, v{vO+8+r}")
    a(f"""
    {LJ}:
    s_waitcnt vmcnt({NWO}) lgkmcnt(0)
    s_barrier
    {f"buffer_load_dwordx2 {vr(vSen+2,2)}, v{vP2}, {WS}, s{S_FB} offen {SC}" if "p2b" in OPT else ""}
    ds_read_b32 v{vX+8}, v{vT+3} offset:2048
    ds_read_b32 v{vX+9}, v{vT+4} offset:2048
    ds_read_b128 {vr(vX,4)}, v{vT+1}
    ds_read_b128 {vr(vX+4,4)}, v{vT+1} offset:1024
    s_waitcnt lgkmcnt(2)
    v_add_f32 v{vX+8}, v{vX+8}, v{vX+9}
    v_rcp_f32 v{vX+9}, v{vX+8}
    s_mov_b32 s34, 0x2b800000
    s_mov_b32 s35, 0x53800000
    s_waitcnt lgkmcnt(0)
    """)
    if "nopk" in OPT:
        for r in range(8):
            a(f"v_add_f32 v{vO+r}, v{vO+r}, v{vX+r}")
        for r in range(8):
            a(f"v_fmac_f32 v{vX+8}, 0, v{vO+r}")
    else:
        for r in range(0, 8, 2):
            a(f"v_pk_add_f32 {vr(vO+r,2)}, {vr(vO+r,2)}, {vr(vX+r,2)}")
        a(f"v_pk_mul_f32 {vr(vX+10,2)}, {vr(vO,2)}, 0")
        for r in range(2, 8, 2):
            a(f"v_pk_fma_f32 {vr(vX+10,2)}, {vr(vO+r,2)}, 0, {vr(vX+10,2)}")
        a(f"v_add_f32 v{vX+10}, v{vX+10}, v{vX+11}")
        a(f"v_add_f32 v{vX+8}, v{vX+8}, v{vX+10}")
    a(f"""
    v_cmp_nle_f32 vcc, s34, v{vX+8}
    v_cmp_nge_f32 s[58:59], s35, v{vX+8}
    s_nop 0
    s_or_b64 vcc, vcc, s[58:59]
    s_cbranch_scc1 {Lslow}
    {Lst}:
    s_mov_b32 s35, 0xfffffffe
    """)
    if "nopk" in OPT:
        for r in range(8):
            a(f"v_mul_f32 v{vO+r}, v{vO+r}, v{vX+9}")
    else:
        for r in range(0, 8, 2):
            a(f"v_pk_mul_f32 {vr(vO+r,2)}, {vr(vO+r,2)}, {vr(vX+8,2)} op_sel:[0,1] op_sel_hi:[1,1]")
    for t in range(4):
        a(f"v_cvt_pk_bf16_f32 v{vX+t}, v{vO+2*t}, v{vO+2*t+1}")
    for t in range(4):
        a(f"v_min_u32 v{vX+t}, s35, v{vX+t}")
    Lnz = a.newlabel("L_nz")
    a(f"""
    s_cmp_eq_u32 s{S_HALF}, 0
    s_cbranch_scc1 {Lnz}
    s_mov_b32 exec_lo, 0
    v_mov_b32 v{vX+2}, 0
    v_mov_b32 v{vX+3}, 0
    s_mov_b32 exec_lo, -1
    {Lnz}:
    buffer_store_dwordx4 {vr(vX,4)}, v{vL16}, {WS}, s{S_OA} offen {SC}
    s_cmp_ge_u32 s2, 224
    s_cbranch_scc1 {"L_fin" if STAMPS else done}
    """)
    stamp(a, 11)
    vOg = 3
    vA = 8
    vAc3 = 32
    vOf = 48
    vWo = 128
    WOB_L = 98304
    a(f"""
    v_mov_b32 v2, v{vP2}
    v_lshrrev_b32 v{vT}, 4, v1            ; g
    v_and_b32 v{vT+1}, 15, v1
    v_bfe_u32 v{vT+2}, v1, 2, 2           ; r'
    v_bfe_u32 v{vT+3}, v1, 4, 1           ; g&1
    v_lshrrev_b32 v{vT+4}, 5, v1          ; g>>1
    v_lshl_add_u32 v{vT+5}, v{vT+3}, 2, v{vT+2}
    v_lshl_add_u32 v{vT+5}, v{vT+4}, 4, v{vT+5}   ; row
    v_lshrrev_b32 v{vT+6}, 1, v{vT+2}
    v_lshl_add_u32 v{vT+6}, v{vT+3}, 1, v{vT+6}   ; s0
    v_lshlrev_b32 v{vT+6}, 5, v{vT+6}
    v_lshl_add_u32 v{vT+5}, v{vT+5}, 7, v{vT+6}
    v_and_b32 v{vT+6}, 3, v1
    v_lshl_add_u32 v{vT+5}, v{vT+6}, 3, v{vT+5}
    s_mul_i32 s34, s{S_HALF}, {8*28*128}
    s_add_u32 s34, s34, {WOB_L}
    v_add_u32 v{vA}, s34, v{vT+5}
    v_xor_b32 v{vA+1}, 32, v{vA}
    v_xor_b32 v{vA+2}, 64, v{vA}
    v_xor_b32 v{vA+3}, 0x60, v{vA}
    """)
    def wr(hh):
        for ct in range(4):
            for u in range(2):
                a(f"ds_read_b64_tr_b16 {vr(vWo+16*hh+4*ct+2*u,2)}, v{vA+(ct^(2*(hh&1)))} offset:{(28*hh+8*u)*128}")
    NW1 = optint("nw1", 4)
    for hh in range(NW1):
        wr(hh)
        a("s_waitcnt lgkmcnt(4)")
    XB3 = 20480
    Lf2r, Lf2b = a.newlabel("L_f2r"), a.newlabel("L_f2b")
    a(f"""
    v_lshlrev_b32 v{vOg}, 9, v{vT}
    v_lshl_add_u32 v{vOg}, v{vT+1}, 4, v{vOg}
    s_lshl_b32 s34, s{S_TH}, 1
    s_lshr_b32 s35, s{S_T}, 1
    s_add_u32 s34, s34, s35
    s_lshl_b32 s34, s34, 15
    s_lshl_b32 s35, s{S_HALF}, 14
    s_add_u32 s48, s34, s35
    s_and_b32 s34, s{S_T}, 1
    s_lshl_b32 s34, s34, 8
    s_add_u32 s48, s48, s34
    s_add_u32 s48, s48, {WS_O}
    s_add_u32 s46, s48, 4096
    s_add_u32 s47, s48, 8192
    s_add_u32 s51, s48, 12288
    v_and_b32 v{vT+4}, 7, v1
    v_lshlrev_b32 v{vT+5}, 2, v1
    v_and_b32 v{vT+5}, 8, v{vT+5}
    v_or_b32 v{vT+4}, v{vT+4}, v{vT+5}            ; f(slot)
    v_lshrrev_b32 v{vT+5}, 1, v1
    v_and_b32 v{vT+5}, 8, v{vT+5}                 ; (g&1)*8
    v_lshrrev_b32 v{vT+6}, 5, v1                  ; g>>1
    v_or_b32 v{vT+5}, v{vT+5}, v{vT+6}
    v_xor_b32 v{vT+4}, v{vT+4}, v{vT+5}
    v_lshlrev_b32 v{vT+4}, 4, v{vT+4}
    v_lshl_add_u32 v{vT+4}, v{vT+1}, 8, v{vT+4}
    s_lshl_b32 s34, s{S_WV}, 12
    v_add_u32 v{vT+8}, s34, v{vT+4}
    v_xor_b32 v{vT+9}, 32, v{vT+8}
    v_xor_b32 v{vT+10}, 64, v{vT+8}
    v_xor_b32 v{vT+11}, 0x60, v{vT+8}
    v_lshrrev_b32 v{vT+5}, 3, v0
    v_and_b32 v{vT+6}, 7, v0
    v_and_b32 v{vT+2}, 7, v{vT+5}
    v_lshlrev_b32 v{vT+3}, 2, v{vT+5}
    v_and_b32 v{vT+3}, 8, v{vT+3}
    v_or_b32 v{vT+2}, v{vT+2}, v{vT+3}
    v_xor_b32 v{vT+2}, v{vT+2}, v{vT+6}
    v_lshlrev_b32 v{vT+2}, 4, v{vT+2}
    v_lshl_add_u32 v{vT+2}, v{vT+5}, 8, v{vT+2}
    v_xor_b32 v{vT+3}, 0x80, v{vT+2}
    v_and_b32 v{vT+4}, 0x33, v{vT+5}
    v_lshlrev_b32 v{vT+7}, 1, v{vT+5}
    v_and_b32 v{vT+7}, 8, v{vT+7}
    v_lshrrev_b32 v{vT+5}, 1, v{vT+5}
    v_and_b32 v{vT+5}, 4, v{vT+5}
    v_or3_b32 v{vT+4}, v{vT+4}, v{vT+7}, v{vT+5}
    v_mul_u32_u24 v{vT+4}, 896, v{vT+4}
    v_lshl_add_u32 v{vT+4}, v{vT+6}, 4, v{vT+4}
    s_mul_i32 s50, s{S_TH}, 57344
    s_add_u32 s50, s50, s49
    s_waitcnt vmcnt({2 if "p2b" in OPT else 1})
    {f"s_cmp_lg_u32 s{S_WV}, 7" if "wgate" in OPT else ""}
    {f"s_cbranch_scc1 {Lf2b}" if "wgate" in OPT else ""}
    v_cmp_ne_u64 vcc, {vr(vSen,2)}, {vr(vN,2)}
    s_nop 0
    s_cmp_lg_u64 vcc, 0
    s_cbranch_scc1 {Lf2r}
    {Lf2b}:
    {"s_barrier" if "wgate" in OPT else ""}
    s_mov_b32 s35, 0
    """)
    def f2retry():
        Ll = a.newlabel("L_f2l")
        P2B = f"s_waitcnt vmcnt(1)\nv_cmp_ne_u64 vcc, {vr(vSen+2,2)}, {vr(vN,2)}\ns_nop 0\ns_cmp_eq_u64 vcc, 0\ns_cbranch_scc1 {Lf2b}" if "p2b" in OPT else ""
        a(f"""
        {Lf2r}:
        s_mov_b32 s35, 0
        {P2B}
        {Ll}:
        s_sleep {optint("sl2", 2)}
        buffer_load_dwordx2 {vr(vSen,2)}, v2, {WS}, s{S_FB} offen {SC}
        s_add_u32 s35, s35, 1
        s_waitcnt vmcnt(0)
        v_cmp_ne_u64 vcc, {vr(vSen,2)}, {vr(vN,2)}
        s_cmp_ge_u32 s35, {SPIN_MAX}
        s_cbranch_scc1 {Lf2b}
        s_cmp_lg_u64 vcc, 0
        s_cbranch_scc1 {Ll}
        s_branch {Lf2b}
        """)
    slowpaths.append(f2retry)
    stamp(a, 12)
    def oload(hh):
        so = ["s48", "s46", "s47", "s51"][hh // 2]
        a(f"buffer_load_dwordx4 {vr(vOf+4*hh,4)}, v{vOg}, {WS}, {so} offen offset:{(hh%2)*2048} {SC}")
    def ocheck(hh, first):
        o4 = vOf + 4 * hh
        Lacc, Lskip = a.newlabel("L_oa"), a.newlabel("L_os")
        if not first:
            a(f"s_bitcmp0_b32 s34, {hh}")
            a(f"s_cbranch_scc1 {Lskip}")
            a(f"s_bitcmp0_b32 s56, {hh}")
            a(f"s_cbranch_scc1 {Lacc}")
        a(f"""
        v_max3_u32 v{vT+5}, v{o4}, v{o4+1}, v{o4+2}
        v_max_u32 v{vT+5}, v{vT+5}, v{o4+3}
        v_cmp_eq_u32 vcc, -1, v{vT+5}
        s_nop 0
        s_cmp_lg_u64 vcc, 0
        s_cbranch_scc1 {Lskip}
        s_bitset0_b32 s56, {hh}
        {Lacc}:
        """)
        if hh:
            a(f"s_and_b32 s58, s56, {(1 << hh) - 1}")
            a(f"s_cbranch_scc1 {Lskip}")
        a(f"s_bitset0_b32 s34, {hh}")
        for ct in range(4):
            C = "0" if hh == 0 else vr(vAc3 + 4 * ct, 4)
            a(f"v_mfma_f32_16x16x32_bf16 {vr(vAc3+4*ct,4)}, {vr(vWo+16*hh+4*ct,4)}, {vr(vOf+4*hh,4)}, {C}")
        a.label(Lskip)
    for hh in range(8): oload(hh)
    for hh in range(NW1, 8):
        wr(hh)
        a("s_waitcnt lgkmcnt(4)")
    Lo, Lo2, Lod = a.newlabel("L_o"), a.newlabel("L_o2"), a.newlabel("L_od")
    a(f"s_branch {Lo2}")
    a.label(Lo)
    for hh in range(8): oload(hh)
    a.label(Lo2)
    for hh in range(8):
        a(f"s_waitcnt vmcnt({7-hh}) lgkmcnt(0)")
        for ct in range(4):
            C = "0" if hh == 0 else vr(vAc3 + 4 * ct, 4)
            a(f"v_mfma_f32_16x16x32_bf16 {vr(vAc3+4*ct,4)}, {vr(vWo+16*hh+4*ct,4)}, {vr(vOf+4*hh,4)}, {C}")
        o4 = vOf + 4 * hh
        if hh == 0:
            a(f"v_max3_u32 v{vT+5}, v{o4}, v{o4+1}, v{o4+2}")
            a(f"v_max_u32 v{vT+5}, v{vT+5}, v{o4+3}")
        else:
            a(f"v_max3_u32 v{vT+5}, v{vT+5}, v{o4}, v{o4+1}")
            a(f"v_max3_u32 v{vT+5}, v{vT+5}, v{o4+2}, v{o4+3}")
    a(f"""
    v_cmp_eq_u32 vcc, -1, v{vT+5}
    s_add_u32 s35, s35, 1
    s_cmp_ge_u32 s35, {SPIN_MAX}
    s_cbranch_scc1 {Lod}
    s_cmp_lg_u64 vcc, 0
    s_cbranch_scc1 {Lo}
    {Lod}:
    """)
    stamp(a, 13)
    if STAMPS: a("s_mov_b32 s94, s35")
    a("s_nop 1")
    for ct in range(4):
        a(f"ds_write_b128 v{vT+8+ct}, {vr(vAc3+4*ct,4)} offset:{XB3}")
    a(f"""
    s_waitcnt lgkmcnt(0)
    s_barrier
    ds_read_b128 {vr(vX,4)}, v{vT+2} offset:{XB3}
    ds_read_b128 {vr(vX+8,4)}, v{vT+2} offset:{XB3+16384}
    ds_read_b128 {vr(vX+4,4)}, v{vT+3} offset:{XB3}
    ds_read_b128 {vr(vX+12,4)}, v{vT+3} offset:{XB3+16384}
    s_waitcnt lgkmcnt(2)
    """)
    for r in (0, 2):
        a(f"v_pk_add_f32 {vr(vX+r,2)}, {vr(vX+r,2)}, {vr(vX+8+r,2)}")
    a("s_waitcnt lgkmcnt(0)")
    for r in (4, 6):
        a(f"v_pk_add_f32 {vr(vX+r,2)}, {vr(vX+r,2)}, {vr(vX+8+r,2)}")
    for t in range(4):
        a(f"v_cvt_pk_bf16_f32 v{vX+8+t}, v{vX+2*t}, v{vX+2*t+1}")
    a(f"buffer_store_dwordx4 {vr(vX+8,4)}, v{vT+4}, s[{S_OUT}:{S_OUT+3}], s50 offen {OSC}")
    if STAMPS:
        a("s_waitcnt vmcnt(0)")
        stamp(a, 14)
        a.label("L_fin")
        a("s_memrealtime s[96:97]")
        a("s_waitcnt lgkmcnt(0)")
        for i in range(15):
            a(f"v_mov_b32 v{8+i}, s{64+2*i}")
        if "cyc" in OPT: a("s_sub_u32 s94, s44, s42")
        a("v_mov_b32 v23, s94")
        a("v_mov_b32 v24, s98")
        a("v_mov_b32 v25, s96")
        a("v_mov_b32 v26, 0")
        a("v_mov_b32 v27, 0")
        a(f"""
        s_lshl_b32 s34, s2, 3
        s_add_u32 s34, s34, s{S_WV}
        s_lshl_b32 s34, s34, 7
        s_add_u32 s34, s34, {WS_ST}
        s_mov_b64 exec, 1
        buffer_store_dwordx4 v[8:11], v{vZ}, {WS}, s34 offen
        buffer_store_dwordx4 v[12:15], v{vZ}, {WS}, s34 offen offset:16
        buffer_store_dwordx4 v[16:19], v{vZ}, {WS}, s34 offen offset:32
        buffer_store_dwordx4 v[20:23], v{vZ}, {WS}, s34 offen offset:48
        buffer_store_dwordx4 v[24:27], v{vZ}, {WS}, s34 offen offset:64
        """)
    a.label(done)
    a("s_endpgm")
    for e in slowpaths: e()
    a.label(Lspare)
    a(f"""
    s_cmp_lg_u32 s2, 196
    s_cbranch_scc1 {Lnn}
    ; one spare workgroup publishes this launch's hand-off tag in d_debug
    s_or_b32 s62, s62, 1
    v_mov_b32 v{vN}, s62
    v_mov_b32 v{vN+1}, s63
    buffer_store_dwordx2 {vr(vN,2)}, v{vF}, {DBG}, 0 offen {SC}
    s_waitcnt vmcnt(0)
    v_lshlrev_b32 v{vT+10}, 7, v0
    {f"buffer_load_dword v{vT+11}, v{vT+10}, {WS}, s{S_FB} offen sc0 sc1 nt" if "fwarm" in OPT else ""}
    {Lnn}:
    {tagload}
    s_branch {Lpub}
    """)
    a.label(Lslow)
    L1, L2, Lh = a.newlabel("L_s1"), a.newlabel("L_s2"), a.newlabel("L_sh")
    sCnt = 48
    a(f"""
    s_mov_b32 exec_lo, 0
    v_mov_b32 v{vQ+6}, 0
    v_mov_b32 v{vQ+7}, 0
    s_mov_b32 exec_lo, -1
    v_mov_b32 v{vT}, 0xff800000
    s_lshl_b32 s{sG}, s{S_HEAD}, 18
    s_mov_b32 s{sCnt}, 0
    {L1}:
    buffer_load_dwordx4 {vr(vK[0],4)}, v{vL16}, {WS}, s{sG} offen {SC}
    buffer_load_dwordx4 {vr(vK[0]+4,4)}, v{vL16}, {WS}, s{sG} offen offset:1024 {SC}
    s_waitcnt vmcnt(0)
    """)
    QK(0, 0); QK(0, 1)
    a("s_nop 15")
    for r in range(0, 16, 2):
        a(f"v_max3_f32 v{vT}, v{vT}, v{vS[0]+r}, v{vS[0]+r+1}")
    a(f"""
    s_add_u32 s{sG}, s{sG}, 4096
    s_add_u32 s{sCnt}, s{sCnt}, 1
    s_cmp_lt_u32 s{sCnt}, 64
    s_cbranch_scc1 {L1}
    v_mov_b32 v{vT+1}, v{vT}
    s_nop 1
    v_permlane32_swap_b32 v{vT}, v{vT+1}
    s_nop 1
    v_max_f32 v{vT}, v{vT}, v{vT+1}
    v_and_b32 v{vT+1}, 0xffff0000, v{vT}       ; hi
    v_sub_f32 v{vT+2}, v{vT}, v{vT+1}
    v_and_b32 v{vT+3}, 0xffff0000, v{vT+2}     ; mid
    v_sub_f32 v{vT+2}, v{vT+2}, v{vT+3}        ; lo
    s_mov_b32 exec_lo, 0
    v_cvt_pk_bf16_f32 v{vQ+6}, -v{vT+1}, -v{vT+3}
    v_cvt_pk_bf16_f32 v{vQ+7}, -v{vT+2}, 0
    s_mov_b32 exec_lo, -1
    """)
    for r in range(16):
        a(f"v_mov_b32 v{vO+r}, 0")
    a(f"""
    s_lshl_b32 s{sG}, s{S_HEAD}, 18
    s_mov_b32 s{sCnt}, 0
    {L2}:
    buffer_load_dwordx4 {vr(vK[0],4)}, v{vL16}, {WS}, s{sG} offen {SC}
    buffer_load_dwordx4 {vr(vK[0]+4,4)}, v{vL16}, {WS}, s{sG} offen offset:1024 {SC}
    buffer_load_dwordx4 {vr(vV[0],4)}, v{vL16}, {WS}, s{sG} offen offset:2048 {SC}
    buffer_load_dwordx4 {vr(vV[0]+4,4)}, v{vL16}, {WS}, s{sG} offen offset:3072 {SC}
    s_waitcnt vmcnt(0)
    """)
    QK(0, 0); QK(0, 1)
    a("s_nop 15")
    E(0, 0, 16)
    a("s_nop 1")
    PV(0, 0); PV(0, 1)
    a(f"""
    s_nop 7
    s_add_u32 s{sG}, s{sG}, 4096
    s_add_u32 s{sCnt}, s{sCnt}, 1
    s_cmp_lt_u32 s{sCnt}, 64
    s_cbranch_scc1 {L2}
    s_nop 15
    v_mov_b32 v{vX+8}, v{vO+12}
    v_mov_b32 v{vX+9}, v{vO+12}
    s_nop 1
    v_permlane32_swap_b32 v{vX+8}, v{vX+9}
    s_nop 1
    v_rcp_f32 v{vX+9}, v{vX+9}
    s_cmp_eq_u32 s{S_HALF}, 0
    s_cbranch_scc1 {Lh}
    """)
    for r in range(8):
        a(f"v_mov_b32 v{vO+r}, v{vO+8+r}")
    a(f"""
    {Lh}:
    s_nop 1
    s_branch {Lst}
    """)
    a.label("L_end")
    a.raw('.section .rodata,"a"')
    a.raw(".p2align 6")
    a.raw(kernel_desc(NAME, 256, 102).rstrip("\n"))
    return a.text()

if __name__ == "__main__":
    out = sys.argv[1] if len(sys.argv) > 1 else "standalone__softmax_full_mha__prompt.s"
    OPT.update(sys.argv[2:])
    STAMPS = "stamps" in OPT
    open(out, "w").write(build())
```
